```python
import torch

def _softmax(x, axis=-1):
    return torch.softmax(x, dim=axis)
def _gelu(x):
    return torch.nn.functional.gelu(x, approximate="tanh")
def _silu(x):
    return torch.nn.functional.silu(x)
def _sigmoid(x):
    return torch.sigmoid(x)
def _layernorm(x, axis=-1, eps=1e-5):
    m = x.mean(dim=axis, keepdim=True)
    v = x.var(dim=axis, keepdim=True, unbiased=False)
    return (x - m) / torch.sqrt(v + eps)
def _scatter_add(tgt, idx, src, axis=0):
    return tgt.clone().index_add_(axis, idx, src)
def _segment_sum(src, seg, n):
    out = torch.zeros((n,) + src.shape[1:], dtype=src.dtype)
    return out.index_add_(0, seg, src)
def _pad(x, pw):
    flat = tuple(v for pair in reversed(pw) for v in pair)
    return torch.nn.functional.pad(x, flat)

kernel_name = 'interleave_layers__mha_block__glu_gated_reglu__prompt'

def setup_inputs():

    _w = (lambda a: (lambda t: t.to(torch.bfloat16) if t.is_floating_point() else t)(torch.as_tensor(a)))
    def _A_setup():
        B, S, D, H = 1, 2048, 640, 32
        return {
            "x": _w((lambda *s: torch.randn(*s, dtype=torch.bfloat16) * 0.05)(B, S, D)),
            "wqkv": _w((lambda *s: torch.randn(*s, dtype=torch.bfloat16) * 0.05)(D, 3 * D)),
            "wo": _w((lambda *s: torch.randn(*s, dtype=torch.bfloat16) * 0.05)(D, D)),
        }
    _A_in = _A_setup()

    def _B_setup():
        B, S, D, F = 1, 2048, 640, 1536
        return {
            "x": _w((lambda *s: torch.randn(*s, dtype=torch.bfloat16) * 0.05)(B, S, D)),
            "W_gate": _w((lambda *s: torch.randn(*s, dtype=torch.bfloat16) * 0.8)(D, F) * (2.0 / D) ** 0.5),
            "W_up": _w((lambda *s: torch.randn(*s, dtype=torch.bfloat16) * 0.8)(D, F) * (2.0 / D) ** 0.5),
            "W_down": _w((lambda *s: torch.randn(*s, dtype=torch.bfloat16) * 0.8)(F, D) * (1.0 / F) ** 0.5),
        }
    _B_in = _B_setup()

    return {
        "A_x": _A_in["x"],
        "A_wqkv": _A_in["wqkv"],
        "A_wo": _A_in["wo"],
        "B_x": _B_in["x"],
        "B_W_gate": _B_in["W_gate"],
        "B_W_up": _B_in["W_up"],
        "B_W_down": _B_in["W_down"],
    }

def reference(A_x, A_wqkv, A_wo, B_x, B_W_gate, B_W_up, B_W_down):
    def _A_ref(x, wqkv, wo):
        B, S, D = x.shape
        H = 32
        Dh = D // H
        qkv = (lambda x, *d: x.permute(*d))((x @ wqkv).reshape(B, S, 3, H, Dh), 2, 0, 3, 1, 4)
        q, k, v = qkv[0], qkv[1], qkv[2]
        scores = torch.einsum("bhqd,bhkd->bhqk", q, k) * (Dh ** -0.5)
        p = _softmax(scores, axis=-1)
        o = torch.einsum("bhqk,bhkd->bhqd", p, v)
        return (lambda x, *d: x.permute(*d))(o, 0, 2, 1, 3).reshape(B, S, D) @ wo

    def _B_ref(x, W_gate, W_up, W_down):
        gate = torch.einsum("bsd,df->bsf", x, W_gate)
        up = torch.einsum("bsd,df->bsf", x, W_up)
        gate = gate * (lambda x, dt: x.to(dt))(gate > 0, gate.dtype)
        h = gate * up
        return torch.einsum("bsf,fd->bsd", h, W_down)

    x = A_x
    x = x + _A_ref(_layernorm(x, axis=-1), A_wqkv, A_wo)
    x = x + _B_ref(_layernorm(x, axis=-1), B_W_gate, B_W_up, B_W_down)
    x = x + _A_ref(_layernorm(x, axis=-1), A_wqkv, A_wo)
    x = x + _B_ref(_layernorm(x, axis=-1), B_W_gate, B_W_up, B_W_down)
    return x
```

```python
class Asm:
    def __init__(self):
        self.lines = []
        self.uid = 0
    def __call__(self, s):
        for l in s.strip("\n").split("\n"):
            self.lines.append("    " + l.strip())
    def label(self, l):
        self.lines.append(l + ":")
    def raw(self, s):
        self.lines.append(s)
    def newlabel(self, base):
        self.uid += 1
        return f"L_{base}_{self.uid}"
    def text(self):
        return "\n".join(self.lines) + "\n"

def vr(b, n=1):
    return f"v{b}" if n == 1 else f"v[{b}:{b+n-1}]"
def sr(b, n=1):
    return f"s{b}" if n == 1 else f"s[{b}:{b+n-1}]"

def kernel_header(a, name):
    a.raw(f".globl {name}")
    a.raw(".p2align 8")
    a.raw(f".type {name},@function")
    a.label(name)

def kernel_desc(name, vgpr, sgpr=96, accum=None):
    if accum is None:
        accum = (vgpr + 3) // 4 * 4
    return f""".p2align 6
.amdhsa_kernel {name}
  .amdhsa_next_free_vgpr {vgpr}
  .amdhsa_next_free_sgpr {sgpr}
  .amdhsa_accum_offset {accum}
  .amdhsa_group_segment_fixed_size 0
  .amdhsa_kernarg_size 80
  .amdhsa_user_sgpr_count 2
  .amdhsa_user_sgpr_kernarg_segment_ptr 1
  .amdhsa_system_sgpr_workgroup_id_x 1
.end_amdhsa_kernel
"""

P_AX, P_WQKV, P_WO, P_BX, P_WG, P_WU, P_WD, P_OUT, P_DBG, P_WS = 16, 18, 20, 22, 24, 26, 28, 30, 32, 34

def load_ptrs(a):
    a("s_load_dwordx16 s[16:31], s[0:1], 0")
    a("s_load_dwordx4 s[32:35], s[0:1], 64")

def srd(a, d, ptr, off, nbytes):
    if off:
        a(f"s_add_u32 s{d}, s{ptr}, {off}")
        a(f"s_addc_u32 s{d+1}, s{ptr+1}, 0")
    else:
        a(f"s_mov_b32 s{d}, s{ptr}")
        a(f"s_mov_b32 s{d+1}, s{ptr+1}")
    a(f"s_mov_b32 s{d+2}, {nbytes}")
    a(f"s_mov_b32 s{d+3}, 0x00020000")
```

```python
from asmlib import *
from layout import *

STG = 24576
FLAG = 4 * STG

def gen_att(a):
    kernel_header(a, "att_kernel")
    a("s_cmp_ge_u32 s2, 256")
    a("s_cbranch_scc1 L_att_exit")
    load_ptrs(a)
    a("""
    s_and_b32 s3, s2, 7
    s_lshl_b32 s5, s3, 2
    s_bfe_u32 s4, s2, 0x20003
    s_add_u32 s5, s5, s4
    s_lshr_b32 s6, s2, 5
    v_lshrrev_b32 v1, 6, v0
    v_and_b32 v2, 63, v0
    v_and_b32 v3, 31, v0
    v_readfirstlane_b32 s7, v1
    v_lshrrev_b32 v4, 5, v2
    s_waitcnt lgkmcnt(0)
    """)
    srd(a, 40, P_WS, WS_QKV, 96*98304)
    srd(a, 48, P_WS, WS_O, 2048*1280)
    VDMA, VKM0, VKT0, VV0, VKM, VKT, VV, VQ = 5, 6, 7, 8, 9, 10, 11, 12
    QM, QT = 16, 20
    KM, KT = 24, 32
    VF = 36
    P = 44
    O = 52
    S = 68
    T = 100
    a(f"""
    s_cmp_lt_u32 s7, 4
    s_cselect_b32 s10, 32, 64
    s_add_u32 s10, s10, s5
    s_mul_i32 s10, s10, 98304
    s_and_b32 s11, s7, 3
    s_mul_i32 s11, s11, 3072
    s_add_u32 s10, s10, s11
    v_lshl_add_u32 v{VDMA}, v2, 4, s10
    s_mul_i32 s21, s7, 3072
    v_mul_u32_u24 v13, 48, v3
    v_lshl_add_u32 v{VKM0}, v4, 4, v13
    v_lshl_add_u32 v{VKT0}, v4, 3, v13
    v_add_u32 v{VKT0}, 32, v{VKT0}
    v_bfe_u32 v14, v2, 2, 2
    v_lshl_add_u32 v14, v4, 2, v14
    v_mul_u32_u24 v14, 48, v14
    v_bfe_u32 v15, v2, 4, 1
    v_and_b32 v{T}, 3, v2
    v_lshlrev_b32 v{T+1}, 1, v15
    v_sub_u32 v{T+1}, 3, v{T+1}
    v_and_b32 v{T}, v{T}, v{T+1}
    v_lshl_add_u32 v{T}, v15, 2, v{T}
    v_lshl_add_u32 v14, v{T}, 3, v14
    v_add_u32 v{VV0}, 12288, v14
    s_lshl_b32 s10, s6, 8
    s_lshl_b32 s11, s7, 5
    s_add_u32 s22, s10, s11
    s_mul_i32 s10, s22, 48
    s_mul_i32 s11, s5, 98304
    s_add_u32 s23, s10, s11
    s_mov_b32 s64, -1
    s_mov_b32 s65, 0
    s_mov_b32 s66, 0
    s_mov_b32 s67, -1
    s_mov_b32 s24, 0
    buffer_load_dwordx4 {vr(QM,4)}, v{VKM0}, s[40:43], s23 offen
    buffer_load_dwordx2 {vr(QT,2)}, v{VKT0}, s[40:43], s23 offen
    v_mov_b32 v{T}, 0
    v_mov_b32 v{T+1}, {FLAG}
    ds_write_b32 v{T+1}, v{T}
    """)
    def dma(stage_sgpr_or_imm, goff):
        if isinstance(stage_sgpr_or_imm, int):
            a(f"s_add_u32 m0, s21, {stage_sgpr_or_imm}")
        else:
            a(f"s_add_u32 m0, s21, {stage_sgpr_or_imm}")
        a("s_nop 0")
        for i in range(3):
            a(f"buffer_load_dwordx4 v{VDMA}, s[40:43], {goff} offen offset:{i*1024} lds")
    a.label("L_att_restart")
    for c in range(3):
        a(f"s_mov_b32 s25, {c*12288}")
        dma(c*STG, "s25")
    for r in range(16):
        a(f"v_mov_b32 v{O+r}, 0")
    for r in range(4):
        a(f"v_mov_b32 v{P+4+r}, 0")
        a(f"v_mov_b32 v{VF+4+r}, 0")
    a(f"v_mov_b32 v{S+16+14}, 0")
    a(f"v_mov_b32 v{S+16+15}, 0")
    a(f"""
    v_mov_b32 v{VKM}, v{VKM0}
    v_mov_b32 v{VKT}, v{VKT0}
    s_waitcnt vmcnt(6) lgkmcnt(0)
    s_barrier
    ds_read_b128 {vr(KM,4)}, v{VKM}
    ds_read_b64 {vr(KT,2)}, v{VKT}
    ds_read_b128 {vr(KM+4,4)}, v{VKM} offset:1536
    ds_read_b64 {vr(KT+2,2)}, v{VKT} offset:1536
    s_cmp_lg_u32 s24, 0
    s_cbranch_scc1 L_att_have_m
    s_mov_b64 exec, s[66:67]
    v_mov_b32 v{QT}, 0
    v_mov_b32 v{QT+1}, 0
    s_mov_b64 exec, -1
    s_waitcnt lgkmcnt(2)
    v_mfma_f32_32x32x16_bf16 {vr(S,16)}, {vr(KM,4)}, {vr(QM,4)}, 0
    v_mfma_f32_32x32x8_bf16 {vr(S,16)}, {vr(KT,2)}, {vr(QT,2)}, {vr(S,16)}
    s_nop 15
    v_max3_f32 v{T}, v{S}, v{S+1}, v{S+2}
    """)
    for r in range(3, 15, 2):
        a(f"v_max3_f32 v{T}, v{T}, v{S+r}, v{S+r+1}")
    a(f"v_max_f32 v{T}, v{T}, v{S+15}")
    a.label("L_att_set_m")
    a(f"""
    v_mov_b32 v{T+1}, v{T}
    s_nop 1
    v_permlane32_swap_b32 v{T}, v{T+1}
    s_nop 1
    v_max_f32 v{T}, v{T}, v{T+1}
    v_xor_b32 v{T}, 0x80000000, v{T}
    v_and_b32 v{T+1}, 0xffff0000, v{T}
    v_sub_f32 v{T}, v{T}, v{T+1}
    v_and_b32 v{T+2}, 0xffff0000, v{T}
    v_sub_f32 v{T}, v{T}, v{T+2}
    v_lshrrev_b32 v{T+1}, 16, v{T+1}
    s_mov_b64 exec, s[66:67]
    v_or_b32 v{QT}, v{T+1}, v{T+2}
    v_lshrrev_b32 v{QT+1}, 16, v{T}
    s_mov_b64 exec, -1
    s_cmp_lg_u32 s24, 0
    s_cbranch_scc1 L_att_restart
    """)
    a.label("L_att_have_m")
    a(f"""
    s_waitcnt lgkmcnt(2)
    s_nop 1
    v_mfma_f32_32x32x16_bf16 {vr(S,16)}, {vr(KM,4)}, {vr(QM,4)}, 0
    v_mfma_f32_32x32x8_bf16 {vr(S,16)}, {vr(KT,2)}, {vr(QT,2)}, {vr(S,16)}
    s_mov_b32 s20, 0
    s_mov_b32 s26, 0
    s_nop 15
    """)
    a.raw(".p2align 6")
    a.label("L_att_loop")
    for t in range(8):
        Sc = S + (t & 1)*16
        Sn = S + ((t+1) & 1)*16
        kb_use = (t+1) & 1
        kb_ld = t & 1
        e = lambda i: a(f"v_exp_f32 v{Sc+i}, v{Sc+i}")
        c = lambda i: a(f"v_cvt_pk_bf16_f32 v{P+i}, v{Sc+2*i}, v{Sc+2*i+1}")
        e(0)
        a(f"v_cvt_pk_bf16_f32 v{P+7}, v{Sn+14}, v{Sn+15}")
        if t == 0:
            a(f"v_add_u32 v{VV}, s26, v{VV0}")
        e(1)
        a("s_waitcnt lgkmcnt(2)")
        a(f"v_mfma_f32_32x32x16_bf16 {vr(O,16)}, {vr(VF+4,4)}, {vr(P+4,4)}, {vr(O,16)}")
        if t == 6:
            lab = a.newlabel("nodma")
            a(f"""
            s_add_u32 s26, s26, {STG}
            s_cmp_eq_u32 s26, {4*STG}
            s_cselect_b32 s26, 0, s26
            v_add_u32 v{VKM}, s26, v{VKM0}
            v_add_u32 v{VKT}, s26, v{VKT0}
            s_waitcnt vmcnt(0)
            s_barrier
            s_cmp_ge_u32 s20, 5
            s_cbranch_scc1 {lab}
            s_add_u32 s27, s20, 3
            s_mul_i32 s25, s27, 12288
            s_and_b32 s27, s27, 3
            s_mul_i32 s27, s27, {STG}
            """)
            dma("s27", "s25")
            a.label(lab)
        for j in range(2):
            for i in range(2):
                a(f"ds_read_b64_tr_b16 {vr(VF+4*j+2*i,2)}, v{VV} offset:{t*1536 + (16*j+8*i)*48}")
        kt = (t+2) % 8
        a(f"ds_read_b128 {vr(KM+4*kb_ld,4)}, v{VKM} offset:{kt*1536}")
        a(f"ds_read_b64 {vr(KT+2*kb_ld,2)}, v{VKT} offset:{kt*1536}")
        e(2); c(0); e(3); e(4); c(1)
        a("s_waitcnt lgkmcnt(6)")
        a(f"v_mfma_f32_32x32x16_bf16 {vr(Sn,16)}, {vr(KM+4*kb_use,4)}, {vr(QM,4)}, 0")
        e(5); e(6); c(2); e(7); e(8); c(3)
        a(f"v_mfma_f32_32x32x8_bf16 {vr(Sn,16)}, {vr(KT+2*kb_use,2)}, {vr(QT,2)}, {vr(Sn,16)}")
        e(9); e(10); c(4); e(11)
        a("s_waitcnt lgkmcnt(4)")
        a(f"v_mfma_f32_32x32x16_bf16 {vr(O,16)}, {vr(VF,4)}, {vr(P,4)}, {vr(O,16)}")
        e(12); c(5); e(13); e(14); c(6); e(15)
    a("""
    s_add_u32 s20, s20, 1
    s_cmp_lt_u32 s20, 8
    s_cbranch_scc1 L_att_loop
    """)
    a(f"""
    s_nop 0
    v_cvt_pk_bf16_f32 v{P+7}, v{S+16+14}, v{S+16+15}
    s_waitcnt lgkmcnt(0)
    s_nop 1
    v_mfma_f32_32x32x16_bf16 {vr(O,16)}, {vr(VF+4,4)}, {vr(P+4,4)}, {vr(O,16)}
    v_add_u32 v13, s22, v3
    v_lshrrev_b32 v14, 4, v13
    v_mul_u32_u24 v14, 20480, v14
    v_and_b32 v13, 15, v13
    v_lshl_add_u32 v14, v13, 4, v14
    v_lshl_add_u32 v15, v4, 8, v14
    s_lshl_b32 s10, s5, 9
    s_lshr_b32 s11, s5, 1
    s_lshl_b32 s11, s11, 8
    s_and_b32 s12, s5, 1
    s_lshl_b32 s12, s12, 3
    s_add_u32 s11, s11, s12
    s_add_u32 s11, s11, 16384
    s_nop 4
    v_mov_b32 v{T}, v{O+8}
    v_mov_b32 v{T+1}, v{O+8}
    v_mul_f32 v{T+2}, 0, v{O}
    s_nop 0
    v_permlane32_swap_b32 v{T}, v{T+1}
    """)
    for r in range(1, 12):
        a(f"v_fma_f32 v{T+2}, 0, v{O+r}, v{T+2}")
    a(f"v_rcp_f32 v{T+1}, v{T+1}")
    a(f"v_cmp_u_f32 vcc, v{T+2}, v{T+2}")
    for r in range(12):
        a(f"v_mul_f32 v{O+r}, v{O+r}, v{T+1}")
    for r in range(6):
        a(f"v_cvt_pk_bf16_f32 v{P+r}, v{O+2*r}, v{O+2*r+1}")
    a(f"""
    buffer_store_dwordx4 {vr(P,4)}, v15, s[48:51], s10 offen
    s_mov_b64 exec, s[64:65]
    buffer_store_dwordx2 {vr(P+4,2)}, v14, s[48:51], s11 offen
    s_mov_b64 exec, -1
    s_cmp_lg_u32 s24, 0
    s_cbranch_scc1 L_att_exit
    v_mov_b32 v{T+1}, {FLAG}
    s_cbranch_vccz L_att_ok
    v_mov_b32 v{T}, 1
    ds_write_b32 v{T+1}, v{T}
    """)
    a.label("L_att_ok")
    a(f"""
    s_waitcnt lgkmcnt(0)
    s_barrier
    ds_read_b32 v{T}, v{T+1}
    s_waitcnt lgkmcnt(0)
    v_readfirstlane_b32 s10, v{T}
    s_nop 3
    s_cmp_eq_u32 s10, 0
    s_cbranch_scc1 L_att_exit
    """)
    a(f"""
    s_mov_b32 s24, 1
    s_mov_b64 exec, s[66:67]
    v_mov_b32 v{QT}, 0
    v_mov_b32 v{QT+1}, 0
    s_mov_b64 exec, -1
    v_mov_b32 v{T}, 0xff800000
    s_add_u32 s10, s5, 32
    s_mul_i32 s10, s10, 98304
    s_mov_b32 s11, 64
    """)
    a.label("L_att_maxloop")
    a(f"""
    buffer_load_dwordx4 {vr(KM,4)}, v{VKM0}, s[40:43], s10 offen
    buffer_load_dwordx2 {vr(KT,2)}, v{VKT0}, s[40:43], s10 offen
    s_waitcnt vmcnt(0)
    v_mfma_f32_32x32x16_bf16 {vr(S,16)}, {vr(KM,4)}, {vr(QM,4)}, 0
    v_mfma_f32_32x32x8_bf16 {vr(S,16)}, {vr(KT,2)}, {vr(QT,2)}, {vr(S,16)}
    s_nop 15
    """)
    for r in range(0, 16, 2):
        a(f"v_max3_f32 v{T}, v{T}, v{S+r}, v{S+r+1}")
    a("""
    s_add_u32 s10, s10, 1536
    s_sub_u32 s11, s11, 1
    s_cmp_lg_u32 s11, 0
    s_cbranch_scc1 L_att_maxloop
    s_branch L_att_set_m
    """)
    a.label("L_att_exit")
    a("s_endpgm")
    return [("att_kernel", 108)]
```

```python
from asmlib import *
from layout import *
import struct

def f32(x):
    return "0x%08x" % struct.unpack("<I", struct.pack("<f", x))[0]

QSCALE = 1.4426950408889634 / (20 ** 0.5)
NCH = 10

def tile_map16(a):
    a("""
    s_and_b32 s3, s2, 7
    s_lshr_b32 s4, s2, 3
    s_and_b32 s5, s3, 3
    s_lshl_b32 s5, s5, 2
    s_and_b32 s8, s4, 3
    s_add_u32 s5, s5, s8
    s_lshr_b32 s6, s3, 2
    s_lshl_b32 s6, s6, 3
    s_lshr_b32 s8, s4, 2
    s_add_u32 s6, s6, s8
    v_lshrrev_b32 v1, 6, v0
    v_and_b32 v2, 63, v0
    s_nop 0
    v_readfirstlane_b32 s7, v1
    """)

def loader_loop(a, ninstr, va, stage_bytes, nstage, nch, extra_barriers, dist):
    a("s_mov_b32 s58, 0")
    def issue(c):
        for i in range(ninstr):
            a(f"s_add_u32 m0, s57, {(c % nstage) * stage_bytes + i * 1024}")
            a("s_nop 0")
            a(f"buffer_load_dwordx4 v{va+i}, s[52:55], s58 offen lds")
        a("s_add_u32 s58, s58, s56")
    for c in range(dist):
        issue(c)
    for c in range(nch):
        outstanding_after = min(dist - 1, nch - 1 - c)
        a(f"s_waitcnt vmcnt({ninstr * outstanding_after})")
        a("s_barrier")
        if c + dist < nch:
            issue(c + dist)
    for _ in range(extra_barriers):
        a("s_barrier")
    a("s_endpgm")

def x_loader_setup(a, va):
    a(f"""
    v_lshrrev_b32 v3, 3, v2
    v_and_b32 v4, 7, v2
    v_lshrrev_b32 v5, 4, v2
    v_xor_b32 v4, v4, v5
    v_mul_u32_u24 v6, 1280, v3
    v_lshl_add_u32 v6, v4, 4, v6
    v_xor_b32 v7, 64, v6
    s_lshl_b32 s10, s5, 7
    s_lshl_b32 s11, s9, 6
    s_add_u32 s10, s10, s11
    s_mul_i32 s10, s10, 1280
    """)
    for i in range(8):
        a(f"s_add_u32 s11, s10, {8*i*1280}")
        a(f"v_add_u32 v{va+i}, s11, v{6 + (i & 1)}")
    a("""
    s_mov_b32 s52, s40
    s_mov_b32 s53, s41
    s_mov_b32 s54, s42
    s_mov_b32 s55, 0x00020000
    s_mov_b32 s56, 128
    s_lshl_b32 s57, s9, 13
    """)

def x_frag_addrs(a, vx, setoff):
    a(f"""
    v_lshrrev_b32 v5, 1, v3
    v_and_b32 v5, 7, v5
    s_lshl_b32 s10, s8, 6
    s_lshl_b32 s11, s9, 5
    s_add_u32 s10, s10, s11
    v_add_u32 v6, s10, v3
    v_lshlrev_b32 v6, 7, v6
    """)
    for ks in range(4):
        a(f"v_add_u32 v7, {2*ks}, v4")
        a(f"v_xor_b32 v7, v7, v5")
        a(f"v_lshl_add_u32 v{vx+ks}, v7, 4, v6")
        a(f"v_xor_b32 v{vx+4+ks}, 0x1000, v{vx+ks}")
        a(f"v_add_u32 v{vx+8+ks}, {setoff}, v{vx+ks}")
        a(f"v_add_u32 v{vx+12+ks}, {setoff}, v{vx+4+ks}")

def half_sum(a, v, t):
    a(f"v_mov_b32 v{t}, v{v}")
    a("s_nop 1")
    a(f"v_permlane32_swap_b32 v{v}, v{t}")
    a("s_nop 1")
    a(f"v_add_f32 v{v}, v{v}, v{t}")

def main_loop(a, nnt, VX, VW, FX, FW, ACC, VSUM, VSQ, VCS, stage_bytes, wrow_bytes):
    def reads(c, ks, buf):
        st = c % 4
        sset, sin = st // 2, st % 2
        for mt in range(2):
            a(f"ds_read_b128 {vr(FX + (buf*2+mt)*4, 4)}, v{VX + (sset*2+mt)*4 + ks} offset:{sin*stage_bytes}")
        for nt in range(nnt):
            for i in range(2):
                a(f"ds_read_b64_tr_b16 {vr(FW + (buf*nnt+nt)*4 + 2*i, 2)}, v{VW + sset*nnt + nt} offset:{sin*stage_bytes + (16*ks+4*i)*wrow_bytes}")
    nreads = 2 + 2*nnt
    for c in range(NCH):
        a("s_barrier")
        reads(c, 0, 0)
        for ks in range(4):
            buf = ks & 1
            if ks < 3:
                reads(c, ks+1, buf ^ 1)
                a(f"s_waitcnt lgkmcnt({nreads})")
            else:
                a("s_waitcnt lgkmcnt(0)")
            dots = []
            for r in range(4):
                x = FX + (buf*2+0)*4 + r
                dots.append(f"v_dot2_f32_bf16 v{VSUM}, v{x}, s60, v{VSUM}")
                dots.append(f"v_dot2_f32_bf16 v{VSQ}, v{x}, v{x}, v{VSQ}")
                for nt in range(nnt):
                    w = FW + (buf*nnt+nt)*4 + r
                    dots.append(f"v_dot2_f32_bf16 v{VCS+nt}, v{w}, s60, v{VCS+nt}")
            nm = 2*nnt
            per = (len(dots) + nm - 1) // nm
            m = 0
            for nt in range(nnt):
                for mt in range(2):
                    acc = ACC + (nt*2+mt)*16
                    cin = "0" if (c == 0 and ks == 0) else vr(acc, 16)
                    a(f"v_mfma_f32_32x32x16_bf16 {vr(acc,16)}, {vr(FW + (buf*nnt+nt)*4, 4)}, {vr(FX + (buf*2+mt)*4, 4)}, {cin}")
                    for d in dots[m*per:(m+1)*per]:
                        a(d)
                    m += 1

def stats_exchange(a, nnt, VSUM, VSQ, VCS, T, CS, RS, RSM, STATS):
    a("s_nop 2")
    half_sum(a, VSUM, T); half_sum(a, VSQ, T)
    for nt in range(nnt):
        half_sum(a, VCS+nt, T)
    assert VSQ == VSUM + 1 and VSUM % 2 == 0
    a(f"""
    s_lshl_b32 s10, s8, 6
    s_lshl_b32 s11, s9, 5
    s_add_u32 s10, s10, s11
    v_add_u32 v{T}, s10, v3
    v_lshlrev_b32 v{T}, 3, v{T}
    ds_write_b64 v{T}, {vr(VSUM,2)} offset:{STATS}
    s_mul_i32 s10, s7, {nnt*128}
    v_lshl_add_u32 v{T+1}, v3, 2, s10
    """)
    for nt in range(nnt):
        a(f"ds_write_b32 v{T+1}, v{VCS+nt} offset:{STATS + 1024 + nt*128}")
    a(f"""
    v_xor_b32 v{T+2}, 256, v{T}
    v_lshl_add_u32 v{T+1}, v4, 4, s10
    s_waitcnt lgkmcnt(0)
    s_barrier
    ds_read_b64 {vr(T+4,2)}, v{T} offset:{STATS}
    ds_read_b64 {vr(T+6,2)}, v{T+2} offset:{STATS}
    """)
    for nt in range(nnt):
        for aa in range(4):
            a(f"ds_read_b128 {vr(CS + nt*16 + aa*4, 4)}, v{T+1} offset:{STATS + 1024 + nt*128 + aa*32}")
    a(f"s_waitcnt lgkmcnt({4*nnt})")
    a(f"s_mov_b32 s10, {f32(1.0/640)}")
    for mt in range(2):
        s_, q_ = T+4+2*mt, T+5+2*mt
        a(f"""
        v_mul_f32 v{s_}, s10, v{s_}
        v_mul_f32 v{q_}, s10, v{q_}
        v_fma_f32 v{q_}, -v{s_}, v{s_}, v{q_}
        v_max_f32 v{q_}, 0, v{q_}
        v_add_f32 v{q_}, {f32(1e-5)}, v{q_}
        v_rsq_f32 v{RS+mt}, v{q_}
        s_nop 0
        v_mul_f32 v{RSM+mt}, v{RS+mt}, v{s_}
        """)
    a("s_waitcnt lgkmcnt(0)")

def gen_g1(a):
    for name, (ptr, off) in (("g1a_kernel", (P_AX, 0)), ("g1b_kernel", (P_WS, WS_XB))):
        kernel_header(a, name)
        a("s_cmp_ge_u32 s2, 256")
        a("s_cbranch_scc1 L_g1_exit")
        load_ptrs(a)
        a("s_waitcnt lgkmcnt(0)")
        srd(a, 40, ptr, off, 2048*1280)
        a("s_branch L_g1_body")
    a.label("L_g1_exit")
    a("s_endpgm")
    a.label("L_g1_body")
    STAGE = 32768
    STATS = 0
    tile_map16(a)
    a("s_cmp_lt_u32 s7, 4")
    a("s_cbranch_scc1 L_g1_compute")
    VA = 8
    a("s_sub_u32 s9, s7, 4")
    a("s_cmp_ge_u32 s9, 2")
    a("s_cbranch_scc1 L_g1_wload")
    x_loader_setup(a, VA)
    a("s_branch L_g1_load")
    a.label("L_g1_wload")
    a(f"""
    s_sub_u32 s9, s9, 2
    v_lshrrev_b32 v5, 4, v2
    v_and_b32 v4, 15, v2
    v_lshlrev_b32 v6, 2, v5
    v_sub_u32 v4, v4, v6
    v_and_b32 v4, 15, v4
    v_mul_u32_u24 v6, 3840, v5
    v_lshl_add_u32 v6, v4, 4, v6
    s_mul_i32 s10, s9, {32*3840}
    s_mul_i32 s11, s6, 240
    s_add_u32 s10, s10, s11
    """)
    for i in range(8):
        a(f"s_add_u32 s11, s10, {4*i*3840}")
        a(f"v_add_u32 v{VA+i}, s11, v6")
    srd(a, 52, P_WQKV, 0, 640*3840)
    m = (~((1 << 15) | (1 << 19) | (1 << 39) | (1 << 59))) & ((1 << 64) - 1)
    a(f"""
    s_mov_b32 s56, {64*3840}
    s_lshl_b32 s57, s9, 13
    s_add_u32 s57, s57, 16384
    s_mov_b32 exec_lo, 0x{m & 0xffffffff:08x}
    s_mov_b32 exec_hi, 0x{m >> 32:08x}
    """)
    a.label("L_g1_load")
    loader_loop(a, 8, VA, STAGE, 4, NCH, 1, 3)
    a.label("L_g1_compute")
    VX, VW, FX, FW, ACC = 8, 24, 32, 48, 64
    VSUM, VSQ, VCS = 28, 29, 30
    a("""
    s_lshr_b32 s8, s7, 1
    s_and_b32 s9, s7, 1
    v_and_b32 v3, 31, v2
    v_lshrrev_b32 v4, 5, v2
    s_mov_b32 s60, 0x3f803f80
    """)
    x_frag_addrs(a, VX, 65536)
    a(f"""
    v_lshrrev_b32 v5, 4, v2
    v_and_b32 v5, 1, v5
    v_and_b32 v6, 3, v2
    v_lshl_add_u32 v5, v5, 2, v6
    v_lshlrev_b32 v5, 2, v5
    v_bfe_u32 v6, v2, 2, 2
    v_lshl_add_u32 v7, v4, 3, v6
    v_lshlrev_b32 v7, 8, v7
    v_add_u32 v7, 16384, v7
    s_mul_i32 s10, s9, 120
    v_lshl_add_u32 v6, v6, 6, s10
    """)
    for nt, tab in enumerate((0x76453120, 0x8E79DBCA)):
        a(f"""
        s_mov_b32 s11, 0x{tab:08x}
        v_bfe_u32 v{VW+nt}, s11, v5, 4
        v_lshl_add_u32 v{VW+nt}, v{VW+nt}, 3, v6
        v_and_b32 v{VW+nt}, 255, v{VW+nt}
        v_add_u32 v{VW+nt}, v{VW+nt}, v7
        v_add_u32 v{VW+2+nt}, 65536, v{VW+nt}
        """)
    for r in (VSUM, VSQ, VCS, VCS+1):
        a(f"v_mov_b32 v{r}, 0")
    srd(a, 48, P_WS, WS_QKV, 96*98304)
    main_loop(a, 2, VX, VW, FX, FW, ACC, VSUM, VSQ, VCS, STAGE, 256)
    T, CS, RS, RSM = 8, 32, 16, 18
    stats_exchange(a, 2, VSUM, VSQ, VCS, T, CS, RS, RSM, STATS)
    a(f"""
    s_mul_i32 s10, s6, 6
    s_mul_i32 s11, s9, 3
    s_add_u32 s10, s10, s11
    s_mov_b32 s15, {f32(QSCALE)}
    """)
    for i in range(3):
        a(f"""
        s_add_u32 s11, s10, {i}
        s_mul_i32 s{61+i}, s11, 98304
        s_cmp_lt_u32 s11, 32
        s_cselect_b32 s{12+i}, s15, 1.0
        """)
    LO, HI = "s[64:65]", "s[66:67]"
    a(f"""
    s_mov_b32 s64, -1
    s_mov_b32 s65, 0
    s_mov_b32 s66, 0
    s_mov_b32 s67, -1
    v_mov_b32 v20, s13
    v_mov_b32 v21, s14
    v_mov_b32 v23, 98304
    v_mov_b32 v24, 32
    s_mov_b64 exec, {HI}
    v_mov_b32 v20, s12
    v_mov_b32 v21, s13
    v_mov_b32 v23, 32
    v_mov_b32 v24, 16
    s_mov_b64 exec, -1
    s_lshl_b32 s10, s5, 7
    s_lshl_b32 s11, s8, 6
    s_add_u32 s10, s10, s11
    s_lshl_b32 s11, s9, 5
    s_add_u32 s10, s10, s11
    v_add_u32 v25, s10, v3
    """)
    PK = 8
    for mt in range(2):
        if mt == 1:
            a("v_xor_b32 v25, 32, v25")
        a(f"""
        v_mul_u32_u24 v26, 48, v25
        v_lshl_add_u32 v22, v4, 4, v26
        v_add_u32 v27, v23, v26
        v_add_u32 v28, v24, v26
        """)
        def pos(nt, aa, rs, rsm, dst):
            acc = ACC + (nt*2+mt)*16 + aa*4
            for b in range(4):
                a(f"v_mul_f32 v{acc+b}, v{rs}, v{acc+b}")
                a(f"v_fma_f32 v{acc+b}, -v{rsm}, v{CS+nt*16+aa*4+b}, v{acc+b}")
            a(f"v_cvt_pk_bf16_f32 v{dst}, v{acc}, v{acc+1}")
            a(f"v_cvt_pk_bf16_f32 v{dst+1}, v{acc+2}, v{acc+3}")
        def scaled(sc):
            a(f"v_mul_f32 v29, {sc}, v{RS+mt}")
            a(f"v_mul_f32 v30, {sc}, v{RSM+mt}")
        scaled("s12"); pos(0, 0, 29, 30, PK); pos(0, 1, 29, 30, PK+2)
        a(f"buffer_store_dwordx4 {vr(PK,4)}, v22, s[48:51], s61 offen")
        scaled("s14"); pos(1, 0, 29, 30, PK+4); pos(1, 1, 29, 30, PK+6)
        a(f"buffer_store_dwordx4 {vr(PK+4,4)}, v22, s[48:51], s63 offen")
        scaled("v20"); pos(0, 2, 29, 30, PK)
        scaled("s13"); pos(0, 3, 29, 30, PK+2)
        a(f"""
        s_mov_b64 exec, {HI}
        v_mov_b32 v{PK+2}, 0x3f803f80
        v_mov_b32 v{PK+3}, 0x00003f80
        s_mov_b64 exec, -1
        buffer_store_dwordx4 {vr(PK,4)}, v27, s[48:51], s61 offen
        """)
        pos(1, 2, 29, 30, PK+4)
        scaled("v21"); pos(1, 3, 29, 30, PK+6)
        a(f"""
        s_nop 1
        s_mov_b64 exec, {LO}
        v_mov_b32 v{PK}, v{PK+6}
        v_mov_b32 v{PK+1}, v{PK+7}
        v_mov_b32 v{PK+2}, 0x3f803f80
        v_mov_b32 v{PK+3}, 0x00003f80
        v_mov_b32 v{PK+6}, 0x3f803f80
        v_mov_b32 v{PK+7}, 0x00003f80
        buffer_store_dwordx4 {vr(PK,4)}, v28, s[48:51], s63 offen
        s_mov_b64 exec, -1
        buffer_store_dwordx4 {vr(PK+4,4)}, v28, s[48:51], s62 offen
        s_nop 1
        """)
    a("s_endpgm")
    return [("g1a_kernel", 128), ("g1b_kernel", 128)]

def gen_g3(a):
    kernel_header(a, "g3_kernel")
    a("s_cmp_ge_u32 s2, 256")
    a("s_cbranch_scc1 L_g3_exit")
    load_ptrs(a)
    a("s_waitcnt lgkmcnt(0)")
    srd(a, 40, P_WS, WS_XA, 2048*1280)
    STAGE = 40960
    STATS = 0
    tile_map16(a)
    a("s_cmp_lt_u32 s7, 4")
    a("s_cbranch_scc1 L_g3_compute")
    VA = 8
    a("s_sub_u32 s9, s7, 4")
    a("s_cmp_ge_u32 s9, 2")
    a("s_cbranch_scc1 L_g3_wload")
    x_loader_setup(a, VA)
    loader_loop(a, 8, VA, STAGE, 4, NCH, 1, 3)
    a.label("L_g3_exit")
    a("s_endpgm")
    a.label("L_g3_wload")
    a(f"""
    s_sub_u32 s9, s9, 2
    s_cmp_eq_u32 s9, 0
    s_cselect_b32 s52, s{P_WG}, s{P_WU}
    s_cselect_b32 s53, s{P_WG+1}, s{P_WU+1}
    s_mov_b32 s54, {640*3072}
    s_mov_b32 s55, 0x00020000
    s_mov_b32 s56, {64*3072}
    s_mul_i32 s57, s9, 12288
    s_add_u32 s57, s57, 16384
    s_lshl_b32 s12, s9, 1
    s_mul_i32 s11, s6, 192
    s_mov_b32 s13, 43691
    """)
    for i in range(12):
        a(f"""
        v_add_u32 v3, {64*i}, v2
        v_mul_u32_u24 v4, s13, v3
        v_lshrrev_b32 v4, 19, v4
        v_mul_u32_u24 v5, 12, v4
        v_sub_u32 v5, v3, v5
        v_xor_b32 v5, s12, v5
        v_mul_u32_u24 v4, 3072, v4
        v_lshl_add_u32 v4, v5, 4, v4
        v_add_u32 v{VA+i}, s11, v4
        """)
    loader_loop(a, 12, VA, STAGE, 4, NCH, 1, 3)
    a.label("L_g3_compute")
    VX, VW, FX, FW, ACC = 8, 24, 36, 52, 80
    VSUM, VSQ, VCS = 30, 31, 32
    a("""
    s_lshr_b32 s8, s7, 1
    s_and_b32 s9, s7, 1
    v_and_b32 v3, 31, v2
    v_lshrrev_b32 v4, 5, v2
    s_mov_b32 s60, 0x3f803f80
    """)
    x_frag_addrs(a, VX, 2*STAGE)
    a(f"""
    v_bfe_u32 v5, v2, 4, 1
    v_bfe_u32 v6, v2, 2, 2
    v_lshl_add_u32 v6, v4, 3, v6
    v_mul_u32_u24 v6, 192, v6
    v_mul_u32_u24 v7, 12288, v5
    v_add_u32 v6, v6, v7
    v_and_b32 v7, 1, v2
    v_lshl_add_u32 v6, v7, 4, v6
    v_bfe_u32 v7, v2, 1, 1
    v_lshl_add_u32 v6, v7, 3, v6
    v_add_u32 v6, 16384, v6
    s_mul_i32 s10, s9, 3
    """)
    for nt in range(3):
        a(f"""
        s_add_u32 s11, s10, {nt}
        v_xor_b32 v7, s11, v5
        v_lshl_add_u32 v{VW+nt}, v7, 5, v6
        v_add_u32 v{VW+3+nt}, {2*STAGE}, v{VW+nt}
        """)
    for r in (VSUM, VSQ, VCS, VCS+1, VCS+2):
        a(f"v_mov_b32 v{r}, 0")
    srd(a, 48, P_WS, WS_H, 2048*3072)
    main_loop(a, 3, VX, VW, FX, FW, ACC, VSUM, VSQ, VCS, STAGE, 192)
    T, CS, RS, RSM = 8, 28, 16, 18
    a("s_nop 2")
    for k, r in enumerate((VSUM, VSQ, VCS, VCS+1, VCS+2)):
        a(f"v_mov_b32 v{20+k}, v{r}")
    stats_exchange(a, 3, 20, 21, 22, T, CS, RS, RSM, STATS)
    a(f"""
    s_lshl_b32 s10, s5, 7
    s_lshl_b32 s11, s8, 6
    s_add_u32 s10, s10, s11
    s_lshl_b32 s11, s9, 5
    s_add_u32 s10, s10, s11
    v_add_u32 v25, s10, v3
    s_mul_i32 s10, s6, 6
    s_mul_i32 s11, s9, 3
    s_add_u32 s10, s10, s11
    s_lshl_b32 s61, s10, 9
    """)
    PK = 8
    for mt in range(2):
        if mt == 1:
            a("v_xor_b32 v25, 32, v25")
        a(f"""
        v_lshrrev_b32 v26, 4, v25
        v_mul_u32_u24 v26, 49152, v26
        v_and_b32 v27, 15, v25
        v_lshl_add_u32 v26, v27, 4, v26
        v_lshl_add_u32 v26, v4, 8, v26
        """)
        for nt in range(3):
            acc = ACC + (nt*2+mt)*16
            dst = PK + (nt & 1)*4
            for r in range(16):
                a(f"v_mul_f32 v{acc+r}, v{RS+mt}, v{acc+r}")
                a(f"v_fma_f32 v{acc+r}, -v{RSM+mt}, v{CS+nt*16+r}, v{acc+r}")
            for r in range(8):
                a(f"v_max_f32 v{acc+r}, 0, v{acc+r}")
                a(f"v_mul_f32 v{acc+r}, v{acc+r}, v{acc+8+r}")
            for r in range(4):
                a(f"v_cvt_pk_bf16_f32 v{dst+r}, v{acc+2*r}, v{acc+2*r+1}")
            a(f"buffer_store_dwordx4 {vr(dst,4)}, v26, s[48:51], s61 offen offset:{nt*512}")
    a("s_endpgm")
    return [("g3_kernel", 176)]
```

```python
from asmlib import *
from layout import *

STAGE = 18560
NST = 8
DIST = 7

def gen_g24(a, tag, nch, entries, wptr, ksteps_total, xoff):
    L = f"L_{tag}"
    for name, (rp, ro), (op, oo) in entries:
        kernel_header(a, name)
        a("s_cmp_ge_u32 s2, 256")
        a(f"s_cbranch_scc1 {L}_exit")
        load_ptrs(a)
        a("s_waitcnt lgkmcnt(0)")
        srd(a, 40, rp, ro, 2048*1280)
        srd(a, 48, op, oo, 2048*1280)
        a(f"s_branch {L}_body")
    a.label(f"{L}_exit")
    a("s_endpgm")
    a.label(f"{L}_body")
    a("""
    s_and_b32 s3, s2, 7
    s_lshr_b32 s4, s2, 3
    s_and_b32 s5, s3, 3
    s_lshl_b32 s5, s5, 3
    s_and_b32 s8, s4, 7
    s_add_u32 s5, s5, s8
    s_lshr_b32 s6, s3, 2
    s_lshl_b32 s6, s6, 2
    s_lshr_b32 s8, s4, 3
    s_add_u32 s6, s6, s8
    v_lshrrev_b32 v1, 6, v0
    v_and_b32 v2, 63, v0
    s_nop 0
    v_readfirstlane_b32 s7, v1
    s_cmp_lt_u32 s7, 4
    """)
    a(f"s_cbranch_scc1 {L}_compute")
    a("s_sub_u32 s9, s7, 4")
    a("s_cmp_ge_u32 s9, 2")
    a(f"s_cbranch_scc1 {L}_xload")
    VA = 8
    srd(a, 52, wptr, 0, ksteps_total*32*1280)
    a(f"""
    s_mul_i32 s57, s9, 5248
    s_add_u32 s57, s57, 8192
    s_mul_i32 s11, s6, 160
    s_mov_b32 s13, 52429
    s_lshl_b32 s12, s9, 3
    """)
    for i in range(5):
        a(f"""
        v_add_u32 v3, {64*i}, v2
        v_mul_u32_u24 v4, s13, v3
        v_lshrrev_b32 v4, 19, v4
        v_mul_u32_u24 v5, 10, v4
        v_sub_u32 v5, v3, v5
        v_lshl_add_u32 v5, v5, 4, s11
        v_lshrrev_b32 v6, 3, v4
        v_and_b32 v7, 7, v4
        """)
        if tag == "g4":
            a(f"""
            v_lshl_add_u32 v7, v6, 4, v7
            v_add_u32 v7, s12, v7
            v_mul_u32_u24 v7, 1280, v7
            v_add_u32 v{VA+i}, v7, v5
            """)
        else:
            a(f"""
            v_mul_u32_u24 v20, 20, v6
            v_lshrrev_b32 v21, 2, v7
            v_lshl_add_u32 v20, v21, 3, v20
            v_and_b32 v22, 3, v7
            v_add_u32 v20, v20, v22
            s_lshl_b32 s14, s9, 2
            v_add_u32 v20, s14, v20
            v_mul_u32_u24 v20, 1280, v20
            v_add_u32 v{VA+i}, v20, v5
            v_lshl_add_u32 v7, v6, 4, v7
            v_add_u32 v7, s12, v7
            v_lshrrev_b32 v21, 2, v7
            v_mul_u32_u24 v21, 20, v21
            v_add_u32 v21, v21, v22
            v_add_u32 v21, 16, v21
            v_mul_u32_u24 v21, 1280, v21
            v_add_u32 v{VA+5+i}, v21, v5
            """)
    def w_issue(c):
        if tag == "g4":
            va, so = VA, c * 64 * 1280
        else:
            if c < 8: va, so = VA, c * 80 * 1280
            else: va, so = VA + 5, (c - 8) * 320 * 1280
        a(f"s_mov_b32 s58, {so}")
        for i in range(5):
            a(f"s_add_u32 m0, s57, {(c % NST) * STAGE + i * 1024}")
            a("s_nop 0")
            a(f"buffer_load_dwordx4 v{va+i}, s[52:55], s58 offen lds")
    def lloop(issue, n):
        d = min(DIST, nch)
        for c in range(d):
            issue(c)
        for c in range(nch):
            after = min(d - 1, nch - 1 - c)
            a(f"s_waitcnt vmcnt({n * after})")
            a("s_barrier")
            if c + d < nch:
                issue(c + d)
        a("s_endpgm")
    lloop(w_issue, 5)
    a.label(f"{L}_xload")
    srd(a, 52, P_WS, xoff, 128*ksteps_total*1024)
    a(f"""
    s_sub_u32 s9, s9, 2
    s_lshl_b32 s57, s9, 12
    s_lshl_b32 s10, s5, 2
    s_lshl_b32 s11, s9, 1
    s_add_u32 s10, s10, s11
    s_mul_i32 s10, s10, {ksteps_total*1024}
    v_lshlrev_b32 v3, 4, v2
    v_add_u32 v{VA}, s10, v3
    v_add_u32 v{VA+1}, 1024, v{VA}
    v_add_u32 v{VA+2}, {ksteps_total*1024}, v{VA}
    v_add_u32 v{VA+3}, 1024, v{VA+2}
    """)
    def x_issue(c):
        a(f"s_mov_b32 s58, {c*2048}")
        for i in range(4):
            a(f"s_add_u32 m0, s57, {(c % NST) * STAGE + i * 1024}")
            a("s_nop 0")
            a(f"buffer_load_dwordx4 v{VA+i}, s[52:55], s58 offen lds")
    lloop(x_issue, 4)
    a.label(f"{L}_compute")
    VXA, VWA, VO = 4, 6, 8
    RES, FX, FW, ACC = 10, 20, 28, 68
    a(f"""
    s_lshl_b32 s10, s7, 11
    v_lshl_add_u32 v{VXA}, v2, 4, s10
    v_add_u32 v{VXA+1}, {4*STAGE}, v{VXA}
    v_bfe_u32 v3, v2, 4, 1
    v_mul_u32_u24 v3, 5248, v3
    v_lshrrev_b32 v9, 5, v2
    v_bfe_u32 v1, v2, 2, 2
    v_lshl_add_u32 v9, v9, 3, v1
    v_mul_u32_u24 v9, 160, v9
    v_add_u32 v3, v3, v9
    v_and_b32 v9, 3, v2
    v_lshl_add_u32 v3, v9, 3, v3
    v_add_u32 v{VWA}, 8192, v3
    v_add_u32 v{VWA+1}, {4*STAGE}, v{VWA}
    s_lshl_b32 s10, s5, 6
    s_lshl_b32 s11, s7, 4
    s_add_u32 s10, s10, s11
    v_and_b32 v3, 15, v2
    v_add_u32 v3, s10, v3
    v_mul_u32_u24 v3, 1280, v3
    v_lshrrev_b32 v9, 4, v2
    v_lshl_add_u32 v3, v9, 3, v3
    s_mul_i32 s11, s6, 160
    v_add_u32 v{VO}, s11, v3
    """)
    for j in range(5):
        a(f"buffer_load_dwordx2 {vr(RES+2*j,2)}, v{VO}, s[40:43], 0 offen offset:{32*j}")
    def reads(c, ks, buf):
        st = c % NST
        sset, sin = st // 4, st % 4
        a(f"ds_read_b128 {vr(FX+buf*4,4)}, v{VXA+sset} offset:{sin*STAGE + ks*1024}")
        for j in range(5):
            for i in range(2):
                a(f"ds_read_b64_tr_b16 {vr(FW+(buf*5+j)*4+2*i,2)}, v{VWA+sset} offset:{sin*STAGE + (16*ks+4*i)*160 + 32*j}")
    for c in range(nch):
        a("s_barrier")
        reads(c, 0, 0)
        reads(c, 1, 1)
        for ks in range(2):
            for j in range(5):
                left = (11 if ks == 0 else 0) + 2*(4-j)
                a(f"s_waitcnt lgkmcnt({min(left,15)})")
                cin = "0" if (c == 0 and ks == 0) else vr(ACC+4*j, 4)
                a(f"v_mfma_f32_16x16x32_bf16 {vr(ACC+4*j,4)}, {vr(FW+(ks*5+j)*4,4)}, {vr(FX+ks*4,4)}, {cin}")
    a("s_waitcnt vmcnt(0)")
    a("s_nop 7")
    for j in range(5):
        t = FX
        a(f"""
        v_lshlrev_b32 v{t}, 16, v{RES+2*j}
        v_and_b32 v{t+1}, 0xffff0000, v{RES+2*j}
        v_lshlrev_b32 v{t+2}, 16, v{RES+2*j+1}
        v_and_b32 v{t+3}, 0xffff0000, v{RES+2*j+1}
        v_add_f32 v{t}, v{t}, v{ACC+4*j}
        v_add_f32 v{t+1}, v{t+1}, v{ACC+4*j+1}
        v_add_f32 v{t+2}, v{t+2}, v{ACC+4*j+2}
        v_add_f32 v{t+3}, v{t+3}, v{ACC+4*j+3}
        v_cvt_pk_bf16_f32 v{RES+2*j}, v{t}, v{t+1}
        v_cvt_pk_bf16_f32 v{RES+2*j+1}, v{t+2}, v{t+3}
        buffer_store_dwordx2 {vr(RES+2*j,2)}, v{VO}, s[48:51], 0 offen offset:{32*j}
        """)
    a("s_endpgm")
    return [(e[0], 88) for e in entries]

def gen_g2(a):
    return gen_g24(a, "g2", 10, [("g2a_kernel", (P_AX, 0), (P_WS, WS_XA)), ("g2b_kernel", (P_WS, WS_XB), (P_WS, WS_XA))], P_WO, 20, WS_O)
def gen_g4(a):
    return gen_g24(a, "g4", 24, [("g4a_kernel", (P_WS, WS_XA), (P_WS, WS_XB)), ("g4b_kernel", (P_WS, WS_XA), (P_OUT, 0))], P_WD, 48, WS_H)
```

```python
WS_XA  = 0x0000000
WS_XB  = 0x0300000
WS_QKV = 0x0600000
WS_O   = 0x1000000
WS_H   = 0x1400000
def o_slot_to_col():
    r = []
    for s in range(640):
        if s < 512:
            head = s // 16; h = (s // 8) % 2; i = s % 8
            r.append(20*head + 8*(i//4) + 4*h + i % 4)
        else:
            t = s - 512
            r.append(20*(t//4) + 16 + t % 4)
    return r
```

```python
import sys
sys.path.insert(0, "gen")
from asmlib import *
import g13, g24, att

def build(extra_launches=0):
    a = Asm()
    launches = [("g1a_kernel", 512, 131072), ("att_kernel", 512, att.FLAG + 64), ("g2a_kernel", 512, g24.STAGE*g24.NST), ("g3_kernel", 512, 163840), ("g4a_kernel", 512, g24.STAGE*g24.NST),
                ("g1b_kernel", 512, 131072), ("att_kernel", 512, att.FLAG + 64), ("g2b_kernel", 512, g24.STAGE*g24.NST), ("g3_kernel", 512, 163840), ("g4b_kernel", 512, g24.STAGE*g24.NST)]
    hdr = open("interleave_layers__mha_block__glu_gated_reglu__prompt.s.ref").read().split("\n")
    head = [l for l in hdr if l.startswith(";") and "@launch" not in l and "Override" not in l and "grid=ceil" not in l]
    out = head[:11]
    for k, b, lds in launches:
        out.append(f"; @launch kernel={k} grid=(256,1,1) block=({b},1,1) lds={lds}")
    for _ in range(extra_launches):
        out.append(f"; @launch kernel=nop_kernel grid=(256,1,1) block=(256,1,1) lds=0")
    out.append('.amdgcn_target "amdgcn-amd-amdhsa--gfx950"')
    out.append(".text")
    ks = []
    ks += g13.gen_g1(a)
    ks += att.gen_att(a)
    ks += g24.gen_g2(a)
    ks += g13.gen_g3(a)
    ks += g24.gen_g4(a)
    if extra_launches:
        kernel_header(a, "nop_kernel"); a("s_endpgm"); ks.append(("nop_kernel", 8))
    txt = "\n".join(out) + "\n" + a.text() + '.section .rodata,"a"\n'
    for k, v in ks:
        txt += kernel_desc(k, v)
    return txt

if __name__ == "__main__":
    dst = sys.argv[1] if len(sys.argv) > 1 else "interleave_layers__mha_block__glu_gated_reglu__prompt.s"
    extra = int(sys.argv[2]) if len(sys.argv) > 2 else 0
    open(dst, "w").write(build(extra))
    print("wrote", dst)
```

```python
import os
NOLOAD = int(os.environ.get('NOLOAD', 0))
NOCOMP = int(os.environ.get('NOCOMP', 0))
NOMFMA = int(os.environ.get('NOMFMA', 0))
class Asm:
    def __init__(self):
        self.lines = []
        self.uid = 0
        self.gemm = False
    def __call__(self, s):
        for l in s.strip("\n").split("\n"):
            l = l.strip()
            if NOLOAD and self.gemm and l.endswith(" lds"): continue
            if NOCOMP and self.gemm and (l.startswith("v_mfma") or l.startswith("ds_read")): continue
            if NOMFMA and self.gemm and l.startswith("v_mfma"): continue
            self.lines.append("    " + l)
    def label(self, l):
        self.lines.append(l + ":")
    def raw(self, s):
        self.lines.append(s)
    def newlabel(self, base):
        self.uid += 1
        return f"L_{base}_{self.uid}"
    def text(self):
        return "\n".join(self.lines) + "\n"

def vr(b, n=1):
    return f"v{b}" if n == 1 else f"v[{b}:{b+n-1}]"
def sr(b, n=1):
    return f"s{b}" if n == 1 else f"s[{b}:{b+n-1}]"

def kernel_header(a, name):
    a.raw(f".globl {name}")
    a.raw(".p2align 8")
    a.raw(f".type {name},@function")
    a.label(name)

def kernel_desc(name, vgpr, sgpr=96, accum=None):
    if accum is None:
        accum = (vgpr + 3) // 4 * 4
    return f""".p2align 6
.amdhsa_kernel {name}
  .amdhsa_next_free_vgpr {vgpr}
  .amdhsa_next_free_sgpr {sgpr}
  .amdhsa_accum_offset {accum}
  .amdhsa_group_segment_fixed_size 0
  .amdhsa_kernarg_size 80
  .amdhsa_user_sgpr_count 2
  .amdhsa_user_sgpr_kernarg_segment_ptr 1
  .amdhsa_system_sgpr_workgroup_id_x 1
.end_amdhsa_kernel
"""

P_AX, P_WQKV, P_WO, P_BX, P_WG, P_WU, P_WD, P_OUT, P_DBG, P_WS = 16, 18, 20, 22, 24, 26, 28, 30, 32, 34

def load_ptrs(a):
    a("s_load_dwordx16 s[16:31], s[0:1], 0")
    a("s_load_dwordx4 s[32:35], s[0:1], 64")

def srd(a, d, ptr, off, nbytes):
    if off:
        a(f"s_add_u32 s{d}, s{ptr}, {off}")
        a(f"s_addc_u32 s{d+1}, s{ptr+1}, 0")
    else:
        a(f"s_mov_b32 s{d}, s{ptr}")
        a(f"s_mov_b32 s{d+1}, s{ptr+1}")
    a(f"s_mov_b32 s{d+2}, {nbytes}")
    a(f"s_mov_b32 s{d+3}, 0x00020000")

STAMPS = False
from layout import WS_STAMP
def stamp(a, k):
    if STAMPS:
        a(f"s_memtime s[{72+2*k}:{73+2*k}]")
def stamp_rt(a, k):
    if STAMPS:
        a(f"s_memrealtime s[{72+2*k}:{73+2*k}]")
def stamp_flush(a, kid, n, wave_sgpr="s7"):
    if not STAMPS: return
    a("s_waitcnt vmcnt(0) lgkmcnt(0)")
    stamp(a, n-2)
    stamp_rt(a, n-1)
    a("s_mov_b64 exec, -1")
    srd(a, 68, P_WS, WS_STAMP, 0x1000000)
    a(f"s_add_u32 s10, s2, {kid*256}")
    a(f"s_lshl_b32 s10, s10, 4")
    a(f"s_add_u32 s10, s10, {wave_sgpr}")
    a(f"s_lshl_b32 s10, s10, 6")
    a("s_waitcnt lgkmcnt(0)")
    for k in range(n):
        a(f"v_mov_b32 v1, s{72+2*k}")
        a(f"buffer_store_dword v1, off, s[68:71], s10 offset:{4*k}")

PF = int(os.environ.get('PF', 1))
def l2_prefetch(a, srd_reg, ws_off, half_bytes, nslice_log2, slice_sgpr, vtmp, vdst, stmp, xcd_half_sgpr, gran=64):
    if not PF: return
    nslice = 1 << nslice_log2
    per = (half_bytes + nslice - 1) // nslice
    per = (per + 64*gran - 1) // (64*gran) * (64*gran)
    srd(a, srd_reg, P_WS, ws_off, 2*half_bytes)
    a(f"s_mul_i32 s{stmp}, s{xcd_half_sgpr}, {half_bytes}")
    a(f"s_mul_i32 s{stmp+1}, s{slice_sgpr}, {per}")
    a(f"s_add_u32 s{stmp}, s{stmp}, s{stmp+1}")
    a(f"v_mul_u32_u24 v{vtmp}, {gran}, v2")
    for i in range(per // (64*gran)):
        a(f"buffer_load_dword v{vdst}, v{vtmp}, s[{srd_reg}:{srd_reg+3}], s{stmp} offen")
        a(f"s_add_u32 s{stmp}, s{stmp}, {64*gran}")
```

```python
from asmlib import *
from layout import *

HSTG = 24576
STG = 2 * HSTG
NSTG = 3
FLAG = NSTG * STG
LDS_BYTES = FLAG + 64
import os
PRIO = int(os.environ.get('APRIO', 1))

def gen_att(a):
    kernel_header(a, "att_kernel")
    a("s_cmp_ge_u32 s2, 256")
    a("s_cbranch_scc1 L_att_exit")
    load_ptrs(a)
    VDMA, VKM0, VKT0, VV0, VKM, VKT, VV = 5, 6, 7, 8, 10, 11, 12
    QM, QT = 16, 20
    KM, KT = 24, 32
    VF = 36
    P = 44
    O = 52
    S = 68
    T = 100
    a(f"""
    s_and_b32 s3, s2, 7
    s_lshl_b32 s5, s3, 2
    s_bfe_u32 s4, s2, 0x20003
    s_add_u32 s5, s5, s4
    s_lshr_b32 s6, s2, 5
    v_lshrrev_b32 v1, 6, v0
    v_and_b32 v2, 63, v0
    v_and_b32 v3, 31, v0
    v_readfirstlane_b32 s7, v1
    v_lshrrev_b32 v4, 5, v2
    v_lshlrev_b32 v14, 2, v4
    v_xor_b32 v14, v14, v3
    v_lshlrev_b32 v14, 4, v14
    v_lshl_add_u32 v{VKM0}, v4, 9, v14
    v_xor_b32 v14, 8, v3
    v_lshlrev_b32 v14, 4, v14
    v_lshl_add_u32 v14, v4, 3, v14
    v_add_u32 v{VKT0}, 1024, v14
    v_bfe_u32 v15, v2, 4, 1
    v_and_b32 v{T}, 3, v2
    v_lshlrev_b32 v{T+1}, 1, v15
    v_sub_u32 v{T+1}, 3, v{T+1}
    v_and_b32 v{T}, v{T}, v{T+1}
    v_lshl_add_u32 v{T}, v15, 2, v{T}
    v_lshrrev_b32 v{T+1}, 1, v{T}
    v_and_b32 v{T}, 1, v{T}
    v_bfe_u32 v14, v2, 2, 2
    v_lshl_add_u32 v14, v4, 2, v14
    v_lshlrev_b32 v{T+2}, 2, v{T+1}
    v_xor_b32 v14, v14, v{T+2}
    v_lshlrev_b32 v14, 4, v14
    v_lshl_add_u32 v14, v{T+1}, 9, v14
    v_lshl_add_u32 v14, v{T}, 3, v14
    v_add_u32 v{VV0}, 12288, v14
    v_xor_b32 v{VV0+1}, 128, v{VV0}
    s_and_b32 s8, s7, 7
    s_lshr_b32 s9, s7, 3
    s_mul_i32 s59, s9, {HSTG}
    s_bfe_u32 s10, s7, 0x10002
    s_lshl_b32 s10, s10, 5
    s_add_u32 s10, s10, 32
    s_add_u32 s10, s10, s5
    s_mul_i32 s10, s10, 98304
    s_mul_i32 s11, s9, 49152
    s_add_u32 s10, s10, s11
    s_and_b32 s11, s7, 3
    s_mul_i32 s11, s11, 3072
    s_add_u32 s10, s10, s11
    v_lshl_add_u32 v{VDMA}, v2, 4, s10
    s_mul_i32 s53, s7, 3072
    s_lshl_b32 s10, s6, 3
    s_add_u32 s10, s10, s8
    s_lshl_b32 s54, s10, 5
    s_mul_i32 s10, s10, 1536
    s_mul_i32 s11, s5, 98304
    s_add_u32 s55, s10, s11
    s_mov_b32 s64, -1
    s_mov_b32 s65, 0
    s_mov_b32 s66, 0
    s_mov_b32 s67, -1
    s_mov_b32 s56, 0
    v_mov_b32 v{T}, 0
    v_mov_b32 v{T+1}, {FLAG}
    ds_write_b32 v{T+1}, v{T}
    s_waitcnt lgkmcnt(0)
    """)
    stamp(a, 0); stamp_rt(a, 1)
    srd(a, 40, P_WS, WS_QKV, 96*98304)
    srd(a, 48, P_WS, WS_O, 2048*1280)
    def dma(c):
        a(f"s_mov_b32 s57, {c*12288}")
        a(f"s_add_u32 m0, s53, {(c % NSTG)*STG}")
        a("s_nop 0")
        for i in range(3):
            a(f"buffer_load_dwordx4 v{VDMA}, s[40:43], s57 offen offset:{i*1024} lds")
    a(f"""
    buffer_load_dwordx4 {vr(QM,4)}, v{VKM0}, s[40:43], s55 offen
    buffer_load_dwordx2 {vr(QT,2)}, v{VKT0}, s[40:43], s55 offen
    """)
    a.label("L_att_restart")
    a("s_bitcmp1_b32 s7, 1")
    a("s_cbranch_scc1 L_att_late")
    dma(0)
    a.label("L_att_late")
    for r in range(16):
        a(f"v_mov_b32 v{O+r}, 0")
    for r in range(4):
        a(f"v_mov_b32 v{P+4+r}, 0")
        a(f"v_mov_b32 v{VF+4+r}, 0")
    a(f"v_mov_b32 v{S+16+14}, 0")
    a(f"v_mov_b32 v{S+16+15}, 0")
    a(f"""
    v_add_u32 v{VKM}, s59, v{VKM0}
    v_add_u32 v{VKT}, s59, v{VKT0}
    s_mov_b32 s52, 0
    s_mov_b32 s58, s59
    s_mov_b32 s60, 12288
    s_add_u32 s61, s53, {STG}
    s_waitcnt vmcnt(0)
    """)
    stamp(a, 5)
    a(f"""
    s_barrier
    s_bitcmp0_b32 s7, 1
    s_cbranch_scc1 L_att_early
    """)
    dma(0)
    a.label("L_att_early")
    a(f"""
    s_cmp_lg_u32 s56, 0
    s_cbranch_scc1 L_att_have_m
    ds_read_b128 {vr(KM,4)}, v{VKM0}
    ds_read_b64 {vr(KT,2)}, v{VKT0}
    s_mov_b64 exec, s[66:67]
    v_mov_b32 v{QT}, 0
    v_mov_b32 v{QT+1}, 0
    s_mov_b64 exec, -1
    s_waitcnt lgkmcnt(0)
    s_nop 1
    v_mfma_f32_32x32x16_bf16 {vr(S,16)}, {vr(KM,4)}, {vr(QM,4)}, 0
    v_mfma_f32_32x32x8_bf16 {vr(S,16)}, {vr(KT,2)}, {vr(QT,2)}, {vr(S,16)}
    s_nop 15
    v_max3_f32 v{T}, v{S}, v{S+1}, v{S+2}
    """)
    for r in range(3, 15, 2):
        a(f"v_max3_f32 v{T}, v{T}, v{S+r}, v{S+r+1}")
    a(f"v_max_f32 v{T}, v{T}, v{S+15}")
    a.label("L_att_set_m")
    a(f"""
    v_mov_b32 v{T+1}, v{T}
    s_nop 1
    v_permlane32_swap_b32 v{T}, v{T+1}
    s_nop 1
    v_max_f32 v{T}, v{T}, v{T+1}
    v_xor_b32 v{T}, 0x80000000, v{T}
    v_and_b32 v{T+1}, 0xffff0000, v{T}
    v_sub_f32 v{T}, v{T}, v{T+1}
    v_and_b32 v{T+2}, 0xffff0000, v{T}
    v_sub_f32 v{T}, v{T}, v{T+2}
    v_lshrrev_b32 v{T+1}, 16, v{T+1}
    s_mov_b64 exec, s[66:67]
    v_or_b32 v{QT}, v{T+1}, v{T+2}
    v_lshrrev_b32 v{QT+1}, 16, v{T}
    s_mov_b64 exec, -1
    s_cmp_lg_u32 s56, 0
    s_cbranch_scc1 L_att_restart
    """)
    a.label("L_att_have_m")
    a(f"""
    ds_read_b128 {vr(KM,4)}, v{VKM}
    ds_read_b64 {vr(KT,2)}, v{VKT}
    ds_read_b128 {vr(KM+4,4)}, v{VKM} offset:1536
    ds_read_b64 {vr(KT+2,2)}, v{VKT} offset:1536
    s_waitcnt lgkmcnt(2)
    v_mfma_f32_32x32x16_bf16 {vr(S,16)}, {vr(KM,4)}, {vr(QM,4)}, 0
    v_mfma_f32_32x32x8_bf16 {vr(S,16)}, {vr(KT,2)}, {vr(QT,2)}, {vr(S,16)}
    s_nop 15
    """)
    stamp(a, 2)
    a.raw(".p2align 6")
    a.label("L_att_loop")
    for t in range(8):
        Sc = S + (t & 1)*16
        Sn = S + ((t+1) & 1)*16
        kb_use = (t+1) & 1
        kb_ld = t & 1
        e = lambda i: a(f"v_exp_f32 v{Sc+i}, v{Sc+i}")
        c = lambda i: a(f"v_cvt_pk_bf16_f32 v{P+i}, v{Sc+2*i}, v{Sc+2*i+1}")
        if PRIO and t % 2 == 0 and t != 6:
            a(f"s_setprio {2 - t//2}")
        e(0)
        a(f"v_cvt_pk_bf16_f32 v{P+7}, v{Sn+14}, v{Sn+15}")
        if t == 0:
            a(f"v_add_u32 v{VV}, s58, v{VV0}")
            a(f"v_add_u32 v{VV+1}, s58, v{VV0+1}")
        e(1)
        a("s_waitcnt lgkmcnt(2)")
        a(f"v_mfma_f32_32x32x16_bf16 {vr(O,16)}, {vr(VF+4,4)}, {vr(P+4,4)}, {vr(O,16)}")
        if t == 6:
            lab = a.newlabel("nodma")
            a(f"""
            s_add_u32 s58, s58, {STG}
            s_cmp_ge_u32 s58, {NSTG*STG}
            s_cselect_b32 s58, s59, s58
            v_add_u32 v{VKM}, s58, v{VKM0}
            v_add_u32 v{VKT}, s58, v{VKT0}
            s_waitcnt vmcnt(0)
            s_barrier
            s_add_u32 s60, s60, 12288
            s_add_u32 s61, s61, {STG}
            s_cmp_ge_u32 s61, {NSTG*STG}
            s_cselect_b32 s61, s53, s61
            """)
            lab2 = a.newlabel("nopf")
            a(f"""
            s_cmp_lg_u32 s52, 2
            s_cbranch_scc1 {lab2}
            s_lshr_b32 s12, s2, 3
            s_lshl_b32 s12, s12, 4
            s_add_u32 s12, s12, s7
            s_lshr_b32 s13, s3, 2
            """)
            l2_prefetch(a, 44, WS_WT2, WT2_BYTES//2, 9, 12, T+4, T+5, 14, 13)
            l2_prefetch(a, 44, WS_WT3, WT3_BYTES//2, 9, 12, T+4, T+5, 14, 13)
            a.label(lab2)
            if PRIO: a("s_setprio 3")
        if t == 2:
            lab = a.newlabel("nobar")
            a(f"""
            s_cmp_lg_u32 s52, 0
            s_cbranch_scc1 {lab}
            s_waitcnt vmcnt(2)
            s_barrier
            """)
            a.label(lab)
        if t < 3:
            lab = a.newlabel("nodma")
            a(f"""
            s_cmp_eq_u32 s52, 3
            s_cbranch_scc1 {lab}
            s_mov_b32 m0, s61
            s_nop 0
            buffer_load_dwordx4 v{VDMA}, s[40:43], s60 offen offset:{t*1024} lds
            """)
            a.label(lab)
        for j in range(2):
            for i in range(2):
                a(f"ds_read_b64_tr_b16 {vr(VF+4*j+2*i,2)}, v{VV+i} offset:{t*1536 + j*256}")
        kt = (t+2) % 8
        a(f"ds_read_b128 {vr(KM+4*kb_ld,4)}, v{VKM} offset:{kt*1536}")
        a(f"ds_read_b64 {vr(KT+2*kb_ld,2)}, v{VKT} offset:{kt*1536}")
        e(2); c(0); e(3); e(4); c(1)
        a("s_waitcnt lgkmcnt(6)")
        a(f"v_mfma_f32_32x32x16_bf16 {vr(Sn,16)}, {vr(KM+4*kb_use,4)}, {vr(QM,4)}, 0")
        e(5); e(6); c(2); e(7); e(8); c(3)
        a(f"v_mfma_f32_32x32x8_bf16 {vr(Sn,16)}, {vr(KT+2*kb_use,2)}, {vr(QT,2)}, {vr(Sn,16)}")
        e(9); e(10); c(4); e(11)
        a("s_waitcnt lgkmcnt(4)")
        a(f"v_mfma_f32_32x32x16_bf16 {vr(O,16)}, {vr(VF,4)}, {vr(P,4)}, {vr(O,16)}")
        e(12); c(5); e(13); e(14); c(6); e(15)
    a("""
    s_add_u32 s52, s52, 1
    s_cmp_lt_u32 s52, 4
    s_cbranch_scc1 L_att_loop
    """)
    stamp(a, 3)
    a(f"""
    s_nop 0
    v_cvt_pk_bf16_f32 v{P+7}, v{S+16+14}, v{S+16+15}
    s_waitcnt lgkmcnt(0)
    s_nop 1
    v_mfma_f32_32x32x16_bf16 {vr(O,16)}, {vr(VF+4,4)}, {vr(P+4,4)}, {vr(O,16)}
    s_mul_i32 s10, s8, 3072
    s_add_u32 s10, s10, {STG}
    v_lshl_add_u32 v{T+3}, v2, 4, s10
    v_add_u32 v13, s54, v3
    v_lshrrev_b32 v14, 4, v13
    v_mul_u32_u24 v14, 20480, v14
    v_and_b32 v13, 15, v13
    v_lshl_add_u32 v14, v13, 4, v14
    v_lshl_add_u32 v15, v4, 8, v14
    s_lshl_b32 s10, s5, 9
    s_lshr_b32 s11, s5, 1
    s_lshl_b32 s11, s11, 8
    s_and_b32 s12, s5, 1
    s_lshl_b32 s12, s12, 3
    s_add_u32 s11, s11, s12
    s_add_u32 s11, s11, 16384
    s_nop 4
    s_cmp_eq_u32 s9, 0
    s_cbranch_scc1 L_att_lower
    ds_write_b128 v{T+3}, {vr(O,4)}
    ds_write_b128 v{T+3}, {vr(O+4,4)} offset:1024
    ds_write_b128 v{T+3}, {vr(O+8,4)} offset:2048
    s_waitcnt lgkmcnt(0)
    s_barrier
    s_branch L_att_join
    """)
    a.label("L_att_lower")
    a(f"""
    s_barrier
    ds_read_b128 {vr(S,4)}, v{T+3}
    ds_read_b128 {vr(S+4,4)}, v{T+3} offset:1024
    ds_read_b128 {vr(S+8,4)}, v{T+3} offset:2048
    s_waitcnt lgkmcnt(0)
    """)
    for r in range(0, 12, 2):
        a(f"v_pk_add_f32 {vr(O+r,2)}, {vr(O+r,2)}, {vr(S+r,2)}")
    a(f"""
    v_mov_b32 v{T}, v{O+8}
    v_mov_b32 v{T+1}, v{O+8}
    v_mul_f32 v{T+2}, 0, v{O}
    s_nop 0
    v_permlane32_swap_b32 v{T}, v{T+1}
    """)
    for r in range(1, 12):
        a(f"v_fma_f32 v{T+2}, 0, v{O+r}, v{T+2}")
    a(f"v_rcp_f32 v{T+1}, v{T+1}")
    a(f"v_cmp_u_f32 vcc, v{T+2}, v{T+2}")
    for r in range(12):
        a(f"v_mul_f32 v{O+r}, v{O+r}, v{T+1}")
    for r in range(6):
        a(f"v_cvt_pk_bf16_f32 v{P+r}, v{O+2*r}, v{O+2*r+1}")
    a(f"""
    buffer_store_dwordx4 {vr(P,4)}, v15, s[48:51], s10 offen
    s_mov_b64 exec, s[64:65]
    buffer_store_dwordx2 {vr(P+4,2)}, v14, s[48:51], s11 offen
    s_mov_b64 exec, -1
    s_cbranch_vccz L_att_join
    v_mov_b32 v{T+1}, {FLAG}
    v_mov_b32 v{T}, 1
    ds_write_b32 v{T+1}, v{T}
    """)
    a.label("L_att_join")
    a(f"""
    s_cmp_lg_u32 s56, 0
    s_cbranch_scc1 L_att_done
    v_mov_b32 v{T+1}, {FLAG}
    s_waitcnt lgkmcnt(0)
    s_barrier
    ds_read_b32 v{T}, v{T+1}
    s_waitcnt lgkmcnt(0)
    v_readfirstlane_b32 s10, v{T}
    s_nop 3
    s_cmp_eq_u32 s10, 0
    s_cbranch_scc1 L_att_done
    """)
    a(f"""
    s_mov_b32 s56, 1
    s_mov_b64 exec, s[66:67]
    v_mov_b32 v{QT}, 0
    v_mov_b32 v{QT+1}, 0
    s_mov_b64 exec, -1
    v_mov_b32 v{T}, 0xff800000
    s_add_u32 s10, s5, 32
    s_mul_i32 s10, s10, 98304
    s_mov_b32 s11, 64
    """)
    a.label("L_att_maxloop")
    a(f"""
    buffer_load_dwordx4 {vr(KM,4)}, v{VKM0}, s[40:43], s10 offen
    buffer_load_dwordx2 {vr(KT,2)}, v{VKT0}, s[40:43], s10 offen
    s_waitcnt vmcnt(0)
    v_mfma_f32_32x32x16_bf16 {vr(S,16)}, {vr(KM,4)}, {vr(QM,4)}, 0
    v_mfma_f32_32x32x8_bf16 {vr(S,16)}, {vr(KT,2)}, {vr(QT,2)}, {vr(S,16)}
    s_nop 15
    """)
    for r in range(0, 16, 2):
        a(f"v_max3_f32 v{T}, v{T}, v{S+r}, v{S+r+1}")
    a("""
    s_add_u32 s10, s10, 1536
    s_sub_u32 s11, s11, 1
    s_cmp_lg_u32 s11, 0
    s_cbranch_scc1 L_att_maxloop
    s_branch L_att_set_m
    """)
    a.label("L_att_done")
    stamp_flush(a, 1, 8)
    a.label("L_att_exit")
    a("s_endpgm")
    return [("att_kernel", 108)]
```

```python
from asmlib import *
from layout import *
import struct

def f32(x):
    return "0x%08x" % struct.unpack("<I", struct.pack("<f", x))[0]

QSCALE = 1.4426950408889634 / (20 ** 0.5)
NCH = 20
RING = 8
import os
DIST = int(os.environ.get('D13', 4))
RAMP = int(os.environ.get('R13', DIST))

def tile_map16(a):
    a("""
    s_and_b32 s3, s2, 7
    s_lshr_b32 s4, s2, 3
    s_and_b32 s5, s3, 3
    s_lshl_b32 s5, s5, 2
    s_and_b32 s8, s4, 3
    s_add_u32 s5, s5, s8
    s_lshr_b32 s6, s3, 2
    s_lshl_b32 s6, s6, 3
    s_lshr_b32 s8, s4, 2
    s_add_u32 s6, s6, s8
    v_lshrrev_b32 v1, 6, v0
    v_and_b32 v2, 63, v0
    s_nop 0
    v_readfirstlane_b32 s7, v1
    """)

def loader_loop(a, issue, ninstr, nch, dist, kid, ramp=None):
    ramp = dist if ramp is None else ramp
    nxt = 0
    for c in range(min(ramp, nch)):
        issue(c); nxt += 1
    for c in range(nch):
        a(f"s_waitcnt vmcnt({ninstr * (nxt - 1 - c)})")
        if c == 0: stamp(a, 2)
        if c == nch//2: stamp(a, 4)
        a("s_barrier")
        while nxt < nch and nxt <= c + dist and nxt < c + 1 + max(ramp, 0) + (c + 1):
            issue(nxt); nxt += 1
    stamp(a, 3)
    stamp_flush(a, kid, 8)
    a("s_endpgm")

def x_loader(a, stage_bytes):
    a(f"""
    s_lshl_b32 s10, s5, 2
    s_lshl_b32 s11, s9, 1
    s_add_u32 s10, s10, s11
    s_mul_i32 s10, s10, 40960
    v_lshl_add_u32 v8, v2, 4, s10
    v_add_u32 v9, 40960, v8
    s_lshl_b32 s57, s9, 12
    """)
    def issue(c):
        a(f"s_mov_b32 s58, {c*2048}")
        for t in range(2):
            a(f"s_add_u32 m0, s57, {(c % RING) * stage_bytes + t * 2048}")
            a("s_nop 0")
            for i in range(2):
                a(f"buffer_load_dwordx4 v{8+t}, s[40:43], s58 offen offset:{i*1024} lds")
    return issue

def w_loader(a, stage_bytes, nnt, wt_off, wt_bytes):
    n = 2 * nnt
    srd(a, 52, P_WS, wt_off, wt_bytes)
    a(f"""
    s_mul_i32 s10, s6, {41*n*1024}
    s_mul_i32 s11, s9, {n*1024}
    s_add_u32 s10, s10, s11
    v_lshl_add_u32 v8, v2, 4, s10
    v_add_u32 v9, 4096, v8
    s_add_u32 s57, s11, 8192
    """)
    def issue(c):
        a(f"s_mov_b32 s58, {c*2*n*1024}")
        for g in range((n + 3) // 4):
            a(f"s_add_u32 m0, s57, {(c % RING) * stage_bytes + g * 4096}")
            a("s_nop 0")
            for i in range(min(4, n - 4*g)):
                a(f"buffer_load_dwordx4 v{8+g}, s[52:55], s58 offen offset:{i*1024} lds")
    return issue, n

def compute_setup(a, nnt, VX, VW, XW, ST, stage_bytes, per_set, wt_off, wt_bytes, st_off):
    nset = (RING + per_set - 1) // per_set
    a(f"""
    s_lshr_b32 s8, s7, 1
    s_and_b32 s9, s7, 1
    v_and_b32 v3, 31, v2
    v_lshrrev_b32 v4, 5, v2
    """)
    srd(a, 52, P_WS, wt_off, wt_bytes)
    srd(a, 56, P_WS, st_off, 2048*64)
    a(f"""
    s_mul_i32 s10, s6, {41*2*nnt*1024}
    s_mul_i32 s11, s9, {nnt*1024}
    s_add_u32 s10, s10, s11
    s_add_u32 s10, s10, {40*2*nnt*1024}
    v_lshlrev_b32 v5, 4, v2
    s_lshl_b32 s13, s5, 7
    s_lshl_b32 s14, s8, 6
    s_add_u32 s12, s13, s14
    v_add_u32 v6, s12, v3
    v_lshlrev_b32 v6, 6, v6
    v_lshl_add_u32 v6, v4, 5, v6
    """)
    for mt in range(2):
        for i in range(2):
            a(f"buffer_load_dwordx4 {vr(ST+8*mt+4*i,4)}, v6, s[56:59], 0 offen offset:{mt*2048 + i*16}")
    for nt in range(nnt):
        a(f"buffer_load_dwordx4 {vr(XW+4*nt,4)}, v5, s[52:55], s10 offen offset:{nt*1024}")
    a(f"""
    s_add_u32 s11, s11, 8192
    v_add_u32 v{VW}, s11, v5
    s_lshl_b32 s14, s8, 12
    v_add_u32 v{VX}, s14, v5
    """)
    for s in range(1, nset):
        a(f"v_add_u32 v{VW+s}, {s*per_set*stage_bytes}, v{VW}")
        a(f"v_add_u32 v{VX+s}, {s*per_set*stage_bytes}, v{VX}")

def half_sum(a, v, t):
    a(f"v_mov_b32 v{t}, v{v}")
    a("s_nop 1")
    a(f"v_permlane32_swap_b32 v{v}, v{t}")
    a("s_nop 1")
    a(f"v_add_f32 v{v}, v{v}, v{t}")

def stats_finish(a, ST, RS, XM, T):
    a(f"s_mov_b32 s10, {f32(1.0/640)}")
    for mt in range(2):
        s = ST + 8*mt
        a(f"""
        v_pk_add_f32 {vr(s,2)}, {vr(s,2)}, {vr(s+2,2)}
        v_pk_add_f32 {vr(s+4,2)}, {vr(s+4,2)}, {vr(s+6,2)}
        v_pk_add_f32 {vr(s,2)}, {vr(s,2)}, {vr(s+4,2)}
        """)
        half_sum(a, s, T); half_sum(a, s+1, T)
        x = XM + 4*mt
        a(f"""
        v_mul_f32 v{s}, s10, v{s}
        v_mul_f32 v{s+1}, s10, v{s+1}
        v_fma_f32 v{s+1}, -v{s}, v{s}, v{s+1}
        v_max_f32 v{s+1}, 0, v{s+1}
        v_add_f32 v{s+1}, {f32(1e-5)}, v{s+1}
        v_rsq_f32 v{RS+mt}, v{s+1}
        v_xor_b32 v{s}, 0x80000000, v{s}
        v_and_b32 v{s+2}, 0xffff0000, v{s}
        v_sub_f32 v{s}, v{s}, v{s+2}
        v_lshrrev_b32 v{x+1}, 16, v{s+2}
        v_cvt_pk_bf16_f32 v{s+3}, 0, v{s}
        v_or_b32 v{x}, v{x+1}, v{s+3}
        v_mov_b32 v{x+3}, v{x+1}
        v_mov_b32 v{x+2}, v{x}
        """)

def main_loop(a, nnt, VX, VW, FX, FW, ACC, stage_bytes, per_set, pre):
    NB = 3
    def reads(s):
        c, ks = s // 2, s % 2
        buf = s % NB
        st = c % RING
        sset, sin = st // per_set, st % per_set
        for mt in range(2):
            a(f"ds_read_b128 {vr(FX + (buf*2+mt)*4, 4)}, v{VX + sset} offset:{sin*stage_bytes + mt*2048 + ks*1024}")
        for nt in range(nnt):
            a(f"ds_read_b128 {vr(FW + (buf*nnt+nt)*4, 4)}, v{VW + sset} offset:{sin*stage_bytes + (ks*2*nnt + nt)*1024}")
    nreads = 2 + nnt
    pre()
    a("s_barrier")
    stamp(a, 2)
    reads(0); reads(1)
    NS = 2*NCH
    for s in range(NS):
        buf = s % NB
        a(f"s_waitcnt lgkmcnt({nreads if s + 1 < NS else 0})")
        if s % 2 == 0 and s // 2 + 1 < NCH:
            a("s_barrier")
            if s // 2 + 1 == NCH // 2: stamp(a, 4)
        first = True
        for nt in range(nnt):
            for mt in range(2):
                acc = ACC + (nt*2+mt)*16
                a(f"v_mfma_f32_32x32x16_bf16 {vr(acc,16)}, {vr(FW + (buf*nnt+nt)*4, 4)}, {vr(FX + (buf*2+mt)*4, 4)}, {vr(acc,16)}")
                if first and s + 2 < NS:
                    reads(s + 2)
                first = False
    stamp(a, 3)

def extra_kstep(a, nnt, XW, XM, ACC, ST, RS, T):
    a(f"s_waitcnt vmcnt({nnt})")
    stats_finish(a, ST, RS, XM, T)
    a("s_waitcnt vmcnt(0)")
    for nt in range(nnt):
        for mt in range(2):
            acc = ACC + (nt*2+mt)*16
            a(f"v_mfma_f32_32x32x16_bf16 {vr(acc,16)}, {vr(XW+4*nt,4)}, {vr(XM+4*mt,4)}, 0")

def gen_g1(a):
    for name, off in (("g1a_kernel", WS_X0), ("g1b_kernel", WS_XB)):
        kernel_header(a, name)
        a("s_cmp_ge_u32 s2, 256")
        a("s_cbranch_scc1 L_g1_exit")
        load_ptrs(a)
        tile_map16(a)
        a("s_waitcnt lgkmcnt(0)")
        srd(a, 40, P_WS, off, 2048*1280)
        a("s_branch L_g1_body")
    a.label("L_g1_exit")
    a("s_endpgm")
    a.label("L_g1_body")
    stamp(a, 0); stamp_rt(a, 1)
    STAGE = 16384
    a("s_cmp_lt_u32 s7, 4")
    a("s_cbranch_scc1 L_g1_compute")
    a("s_sub_u32 s9, s7, 4")
    a("s_cmp_ge_u32 s9, 2")
    a("s_cbranch_scc1 L_g1_wload")
    loader_loop(a, x_loader(a, STAGE), 4, NCH, DIST, 0, RAMP)
    a.label("L_g1_wload")
    a("s_sub_u32 s9, s9, 2")
    iss, n = w_loader(a, STAGE, 2, WS_WT1, WT1_BYTES)
    loader_loop(a, iss, n, NCH, DIST, 0, RAMP)
    a.label("L_g1_compute")
    VX, VW, RS, FX, FW, ACC = 8, 12, 18, 32, 56, 80
    XW, ST, XM, T = 144, 152, 168, 20
    compute_setup(a, 2, VX, VW, XW, ST, STAGE, 4, WS_WT1, WT1_BYTES, WS_ST1)
    srd(a, 48, P_WS, WS_QKV, 96*98304)
    a(f"""
    s_lshr_b32 s68, s12, 5
    s_mul_i32 s68, s68, 1536
    s_mul_i32 s10, s6, 6
    s_mul_i32 s11, s9, 3
    s_add_u32 s10, s10, s11
    s_mov_b32 s15, {f32(QSCALE)}
    """)
    for i in range(3):
        a(f"""
        s_add_u32 s11, s10, {i}
        s_mul_i32 s{61+i}, s11, 98304
        s_add_u32 s{61+i}, s{61+i}, s68
        s_cmp_lt_u32 s11, 32
        s_cselect_b32 s{12+i}, s15, 1.0
        """)
    LO, HI = "s[64:65]", "s[66:67]"
    a(f"""
    s_mov_b32 s64, -1
    s_mov_b32 s65, 0
    s_mov_b32 s66, 0
    s_mov_b32 s67, -1
    v_lshlrev_b32 v26, 4, v3
    v_xor_b32 v27, 128, v26
    v_add_u32 v27, 1024, v27
    v_mov_b32 v21, s13
    v_mov_b32 v22, s14
    v_mov_b32 v23, v26
    v_add_u32 v24, 98304, v26
    v_mov_b32 v25, v27
    s_mov_b64 exec, {HI}
    v_mov_b32 v21, s12
    v_mov_b32 v22, s13
    v_xor_b32 v23, 64, v26
    v_add_u32 v23, 512, v23
    v_mov_b32 v24, v27
    v_mov_b32 v25, v23
    s_mov_b64 exec, -1
    """)
    main_loop(a, 2, VX, VW, FX, FW, ACC, STAGE, 4, lambda: extra_kstep(a, 2, XW, XM, ACC, ST, RS, T))
    PK = 32
    for mt in range(2):
        for d, sc in ((8, "s12"), (10, "s13"), (12, "s14"), (14, "v21"), (28, "v22")):
            a(f"v_mul_f32 v{d}, {sc}, v{RS+mt}")
            a(f"v_mul_f32 v{d+1}, {sc}, v{RS+mt}")
        if mt == 0:
            a("s_nop 4")
        pk = PK + 16*mt
        def pos(nt, aa, rs, dst):
            acc = ACC + (nt*2+mt)*16 + aa*4
            a(f"v_pk_mul_f32 {vr(acc,2)}, {vr(acc,2)}, {vr(rs,2)}")
            a(f"v_pk_mul_f32 {vr(acc+2,2)}, {vr(acc+2,2)}, {vr(rs,2)}")
            a(f"v_cvt_pk_bf16_f32 v{dst}, v{acc}, v{acc+1}")
            a(f"v_cvt_pk_bf16_f32 v{dst+1}, v{acc+2}, v{acc+3}")
        off = f"offset:{mt*1536}"
        pos(0, 0, 8, pk); pos(0, 1, 8, pk+2)
        a(f"buffer_store_dwordx4 {vr(pk,4)}, v23, s[48:51], s61 offen {off}")
        pos(1, 0, 12, pk+4); pos(1, 1, 12, pk+6)
        a(f"buffer_store_dwordx4 {vr(pk+4,4)}, v23, s[48:51], s63 offen {off}")
        pos(0, 2, 14, pk+8); pos(0, 3, 10, pk+10)
        a(f"""
        s_mov_b64 exec, {HI}
        v_mov_b32 v{pk+10}, 0x3f803f80
        v_mov_b32 v{pk+11}, 0x00003f80
        s_mov_b64 exec, -1
        buffer_store_dwordx4 {vr(pk+8,4)}, v24, s[48:51], s61 offen {off}
        """)
        pos(1, 2, 10, pk+12); pos(1, 3, 28, pk+14)
        t = 64 + 4*mt
        a(f"""
        s_mov_b64 exec, {LO}
        v_mov_b32 v{t}, v{pk+14}
        v_mov_b32 v{t+1}, v{pk+15}
        v_mov_b32 v{t+2}, 0x3f803f80
        v_mov_b32 v{t+3}, 0x00003f80
        v_mov_b32 v{pk+14}, 0x3f803f80
        v_mov_b32 v{pk+15}, 0x00003f80
        buffer_store_dwordx4 {vr(t,4)}, v25, s[48:51], s63 offen {off}
        s_mov_b64 exec, -1
        buffer_store_dwordx4 {vr(pk+12,4)}, v25, s[48:51], s62 offen {off}
        """)
    stamp_flush(a, 0, 8)
    a("s_endpgm")
    return [("g1a_kernel", 176), ("g1b_kernel", 176)]

def gen_g3(a):
    kernel_header(a, "g3_kernel")
    a("s_cmp_ge_u32 s2, 256")
    a("s_cbranch_scc1 L_g3_exit")
    load_ptrs(a)
    tile_map16(a)
    a("s_waitcnt lgkmcnt(0)")
    srd(a, 40, P_WS, WS_XA, 2048*1280)
    stamp(a, 0); stamp_rt(a, 1)
    STAGE = 20480
    a("s_cmp_lt_u32 s7, 4")
    a("s_cbranch_scc1 L_g3_compute")
    a("s_sub_u32 s9, s7, 4")
    a("s_cmp_ge_u32 s9, 2")
    a("s_cbranch_scc1 L_g3_wload")
    loader_loop(a, x_loader(a, STAGE), 4, NCH, DIST, 3, RAMP)
    a.label("L_g3_exit")
    a("s_endpgm")
    a.label("L_g3_wload")
    a("s_sub_u32 s9, s9, 2")
    iss, n = w_loader(a, STAGE, 3, WS_WT3, WT3_BYTES)
    loader_loop(a, iss, n, NCH, DIST, 3, RAMP)
    a.label("L_g3_compute")
    VX, VW, RS, FX, FW, ACC = 8, 12, 18, 24, 48, 84
    XW, ST, XM, T = 180, 192, 208, 20
    compute_setup(a, 3, VX, VW, XW, ST, STAGE, 3, WS_WT3, WT3_BYTES, WS_ST3)
    srd(a, 48, P_WS, WS_H, 2048*3072)
    a(f"""
    v_add_u32 v21, s12, v3
    v_lshrrev_b32 v22, 4, v21
    v_mul_u32_u24 v22, 49152, v22
    v_and_b32 v21, 15, v21
    v_lshl_add_u32 v22, v21, 4, v22
    v_lshl_add_u32 v22, v4, 8, v22
    v_add_u32 v23, {2*49152}, v22
    s_mul_i32 s10, s6, 6
    s_mul_i32 s11, s9, 3
    s_add_u32 s10, s10, s11
    s_lshl_b32 s61, s10, 9
    """)
    def pre3():
        extra_kstep(a, 3, XW, XM, ACC, ST, RS, T)
        a("""
        s_lshl_b32 s12, s4, 2
        s_add_u32 s12, s12, s7
        s_lshr_b32 s13, s3, 2
        """)
        l2_prefetch(a, 44, WS_WT4, WT4_BYTES//2, 7, 12, 5, 6, 14, 13)
    main_loop(a, 3, VX, VW, FX, FW, ACC, STAGE, 3, pre3)
    for mt in range(2):
        a(f"v_mul_f32 v{8+2*mt}, v{RS+mt}, v{RS+mt}")
        a(f"v_mul_f32 v{9+2*mt}, v{RS+mt}, v{RS+mt}")
    a("s_nop 7")
    PK = 24
    for nt in range(3):
        for mt in range(2):
            acc = ACC + (nt*2+mt)*16
            dst = PK + (mt*3+nt)*4
            for r in range(8):
                a(f"v_max_f32 v{acc+r}, 0, v{acc+r}")
            for r in range(0, 8, 2):
                a(f"v_pk_mul_f32 {vr(acc+8+r,2)}, {vr(acc+8+r,2)}, {vr(8+2*mt,2)}")
            for r in range(0, 8, 2):
                a(f"v_pk_mul_f32 {vr(acc+r,2)}, {vr(acc+r,2)}, {vr(acc+8+r,2)}")
            for r in range(4):
                a(f"v_cvt_pk_bf16_f32 v{dst+r}, v{acc+2*r}, v{acc+2*r+1}")
            a(f"buffer_store_dwordx4 {vr(dst,4)}, v{22+mt}, s[48:51], s61 offen offset:{nt*512}")
    stamp_flush(a, 3, 8)
    a("s_endpgm")
    return [("g3_kernel", 216)]
```

```python
from asmlib import *
from layout import *

STAGE = 18432
NST = 8
import os
DIST = int(os.environ.get('D24', 4))
RAMP = int(os.environ.get('R24', DIST))

def gen_g24(a, tag, nch, entries, wt_off, wt_bytes, ksteps_total, xoff, st_off):
    L = f"L_{tag}"
    kid = 2 if tag == "g2" else 4
    for name, (rp, ro), (op, oo) in entries:
        kernel_header(a, name)
        a("s_cmp_ge_u32 s2, 256")
        a(f"s_cbranch_scc1 {L}_exit")
        load_ptrs(a)
        a("""
        s_and_b32 s3, s2, 7
        s_lshr_b32 s4, s2, 3
        s_and_b32 s5, s3, 3
        s_lshl_b32 s5, s5, 3
        s_and_b32 s8, s4, 7
        s_add_u32 s5, s5, s8
        s_lshr_b32 s6, s3, 2
        s_lshl_b32 s6, s6, 2
        s_lshr_b32 s8, s4, 3
        s_add_u32 s6, s6, s8
        v_lshrrev_b32 v1, 6, v0
        v_and_b32 v2, 63, v0
        s_nop 0
        v_readfirstlane_b32 s7, v1
        s_waitcnt lgkmcnt(0)
        """)
        srd(a, 40, rp, ro, 2048*1280)
        srd(a, 48, op, oo, 2048*1280)
        a(f"s_mov_b32 s69, {1 if op == P_OUT else 0}")
        a(f"s_branch {L}_body")
    a.label(f"{L}_exit")
    a("s_endpgm")
    a.label(f"{L}_body")
    stamp(a, 0); stamp_rt(a, 1)
    a("s_cmp_lt_u32 s7, 4")
    a(f"s_cbranch_scc1 {L}_compute")
    a("s_sub_u32 s9, s7, 4")
    a("s_cmp_ge_u32 s9, 2")
    a(f"s_cbranch_scc1 {L}_xload")
    def lloop(issue, n):
        import g13
        g13.loader_loop(a, issue, n, nch, DIST, kid, RAMP)
    srd(a, 52, P_WS, wt_off, wt_bytes)
    a(f"""
    s_mul_i32 s11, s9, 5120
    s_add_u32 s57, s11, 8192
    s_mul_i32 s10, s6, {ksteps_total*5120}
    s_add_u32 s10, s10, s11
    v_lshl_add_u32 v8, v2, 4, s10
    v_add_u32 v9, 4096, v8
    """)
    def w_issue(c):
        a(f"s_mov_b32 s58, {c*10240}")
        a(f"s_add_u32 m0, s57, {(c % NST) * STAGE}")
        a("s_nop 0")
        for i in range(4):
            a(f"buffer_load_dwordx4 v8, s[52:55], s58 offen offset:{i*1024} lds")
        a(f"s_add_u32 m0, s57, {(c % NST) * STAGE + 4096}")
        a("s_nop 0")
        a(f"buffer_load_dwordx4 v9, s[52:55], s58 offen lds")
    lloop(w_issue, 5)
    a.label(f"{L}_xload")
    srd(a, 52, P_WS, xoff, 128*ksteps_total*1024)
    a(f"""
    s_sub_u32 s9, s9, 2
    s_lshl_b32 s57, s9, 12
    s_lshl_b32 s10, s5, 2
    s_lshl_b32 s11, s9, 1
    s_add_u32 s10, s10, s11
    s_mul_i32 s10, s10, {ksteps_total*1024}
    v_lshl_add_u32 v8, v2, 4, s10
    v_add_u32 v9, {ksteps_total*1024}, v8
    """)
    def x_issue(c):
        a(f"s_mov_b32 s58, {c*2048}")
        for t in range(2):
            a(f"s_add_u32 m0, s57, {(c % NST) * STAGE + t * 2048}")
            a("s_nop 0")
            for i in range(2):
                a(f"buffer_load_dwordx4 v{8+t}, s[52:55], s58 offen offset:{i*1024} lds")
    lloop(x_issue, 4)
    a.label(f"{L}_compute")
    VXA, VWA, VO, VS, VR = 4, 6, 8, 9, 3
    RES, FX, FW, ACC = 10, 20, 32, 92
    srd(a, 56, P_WS, st_off, 2048*64)
    a(f"""
    s_lshl_b32 s10, s5, 6
    s_lshl_b32 s11, s7, 4
    s_add_u32 s10, s10, s11
    v_and_b32 v4, 15, v2
    v_add_u32 v4, s10, v4
    v_lshlrev_b32 v{VS}, 6, v4
    v_lshrrev_b32 v1, 4, v2
    s_lshr_b32 s10, s10, 5
    s_mul_i32 s10, s10, 40960
    s_mul_i32 s11, s6, 5120
    s_add_u32 s10, s10, s11
    v_and_b32 v5, 31, v4
    v_lshl_add_u32 v5, v5, 4, s10
    v_lshrrev_b32 v6, 1, v1
    v_lshl_add_u32 v5, v6, 9, v5
    v_and_b32 v6, 1, v1
    v_lshl_add_u32 v{VR}, v6, 3, v5
    s_movk_i32 s62, 0x1000
    """)
    for j in range(4):
        a(f"buffer_load_dwordx2 {vr(RES+2*j,2)}, v{VR}, s[40:43], 0 offen offset:{1024*j}")
    a(f"buffer_load_dwordx2 {vr(RES+8,2)}, v{VR}, s[40:43], s62 offen")
    a(f"""
    v_mul_u32_u24 v4, 1280, v4
    v_lshl_add_u32 v4, v1, 3, v4
    s_mul_i32 s11, s6, 160
    v_add_u32 v{VO}, s11, v4
    s_cmp_eq_u32 s69, 1
    s_cselect_b32 s63, 32, 1024
    s_cbranch_scc1 {L}_rm
    v_mov_b32 v{VO}, v{VR}
    """)
    a.label(f"{L}_rm")
    a(f"""
    s_lshl_b32 s64, s63, 1
    s_mul_i32 s65, s63, 3
    s_lshl_b32 s66, s63, 2
    s_lshl_b32 s10, s7, 11
    v_lshl_add_u32 v{VXA}, v2, 4, s10
    v_add_u32 v{VXA+1}, {4*STAGE}, v{VXA}
    v_lshlrev_b32 v{VWA}, 4, v2
    v_add_u32 v{VWA}, 8192, v{VWA}
    v_add_u32 v{VWA+1}, {4*STAGE}, v{VWA}
    s_lshl_b32 s61, s6, 3
    """)
    if tag == "g4":
        a(f"""
        s_cmp_eq_u32 s69, 1
        s_cbranch_scc1 {L}_nopf
        s_lshl_b32 s12, s4, 2
        s_add_u32 s12, s12, s7
        s_lshr_b32 s13, s3, 2
        """)
        l2_prefetch(a, 44, WS_WT1, WT1_BYTES//2, 7, 12, 1, 0, 14, 13)
        a.label(f"{L}_nopf")
    NB = 3
    def reads(s):
        c, ks = s // 2, s % 2
        buf = s % NB
        st = c % NST
        sset, sin = st // 4, st % 4
        a(f"ds_read_b128 {vr(FX+buf*4,4)}, v{VXA+sset} offset:{sin*STAGE + ks*1024}")
        for j in range(5):
            a(f"ds_read_b128 {vr(FW+(buf*5+j)*4,4)}, v{VWA+sset} offset:{sin*STAGE + ks*5120 + 1024*j}")
    a("s_barrier")
    stamp(a, 2)
    reads(0); reads(1)
    NS = 2*nch
    for s_ in range(NS):
        buf = s_ % NB
        a(f"s_waitcnt lgkmcnt({6 if s_ + 1 < NS else 0})")
        if s_ % 2 == 0 and s_ // 2 + 1 < nch:
            a("s_barrier")
            if s_ // 2 + 1 == nch // 2: stamp(a, 4)
        for j in range(5):
            cin = "0" if s_ == 0 else vr(ACC+4*j, 4)
            a(f"v_mfma_f32_16x16x32_bf16 {vr(ACC+4*j,4)}, {vr(FW+(buf*5+j)*4,4)}, {vr(FX+buf*4,4)}, {cin}")
            if j == 0 and s_ + 2 < NS:
                reads(s_ + 2)
    stamp(a, 3)
    a("s_waitcnt vmcnt(0)")
    a("s_nop 7")
    a("v_mov_b32 v4, 0")
    a("v_mov_b32 v5, 0")
    a("s_mov_b32 s60, 0x3f803f80")
    for j in range(5):
        t = FX + 4*(j & 1)
        so = "0" if j == 0 else f"s{62+j}"
        a(f"""
        v_lshlrev_b32 v{t}, 16, v{RES+2*j}
        v_and_b32 v{t+1}, 0xffff0000, v{RES+2*j}
        v_lshlrev_b32 v{t+2}, 16, v{RES+2*j+1}
        v_and_b32 v{t+3}, 0xffff0000, v{RES+2*j+1}
        v_pk_add_f32 {vr(t,2)}, {vr(t,2)}, {vr(ACC+4*j,2)}
        v_pk_add_f32 {vr(t+2,2)}, {vr(t+2,2)}, {vr(ACC+4*j+2,2)}
        v_cvt_pk_bf16_f32 v{RES+2*j}, v{t}, v{t+1}
        v_cvt_pk_bf16_f32 v{RES+2*j+1}, v{t+2}, v{t+3}
        buffer_store_dwordx2 {vr(RES+2*j,2)}, v{VO}, s[48:51], {so} offen
        """)
    for r in range(10):
        a(f"v_dot2_f32_bf16 v4, v{RES+r}, s60, v4")
        a(f"v_dot2_f32_bf16 v5, v{RES+r}, v{RES+r}, v5")
    a("s_nop 2")
    for sw in ("v_permlane16_swap_b32", "v_permlane32_swap_b32"):
        a(f"""
        v_mov_b32 v6, v4
        v_mov_b32 v7, v5
        s_nop 1
        {sw} v4, v6
        {sw} v5, v7
        s_nop 1
        v_add_f32 v4, v4, v6
        v_add_f32 v5, v5, v7
        """)
    a(f"""
    s_mov_b64 exec, 0xffff
    buffer_store_dwordx2 v[4:5], v{VS}, s[56:59], s61 offen
    """)
    stamp_flush(a, kid, 8)
    a("s_endpgm")
    return [(e[0], 112) for e in entries]

def gen_g2(a):
    return gen_g24(a, "g2", 10, [("g2a_kernel", (P_WS, WS_X0), (P_WS, WS_XA)), ("g2b_kernel", (P_WS, WS_XB), (P_WS, WS_XA))], WS_WT2, WT2_BYTES, 20, WS_O, WS_ST3)
def gen_g4(a):
    return gen_g24(a, "g4", 24, [("g4a_kernel", (P_WS, WS_XA), (P_WS, WS_XB)), ("g4b_kernel", (P_WS, WS_XA), (P_OUT, 0))], WS_WT4, WT4_BYTES, 48, WS_H, WS_ST1)
```

```python
from asmlib import *
from layout import *

def split3(a, v, c1, c2, c3):
    a(f"""
    v_and_b32 v{c1}, 0xffff0000, v{v}
    v_sub_f32 v{v}, v{v}, v{c1}
    v_and_b32 v{c2}, 0xffff0000, v{v}
    v_sub_f32 v{v}, v{v}, v{c2}
    v_and_b32 v{c3}, 0xffff0000, v{v}
    """)

NTASK = 688
WPW = 3

def gen_k0(a):
    kernel_header(a, "k0_kernel")
    a("s_cmp_ge_u32 s2, 256")
    a("s_cbranch_scc1 L_k0_exit")
    load_ptrs(a)
    a(f"""
    v_lshrrev_b32 v1, 6, v0
    v_and_b32 v2, 63, v0
    v_and_b32 v3, 15, v2
    v_readfirstlane_b32 s7, v1
    v_lshrrev_b32 v4, 4, v2
    s_lshl_b32 s3, s7, 8
    s_add_u32 s3, s3, s2
    s_mov_b32 s60, 0x3f803f80
    s_mov_b32 s62, 0x05040100
    s_mov_b32 s63, 0x07060302
    s_waitcnt lgkmcnt(0)
    """)
    stamp(a, 0); stamp_rt(a, 1)
    a(f"""
    s_cmp_ge_u32 s3, {NTASK}
    s_cbranch_scc1 L_k0_fin
    s_cmp_ge_u32 s3, 432
    s_cbranch_scc1 L_k0_x
    s_cmp_ge_u32 s3, 352
    s_cbranch_scc1 L_k0_wd
    s_cmp_ge_u32 s3, 312
    s_cbranch_scc1 L_k0_wo
    s_cmp_ge_u32 s3, 120
    s_cbranch_scc1 L_k0_wgu
    """)
    LD, OUT, CS = 16, 112, 8
    VSRC, VDST, VSRC2 = 5, 6, 7
    def divmod_s(src, d, q, r, tmp):
        m = (1 << 20) // d + 1
        a(f"s_mul_i32 s{q}, s{src}, {m}")
        a(f"s_lshr_b32 s{q}, s{q}, 20")
        a(f"s_mul_i32 s{tmp}, s{q}, {d}")
        a(f"s_sub_u32 s{r}, s{src}, s{tmp}")
    def loads(b, vsrc, soffs):
        for e in range(8):
            a(f"s_mov_b32 s8, {soffs[e]}")
            a(f"buffer_load_dwordx2 {vr(LD+16*b+2*e,2)}, v{vsrc}, s[36:39], s8 offen")
    def transpose_store(b, nb, dst_soff, colsum, slot_stride=16):
        a(f"s_waitcnt vmcnt({min(63, 8*(nb-1-b) + 4*b)})")
        for c in range(4):
            sel = "s62" if c % 2 == 0 else "s63"
            for r in range(4):
                lo = LD + 16*b + 4*r + c//2
                hi = lo + 2
                a(f"v_perm_b32 v{OUT+4*c+r}, v{hi}, v{lo}, {sel}")
        a(f"s_mov_b32 s8, {dst_soff}")
        for c in range(4):
            a(f"buffer_store_dwordx4 {vr(OUT+4*c,4)}, v{VDST}, s[52:55], s8 offen offset:{c*slot_stride}")
        if colsum:
            for r in range(4):
                for c in range(4):
                    a(f"v_dot2_f32_bf16 v{CS+c}, v{OUT+4*c+r}, s60, v{CS+c}")
        else:
            a("s_nop 1")
    def colsum_finish(xk_off):
        a("s_nop 2")
        for sw in ("v_permlane16_swap_b32", "v_permlane32_swap_b32"):
            for c in range(4):
                a(f"v_mov_b32 v{LD+c}, v{CS+c}")
            a("s_nop 1")
            for c in range(4):
                a(f"{sw} v{CS+c}, v{LD+c}")
            a("s_nop 1")
            for c in range(4):
                a(f"v_add_f32 v{CS+c}, v{CS+c}, v{LD+c}")
        for c in range(4):
            a(f"""
            v_and_b32 v{LD}, 0xffff0000, v{CS+c}
            v_sub_f32 v{CS+c}, v{CS+c}, v{LD}
            v_cvt_pk_bf16_f32 v{OUT+2*c+1}, v{CS+c}, 0
            v_lshrrev_b32 v{LD+1}, 16, v{LD}
            v_or_b32 v{OUT+2*c}, v{LD}, v{LD+1}
            """)
        a(f"""
        s_lshr_b32 s8, s11, 1
        s_lshl_b32 s8, s8, 9
        s_and_b32 s9, s11, 1
        s_lshl_b32 s9, s9, 3
        s_add_u32 s8, s8, s9
        s_add_u32 s8, s8, {xk_off}
        s_mov_b64 exec, 0xffff
        """)
        for c in range(4):
            a(f"buffer_store_dwordx2 {vr(OUT+2*c,2)}, v12, s[52:55], s8 offen offset:{16*c}")
        a("s_mov_b64 exec, -1")
        a("s_branch L_k0_fin")
    srd(a, 36, P_WQKV, 0, 640*3840)
    srd(a, 52, P_WS, WS_WT1, WT1_BYTES)
    divmod_s(3, 30, 11, 10, 8)
    inv = {}
    for i, r in enumerate([0,2,1,3,5,4,6,7]): inv[r] = i
    for i, r in enumerate([10,12,11,13,9,7,14,8]): inv[r] = 8 + i
    lo = sum(inv[r] << (4*r) for r in range(8)); hi = sum(inv[r] << (4*(r-8)) for r in range(8, 15))
    a(f"""
    s_lshl_b32 s9, s10, 4
    v_add_u32 v8, s9, v3
    v_mul_u32_u24 v9, 4370, v8
    v_lshrrev_b32 v9, 16, v9
    v_mul_u32_u24 v10, 15, v9
    v_sub_u32 v10, v8, v10
    s_mov_b32 s12, 0x{lo:08x}
    s_mov_b32 s13, 0x{hi:08x}
    v_lshlrev_b32 v11, 2, v10
    v_bfe_u32 v13, s12, v11, 4
    v_bfe_u32 v14, s13, v11, 4
    v_cmp_gt_u32 vcc, 8, v10
    s_nop 1
    v_cndmask_b32 v13, v14, v13, vcc
    v_lshrrev_b32 v14, 1, v9
    v_mul_u32_u24 v14, {41*4096}, v14
    v_and_b32 v15, 1, v9
    v_lshl_add_u32 v14, v15, 11, v14
    v_lshrrev_b32 v15, 3, v13
    v_lshl_add_u32 v14, v15, 10, v14
    v_and_b32 v15, 7, v13
    v_lshl_add_u32 v12, v15, 6, v14
    v_lshrrev_b32 v14, 1, v4
    v_lshl_add_u32 v{VDST}, v14, 12, v12
    v_and_b32 v14, 1, v4
    v_lshl_add_u32 v{VDST}, v14, 9, v{VDST}
    s_mul_i32 s9, s11, {10*4096}
    v_add_u32 v{VDST}, s9, v{VDST}
    v_mul_u32_u24 v14, {8*3840}, v4
    v_lshl_add_u32 v14, v8, 3, v14
    s_mul_i32 s9, s11, {160*3840}
    v_add_u32 v{VSRC}, s9, v14
    """)
    for c in range(4): a(f"v_mov_b32 v{CS+c}, 0")
    for b in range(5): loads(b, VSRC, [(32*b+e)*3840 for e in range(8)])
    for b in range(5): transpose_store(b, 5, b*2*4096, True)
    colsum_finish(40*4096)
    a.label("L_k0_wgu")
    a(f"""
    s_cmp_ge_u32 s3, 216
    s_cselect_b32 s36, s{P_WU}, s{P_WG}
    s_cselect_b32 s37, s{P_WU+1}, s{P_WG+1}
    s_cselect_b32 s14, 256, 0
    s_movk_i32 s9, 120
    s_cselect_b32 s9, 216, s9
    s_sub_u32 s9, s3, s9
    s_mov_b32 s38, {640*3072}
    s_mov_b32 s39, 0x00020000
    """)
    srd(a, 52, P_WS, WS_WT3, WT3_BYTES)
    divmod_s(9, 24, 11, 10, 8)
    a(f"""
    s_lshl_b32 s9, s10, 4
    v_add_u32 v8, s9, v3
    v_lshrrev_b32 v9, 2, v8
    v_mul_u32_u24 v10, 43691, v9
    v_lshrrev_b32 v10, 18, v10
    v_mul_u32_u24 v11, 6, v10
    v_sub_u32 v11, v9, v11
    v_mul_u32_u24 v10, {41*6144}, v10
    v_lshl_add_u32 v10, v11, 10, v10
    v_and_b32 v11, 1, v8
    v_lshl_add_u32 v10, v11, 7, v10
    v_bfe_u32 v11, v8, 1, 1
    v_lshl_add_u32 v10, v11, 6, v10
    v_add_u32 v12, s14, v10
    v_lshrrev_b32 v14, 1, v4
    v_mul_u32_u24 v14, 6144, v14
    v_add_u32 v{VDST}, v14, v12
    v_and_b32 v14, 1, v4
    v_lshl_add_u32 v{VDST}, v14, 9, v{VDST}
    s_mul_i32 s9, s11, {10*6144}
    v_add_u32 v{VDST}, s9, v{VDST}
    v_mul_u32_u24 v14, {8*3072}, v4
    v_lshl_add_u32 v14, v8, 3, v14
    s_mul_i32 s9, s11, {160*3072}
    v_add_u32 v{VSRC}, s9, v14
    """)
    for c in range(4): a(f"v_mov_b32 v{CS+c}, 0")
    for b in range(5): loads(b, VSRC, [(32*b+e)*3072 for e in range(8)])
    for b in range(5): transpose_store(b, 5, b*2*6144, True)
    colsum_finish(40*6144)
    def dst24(nks):
        a(f"""
        s_lshl_b32 s9, s10, 4
        v_add_u32 v8, s9, v3
        v_lshrrev_b32 v9, 2, v8
        v_mul_u32_u24 v10, 52429, v9
        v_lshrrev_b32 v10, 18, v10
        v_mul_u32_u24 v11, 5, v10
        v_sub_u32 v11, v9, v11
        v_mul_u32_u24 v10, {nks*5120}, v10
        v_lshl_add_u32 v10, v11, 10, v10
        v_and_b32 v11, 3, v8
        v_lshl_add_u32 v10, v11, 6, v10
        v_lshl_add_u32 v{VDST}, v4, 8, v10
        """)
    a.label("L_k0_wo")
    srd(a, 36, P_WO, 0, 640*1280)
    srd(a, 52, P_WS, WS_WT2, WT2_BYTES)
    a("s_sub_u32 s9, s3, 312")
    divmod_s(9, 10, 11, 10, 8)
    dst24(20)
    a(f"""
    v_lshrrev_b32 v14, 1, v4
    v_mul_u32_u24 v14, {20*1280}, v14
    v_and_b32 v15, 1, v4
    v_mul_u32_u24 v15, {4*1280}, v15
    v_add_u32 v14, v14, v15
    v_lshl_add_u32 v14, v8, 3, v14
    s_mul_i32 s9, s11, {160*1280}
    v_add_u32 v{VSRC}, s9, v14
    v_mul_u32_u24 v14, {40*1280}, v4
    v_lshl_add_u32 v14, v8, 3, v14
    v_add_u32 v{VSRC2}, s9, v14
    s_mul_i32 s9, s11, {4*5120}
    v_add_u32 v13, s9, v{VDST}
    s_mul_i32 s9, s11, 5120
    v_add_u32 v12, s9, v{VDST}
    v_mov_b32 v{VDST}, v13
    """)
    for b in range(4): loads(b, VSRC, [(40*b + 8*(e//4) + e % 4)*1280 for e in range(8)])
    loads(4, VSRC2, [(16 + 20*(e//4) + e % 4)*1280 for e in range(8)])
    for b in range(4): transpose_store(b, 5, b*5120, False)
    a(f"v_mov_b32 v{VDST}, v12")
    transpose_store(4, 5, 16*5120, False)
    a("s_branch L_k0_fin")
    a.label("L_k0_wd")
    srd(a, 36, P_WD, 0, 1536*1280)
    srd(a, 52, P_WS, WS_WT4, WT4_BYTES)
    a("s_sub_u32 s9, s3, 352")
    divmod_s(9, 10, 11, 10, 8)
    dst24(48)
    a(f"""
    v_mul_u32_u24 v14, {8*1280}, v4
    v_lshl_add_u32 v14, v8, 3, v14
    s_mul_i32 s9, s11, {192*1280}
    v_add_u32 v{VSRC}, s9, v14
    s_mul_i32 s9, s11, {6*5120}
    v_add_u32 v{VDST}, s9, v{VDST}
    """)
    for b in range(6): loads(b, VSRC, [(32*b+e)*1280 for e in range(8)])
    for b in range(6): transpose_store(b, 6, b*5120, False)
    a("s_branch L_k0_fin")
    a.label("L_k0_x")
    srd(a, 36, P_AX, 0, 2048*1280)
    srd(a, 52, P_WS, WS_X0, 2048*1280)
    srd(a, 56, P_WS, WS_ST1, 2048*64)
    a(f"""
    s_sub_u32 s9, s3, 432
    s_lshl_b32 s9, s9, 3
    v_lshrrev_b32 v8, 3, v2
    v_add_u32 v8, s9, v8
    v_and_b32 v9, 7, v2
    v_mul_u32_u24 v{VSRC}, 1280, v8
    v_lshl_add_u32 v{VSRC}, v9, 4, v{VSRC}
    """)
    for i in range(10):
        a(f"buffer_load_dwordx4 {vr(LD+4*i,4)}, v{VSRC}, s[36:39], 0 offen offset:{128*i}")
    a(f"""
    v_lshrrev_b32 v10, 5, v8
    v_mul_u32_u24 v10, 40960, v10
    v_and_b32 v11, 31, v8
    v_lshl_add_u32 v10, v11, 4, v10
    v_lshl_add_u32 v{VDST}, v9, 9, v10
    v_mov_b32 v12, 0
    v_mov_b32 v13, 0
    """)
    for i in range(10):
        a(f"s_waitcnt vmcnt({9})")
        a(f"s_mov_b32 s8, {i*4096}")
        a(f"buffer_store_dwordx4 {vr(LD+4*i,4)}, v{VDST}, s[52:55], s8 offen")
        for r in range(4):
            a(f"v_dot2_f32_bf16 v12, v{LD+4*i+r}, s60, v12")
            a(f"v_dot2_f32_bf16 v13, v{LD+4*i+r}, v{LD+4*i+r}, v13")
    a(f"""
    v_lshlrev_b32 v10, 6, v8
    v_lshl_add_u32 v10, v9, 3, v10
    s_nop 1
    buffer_store_dwordx2 v[12:13], v10, s[56:59], 0 offen
    """)
    a.label("L_k0_fin")
    stamp_flush(a, 5, 8)
    a.label("L_k0_exit")
    a("s_endpgm")
    return [("k0_kernel", 128)]
```

```python
WS_XA  = 0x0000000
WS_XB  = 0x0300000
WS_QKV = 0x0600000
WS_O   = 0x1000000
WS_H   = 0x1400000
WS_WT1 = 0x2000000
WS_WT3 = 0x2300000
WS_WT2 = 0x2700000
WS_WT4 = 0x2800000
WS_ST1 = 0x2A00000
WS_ST3 = 0x2A40000
WS_X0  = 0x2B00000
WS_FLAGS = 0x2A80000
FL_G1 = 2*3*16*256
FL_ATT = FL_G1 + 4096
FL_W = FL_ATT + 2*8192
FLAGS_BYTES = FL_W + 1024
WS_STAMP = 0x3000000
WT1_BYTES = 16*41*4096
WT3_BYTES = 16*41*6144
WT2_BYTES = 8*20*5120
WT4_BYTES = 8*48*5120
def o_slot_to_col():
    r = []
    for s in range(640):
        if s < 512:
            head = s // 16; h = (s // 8) % 2; i = s % 8
            r.append(20*head + 8*(i//4) + 4*h + i % 4)
        else:
            t = s - 512
            r.append(20*(t//4) + 16 + t % 4)
    return r
```

```python
import sys
sys.path.insert(0, "gen")
from asmlib import *
import g13, g24, att, k0

def build(extra_launches=0):
    a = Asm()
    launches = [("k0_kernel", 192, 0), ("g1a_kernel", 512, 131072), ("att_kernel", 1024, att.LDS_BYTES), ("g2a_kernel", 512, g24.STAGE*g24.NST), ("g3_kernel", 512, 163840), ("g4a_kernel", 512, g24.STAGE*g24.NST),
                ("g1b_kernel", 512, 131072), ("att_kernel", 1024, att.LDS_BYTES), ("g2b_kernel", 512, g24.STAGE*g24.NST), ("g3_kernel", 512, 163840), ("g4b_kernel", 512, g24.STAGE*g24.NST)]
    hdr = open("interleave_layers__mha_block__glu_gated_reglu__prompt.s.ref").read().split("\n")
    head = [l for l in hdr if l.startswith(";") and "@launch" not in l and "Override" not in l and "grid=ceil" not in l]
    out = head[:11]
    for k, b, lds in launches:
        out.append(f"; @launch kernel={k} grid=(256,1,1) block=({b},1,1) lds={lds}")
    for _ in range(extra_launches):
        out.append(f"; @launch kernel=nop_kernel grid=(256,1,1) block=(256,1,1) lds=0")
    out.append('.amdgcn_target "amdgcn-amd-amdhsa--gfx950"')
    out.append(".text")
    ks = []
    ks += k0.gen_k0(a)
    a.gemm = True
    ks += g13.gen_g1(a)
    a.gemm = False
    ks += att.gen_att(a)
    a.gemm = True
    ks += g24.gen_g2(a)
    ks += g13.gen_g3(a)
    ks += g24.gen_g4(a)
    if extra_launches:
        kernel_header(a, "nop_kernel"); a("s_endpgm"); ks.append(("nop_kernel", 8))
    txt = "\n".join(out) + "\n" + a.text() + '.section .rodata,"a"\n'
    for k, v in ks:
        txt += kernel_desc(k, v)
    return txt

if __name__ == "__main__":
    dst = sys.argv[1] if len(sys.argv) > 1 else "interleave_layers__mha_block__glu_gated_reglu__prompt.s"
    extra = int(sys.argv[2]) if len(sys.argv) > 2 else 0
    if len(sys.argv) > 3 and sys.argv[3] == "stamps":
        import asmlib
        asmlib.STAMPS = True
    open(dst, "w").write(build(extra))
    print("wrote", dst)
```

```python
import os
NOLOAD = int(os.environ.get('NOLOAD', 0))
NOCOMP = int(os.environ.get('NOCOMP', 0))
NOMFMA = int(os.environ.get('NOMFMA', 0))
class Asm:
    def __init__(self):
        self.lines = []
        self.uid = 0
        self.gemm = False
    def __call__(self, s):
        for l in s.strip("\n").split("\n"):
            l = l.strip()
            if NOLOAD and self.gemm and l.endswith(" lds"): continue
            if NOCOMP and self.gemm and (l.startswith("v_mfma") or l.startswith("ds_read")): continue
            if NOMFMA and self.gemm and l.startswith("v_mfma"): continue
            if STF and l.startswith("buffer_store") and "s[68:71]" not in l: l += " " + STF
            self.lines.append("    " + l)
    def label(self, l):
        self.lines.append(l + ":")
    def raw(self, s):
        self.lines.append(s)
    def newlabel(self, base):
        self.uid += 1
        return f"L_{base}_{self.uid}"
    def text(self):
        return "\n".join(self.lines) + "\n"

def vr(b, n=1):
    return f"v{b}" if n == 1 else f"v[{b}:{b+n-1}]"
def sr(b, n=1):
    return f"s{b}" if n == 1 else f"s[{b}:{b+n-1}]"

def kernel_header(a, name):
    a.raw(f".globl {name}")
    a.raw(".p2align 8")
    a.raw(f".type {name},@function")
    a.label(name)

def kernel_desc(name, vgpr, sgpr=96, accum=None):
    if accum is None:
        accum = (vgpr + 3) // 4 * 4
    return f""".p2align 6
.amdhsa_kernel {name}
  .amdhsa_next_free_vgpr {vgpr}
  .amdhsa_next_free_sgpr {sgpr}
  .amdhsa_accum_offset {accum}
  .amdhsa_group_segment_fixed_size 0
  .amdhsa_kernarg_size 80
  .amdhsa_user_sgpr_count 2
  .amdhsa_user_sgpr_kernarg_segment_ptr 1
  .amdhsa_system_sgpr_workgroup_id_x 1
.end_amdhsa_kernel
"""

P_AX, P_WQKV, P_WO, P_BX, P_WG, P_WU, P_WD, P_OUT, P_DBG, P_WS = 16, 18, 20, 22, 24, 26, 28, 30, 32, 34

def load_ptrs(a):
    a("s_load_dwordx16 s[16:31], s[0:1], 0")
    a("s_load_dwordx4 s[32:35], s[0:1], 64")

def srd(a, d, ptr, off, nbytes):
    if off:
        a(f"s_add_u32 s{d}, s{ptr}, {off}")
        a(f"s_addc_u32 s{d+1}, s{ptr+1}, 0")
    else:
        a(f"s_mov_b32 s{d}, s{ptr}")
        a(f"s_mov_b32 s{d+1}, s{ptr+1}")
    a(f"s_mov_b32 s{d+2}, {nbytes}")
    a(f"s_mov_b32 s{d+3}, 0x00020000")

STAMPS = False
from layout import WS_STAMP
def stamp(a, k):
    if STAMPS:
        a(f"s_memtime s[{72+2*k}:{73+2*k}]")
def stamp_rt(a, k):
    if STAMPS:
        a(f"s_memrealtime s[{72+2*k}:{73+2*k}]")
def stamp_flush(a, kid, n, wave_sgpr="s7"):
    if not STAMPS: return
    a("s_waitcnt vmcnt(0) lgkmcnt(0)")
    stamp(a, n-2)
    stamp_rt(a, n-1)
    a("s_mov_b64 exec, -1")
    srd(a, 68, P_WS, WS_STAMP, 0x1000000)
    a(f"s_add_u32 s10, s2, {kid*256}")
    a(f"s_lshl_b32 s10, s10, 4")
    a(f"s_add_u32 s10, s10, {wave_sgpr}")
    a(f"s_lshl_b32 s10, s10, 6")
    a("s_waitcnt lgkmcnt(0)")
    for k in range(n):
        a(f"v_mov_b32 v1, s{72+2*k}")
        a(f"buffer_store_dword v1, off, s[68:71], s10 offset:{4*k}")

PF = int(os.environ.get('PF', 1))
def l2_prefetch_setup(a, srd_reg, ws_off, half_bytes, nslice, slice_sgpr, vtmp, stmp, xcd_half_sgpr):
    per = (half_bytes + nslice - 1) // nslice
    per = (per + 127) // 128 * 128
    srd(a, srd_reg, P_WS, ws_off, 2*half_bytes)
    a(f"s_mul_i32 s{stmp}, s{xcd_half_sgpr}, {half_bytes}")
    a(f"s_mul_i32 s{stmp+1}, s{slice_sgpr}, {per}")
    a(f"s_add_u32 s{stmp}, s{stmp}, s{stmp+1}")
    a(f"s_add_u32 s{srd_reg+2}, s{stmp}, {per}")
    a(f"s_min_u32 s{srd_reg+2}, s{srd_reg+2}, {2*half_bytes}")
    a(f"v_lshlrev_b32 v{vtmp}, 7, v2")
    return (per + 8191) // 8192
def l2_touch(a, srd_reg, vtmp, vdst, stmp):
    a(f"buffer_load_dword v{vdst}, v{vtmp}, s[{srd_reg}:{srd_reg+3}], s{stmp} offen")
    a(f"s_add_u32 s{stmp}, s{stmp}, 8192")
def l2_prefetch(a, srd_reg, ws_off, half_bytes, nslice_log2, slice_sgpr, vtmp, vdst, stmp, xcd_half_sgpr):
    n = l2_prefetch_setup(a, srd_reg, ws_off, half_bytes, 1 << nslice_log2, slice_sgpr, vtmp, stmp, xcd_half_sgpr)
    for i in range(n):
        l2_touch(a, srd_reg, vtmp, vdst, stmp)

CPF = 0
STF = os.environ.get('STF', '')
def code_prefetch(a, start_label, nbytes, sp, vtmp, vdst):
    if not CPF: return
    l = a.newlabel("pc")
    a(f"s_getpc_b64 s[{sp}:{sp+1}]")
    a.label(l)
    a(f"s_sub_u32 s{sp}, s{sp}, {l}-{start_label}")
    a(f"s_subb_u32 s{sp+1}, s{sp+1}, 0")
    a(f"v_lshlrev_b32 v{vtmp}, 7, v2")
    for i in range((nbytes + 8191) // 8192):
        if i: a(f"v_add_u32 v{vtmp}, 8192, v{vtmp}")
        a(f"global_load_dword v{vdst}, v{vtmp}, s[{sp}:{sp+1}]")
```

```python
from asmlib import *
from layout import *
import prep

HSTG = 24576
STG = 2 * HSTG
NSTG = 3
FLAG = NSTG * STG
PART = FLAG + 64
LDS_BYTES = PART + 4096
import os
PRIO = int(os.environ.get('APRIO', 1))

def gen_att(a):
    kernel_header(a, "atta_kernel")
    a(f"s_mov_b32 s62, {0 if prep.PVAR == 3 else 1}")
    a("s_branch L_att_entry")
    kernel_header(a, "attb_kernel")
    a("s_mov_b32 s62, 0")
    a.label("L_att_entry")
    a("s_cmp_ge_u32 s2, 256")
    a("s_cbranch_scc1 L_att_exit")
    load_ptrs(a)
    VDMA, VKM0, VKT0, VV0, VKM, VKT, VV = 5, 6, 7, 8, 10, 11, 12
    QM, QT = 16, 20
    KM, KT = 24, 32
    VF = 36
    P = 44
    O = 52
    S = 68
    T = 100
    a(f"""
    s_and_b32 s3, s2, 7
    s_lshl_b32 s5, s3, 2
    s_bfe_u32 s4, s2, 0x20003
    s_add_u32 s5, s5, s4
    s_lshr_b32 s6, s2, 5
    v_lshrrev_b32 v1, 6, v0
    v_and_b32 v2, 63, v0
    v_and_b32 v3, 31, v0
    v_readfirstlane_b32 s7, v1
    v_lshrrev_b32 v4, 5, v2
    v_lshlrev_b32 v14, 2, v4
    v_xor_b32 v14, v14, v3
    v_lshlrev_b32 v14, 4, v14
    v_lshl_add_u32 v{VKM0}, v4, 9, v14
    v_xor_b32 v14, 8, v3
    v_lshlrev_b32 v14, 4, v14
    v_lshl_add_u32 v14, v4, 3, v14
    v_add_u32 v{VKT0}, 1024, v14
    v_bfe_u32 v15, v2, 4, 1
    v_and_b32 v{T}, 3, v2
    v_lshlrev_b32 v{T+1}, 1, v15
    v_sub_u32 v{T+1}, 3, v{T+1}
    v_min_u32 v{T}, v{T}, v{T+1}
    v_lshl_add_u32 v{T}, v15, 2, v{T}
    v_lshrrev_b32 v{T+1}, 1, v{T}
    v_and_b32 v{T}, 1, v{T}
    v_bfe_u32 v14, v2, 2, 2
    v_lshl_add_u32 v14, v4, 2, v14
    v_lshlrev_b32 v{T+2}, 2, v{T+1}
    v_xor_b32 v14, v14, v{T+2}
    v_lshlrev_b32 v14, 4, v14
    v_lshl_add_u32 v14, v{T+1}, 9, v14
    v_lshl_add_u32 v14, v{T}, 3, v14
    v_add_u32 v{VV0}, 12288, v14
    v_xor_b32 v{VV0+1}, 128, v{VV0}
    s_and_b32 s8, s7, 7
    s_lshr_b32 s9, s7, 3
    s_mul_i32 s59, s9, {HSTG}
    s_bfe_u32 s10, s7, 0x10002
    s_lshl_b32 s10, s10, 5
    s_add_u32 s10, s10, 32
    s_add_u32 s10, s10, s5
    s_mul_i32 s10, s10, 98304
    s_mul_i32 s11, s9, 49152
    s_add_u32 s10, s10, s11
    s_and_b32 s11, s7, 3
    s_mul_i32 s11, s11, 3072
    s_add_u32 s10, s10, s11
    v_lshl_add_u32 v{VDMA}, v2, 4, s10
    s_mul_i32 s53, s7, 3072
    s_lshl_b32 s10, s6, 3
    s_add_u32 s10, s10, s8
    s_lshl_b32 s54, s10, 5
    s_mul_i32 s10, s10, 1536
    s_mul_i32 s11, s5, 98304
    s_add_u32 s55, s10, s11
    s_mov_b32 s64, -1
    s_mov_b32 s65, 0
    s_mov_b32 s66, 0
    s_mov_b32 s67, -1
    s_mov_b32 s56, 0
    v_mov_b32 v{T}, 0
    v_mov_b32 v{T+1}, {FLAG}
    ds_write_b32 v{T+1}, v{T}
    s_waitcnt lgkmcnt(0)
    """)
    stamp(a, 0); stamp_rt(a, 1)
    srd(a, 40, P_WS, WS_QKV, 96*98304)
    srd(a, 48, P_WS, WS_O, 2048*1280)
    def dma(c):
        a(f"s_mov_b32 s57, {c*12288}")
        a(f"s_add_u32 m0, s53, {(c % NSTG)*STG}")
        a("s_nop 0")
        for i in range(3):
            a(f"buffer_load_dwordx4 v{VDMA}, s[40:43], s57 offen offset:{i*1024} lds")
    a(f"""
    buffer_load_dwordx4 {vr(QM,4)}, v{VKM0}, s[40:43], s55 offen
    buffer_load_dwordx2 {vr(QT,2)}, v{VKT0}, s[40:43], s55 offen
    """)
    a.label("L_att_restart")
    a("s_bitcmp1_b32 s7, 1")
    a("s_cbranch_scc1 L_att_late")
    dma(0)
    a.label("L_att_late")
    prep.setup(a, "L_attp", 0, 22, 23, S)
    for r in range(16):
        a(f"v_mov_b32 v{O+r}, 0")
    for r in range(4):
        a(f"v_mov_b32 v{P+4+r}, 0")
        a(f"v_mov_b32 v{VF+4+r}, 0")
    a(f"v_mov_b32 v{S+16+14}, 0")
    a(f"v_mov_b32 v{S+16+15}, 0")
    a(f"""
    v_add_u32 v{VKM}, s59, v{VKM0}
    v_add_u32 v{VKT}, s59, v{VKT0}
    s_mov_b32 s52, 0
    s_mov_b32 s58, s59
    s_mov_b32 s60, 12288
    s_add_u32 s61, s53, {STG}
    s_waitcnt vmcnt(0)
    """)
    stamp(a, 5)
    a(f"""
    s_barrier
    s_bitcmp0_b32 s7, 1
    s_cbranch_scc1 L_att_early
    """)
    dma(0)
    a.label("L_att_early")
    a(f"""
    s_cmp_lg_u32 s56, 0
    s_cbranch_scc1 L_att_have_m
    ds_read_b128 {vr(KM,4)}, v{VKM0}
    ds_read_b64 {vr(KT,2)}, v{VKT0}
    s_mov_b64 exec, s[66:67]
    v_mov_b32 v{QT}, 0
    v_mov_b32 v{QT+1}, 0
    s_mov_b64 exec, -1
    s_waitcnt lgkmcnt(0)
    s_nop 1
    v_mfma_f32_32x32x16_bf16 {vr(S,16)}, {vr(KM,4)}, {vr(QM,4)}, 0
    v_mfma_f32_32x32x8_bf16 {vr(S,16)}, {vr(KT,2)}, {vr(QT,2)}, {vr(S,16)}
    s_nop 15
    v_max3_f32 v{T}, v{S}, v{S+1}, v{S+2}
    """)
    for r in range(3, 15, 2):
        a(f"v_max3_f32 v{T}, v{T}, v{S+r}, v{S+r+1}")
    a(f"v_max_f32 v{T}, v{T}, v{S+15}")
    a.label("L_att_set_m")
    a(f"""
    v_mov_b32 v{T+1}, v{T}
    s_nop 1
    v_permlane32_swap_b32 v{T}, v{T+1}
    s_nop 1
    v_max_f32 v{T}, v{T}, v{T+1}
    v_xor_b32 v{T}, 0x80000000, v{T}
    v_and_b32 v{T+1}, 0xffff0000, v{T}
    v_sub_f32 v{T}, v{T}, v{T+1}
    v_and_b32 v{T+2}, 0xffff0000, v{T}
    v_sub_f32 v{T}, v{T}, v{T+2}
    v_lshrrev_b32 v{T+1}, 16, v{T+1}
    s_mov_b64 exec, s[66:67]
    v_or_b32 v{QT}, v{T+1}, v{T+2}
    v_lshrrev_b32 v{QT+1}, 16, v{T}
    s_mov_b64 exec, -1
    s_cmp_lg_u32 s56, 0
    s_cbranch_scc1 L_att_restart
    """)
    a.label("L_att_have_m")
    a(f"""
    ds_read_b128 {vr(KM,4)}, v{VKM}
    ds_read_b64 {vr(KT,2)}, v{VKT}
    ds_read_b128 {vr(KM+4,4)}, v{VKM} offset:1536
    ds_read_b64 {vr(KT+2,2)}, v{VKT} offset:1536
    s_waitcnt lgkmcnt(2)
    v_mfma_f32_32x32x16_bf16 {vr(S,16)}, {vr(KM,4)}, {vr(QM,4)}, 0
    v_mfma_f32_32x32x8_bf16 {vr(S,16)}, {vr(KT,2)}, {vr(QT,2)}, {vr(S,16)}
    s_nop 15
    """)
    stamp(a, 2)
    a.raw(".p2align 6")
    a.label("L_att_loop")
    for t in range(8):
        Sc = S + (t & 1)*16
        Sn = S + ((t+1) & 1)*16
        kb_use = (t+1) & 1
        kb_ld = t & 1
        e = lambda i: a(f"v_exp_f32 v{Sc+i}, v{Sc+i}")
        c = lambda i: a(f"v_cvt_pk_bf16_f32 v{P+i}, v{Sc+2*i}, v{Sc+2*i+1}")
        if PRIO and t % 2 == 0 and t != 6:
            a(f"s_setprio {2 - t//2}")
        e(0)
        a(f"v_cvt_pk_bf16_f32 v{P+7}, v{Sn+14}, v{Sn+15}")
        if t == 0:
            a(f"v_add_u32 v{VV}, s58, v{VV0}")
            a(f"v_add_u32 v{VV+1}, s58, v{VV0+1}")
        e(1)
        a("s_waitcnt lgkmcnt(2)")
        a(f"v_mfma_f32_32x32x16_bf16 {vr(O,16)}, {vr(VF+4,4)}, {vr(P+4,4)}, {vr(O,16)}")
        if t == 6:
            lab = a.newlabel("nodma")
            a(f"""
            s_add_u32 s58, s58, {STG}
            s_cmp_ge_u32 s58, {NSTG*STG}
            s_cselect_b32 s58, s59, s58
            v_add_u32 v{VKM}, s58, v{VKM0}
            v_add_u32 v{VKT}, s58, v{VKT0}
            s_cmp_eq_u32 s52, 0
            s_cselect_b32 s12, s62, 0
            s_cmp_lg_u32 s12, 0
            s_waitcnt vmcnt(8)
            s_cbranch_scc1 {lab}
            s_waitcnt vmcnt(0)
            """)
            a.label(lab)
            a(f"""
            s_barrier
            s_add_u32 s60, s60, 12288
            s_add_u32 s61, s61, {STG}
            s_cmp_ge_u32 s61, {NSTG*STG}
            s_cselect_b32 s61, s53, s61
            """)
            lab3 = a.newlabel("nos2")
            a(f"s_cmp_lg_u32 s52, 2")
            a(f"s_cbranch_scc1 {lab3}")
            prep.stage2(a, "L_attp", 23, T+4, PART, 1)
            a.label(lab3)
            lab4 = a.newlabel("nos1")
            a(f"s_cmp_lg_u32 s52, 1")
            a(f"s_cbranch_scc1 {lab4}")
            prep.stage1(a, "L_attp", 22, T+4, PART, 1)
            a.label(lab4)
            lab2 = a.newlabel("nopf")
            a(f"""
            s_cmp_lg_u32 s52, 2
            s_cbranch_scc1 {lab2}
            s_lshr_b32 s12, s2, 3
            s_lshl_b32 s12, s12, 4
            s_add_u32 s12, s12, s7
            s_lshr_b32 s13, s3, 2
            """)
            if PF & 1:
                l2_prefetch(a, 44, WS_WT2, WT2_BYTES//2, 9, 12, T+4, T+5, 14, 13)
                l2_prefetch(a, 44, WS_WT3, WT3_BYTES//2, 9, 12, T+4, T+5, 14, 13)
            if PF & 8:
                l2_prefetch(a, 44, WS_WT4, WT4_BYTES//2, 9, 12, T+4, T+5, 14, 13)
            a.label(lab2)
            if PRIO: a("s_setprio 3")
        if t == 2:
            lab = a.newlabel("nobar")
            a(f"""
            s_cmp_lg_u32 s52, 0
            s_cbranch_scc1 {lab}
            s_waitcnt vmcnt(2)
            s_barrier
            """)
            a.label(lab)
        if t == 3:
            lab = a.newlabel("nold")
            a(f"s_cmp_lg_u32 s52, 0")
            a(f"s_cbranch_scc1 {lab}")
            prep.issue_loads(a, "L_attp", 0)
            a.label(lab)
        if t < 3:
            lab = a.newlabel("nodma")
            a(f"""
            s_cmp_eq_u32 s52, 3
            s_cbranch_scc1 {lab}
            s_mov_b32 m0, s61
            s_nop 0
            buffer_load_dwordx4 v{VDMA}, s[40:43], s60 offen offset:{t*1024} lds
            """)
            a.label(lab)
        for j in range(2):
            for i in range(2):
                a(f"ds_read_b64_tr_b16 {vr(VF+4*j+2*i,2)}, v{VV+i} offset:{t*1536 + j*256}")
        kt = (t+2) % 8
        a(f"ds_read_b128 {vr(KM+4*kb_ld,4)}, v{VKM} offset:{kt*1536}")
        a(f"ds_read_b64 {vr(KT+2*kb_ld,2)}, v{VKT} offset:{kt*1536}")
        e(2); c(0); e(3); e(4); c(1)
        a("s_waitcnt lgkmcnt(6)")
        a(f"v_mfma_f32_32x32x16_bf16 {vr(Sn,16)}, {vr(KM+4*kb_use,4)}, {vr(QM,4)}, 0")
        e(5); e(6); c(2); e(7); e(8); c(3)
        a(f"v_mfma_f32_32x32x8_bf16 {vr(Sn,16)}, {vr(KT+2*kb_use,2)}, {vr(QT,2)}, {vr(Sn,16)}")
        e(9); e(10); c(4); e(11)
        a("s_waitcnt lgkmcnt(4)")
        a(f"v_mfma_f32_32x32x16_bf16 {vr(O,16)}, {vr(VF,4)}, {vr(P,4)}, {vr(O,16)}")
        e(12); c(5); e(13); e(14); c(6); e(15)
    a("""
    s_add_u32 s52, s52, 1
    s_cmp_lt_u32 s52, 4
    s_cbranch_scc1 L_att_loop
    """)
    stamp(a, 3)
    a(f"""
    s_nop 0
    v_cvt_pk_bf16_f32 v{P+7}, v{S+16+14}, v{S+16+15}
    s_waitcnt lgkmcnt(0)
    s_nop 1
    v_mfma_f32_32x32x16_bf16 {vr(O,16)}, {vr(VF+4,4)}, {vr(P+4,4)}, {vr(O,16)}
    s_mul_i32 s10, s8, 3072
    s_add_u32 s10, s10, {STG}
    v_lshl_add_u32 v{T+3}, v2, 4, s10
    v_add_u32 v13, s54, v3
    v_lshrrev_b32 v14, 4, v13
    v_mul_u32_u24 v14, 20480, v14
    v_and_b32 v13, 15, v13
    v_lshl_add_u32 v14, v13, 4, v14
    v_lshl_add_u32 v15, v4, 8, v14
    s_lshl_b32 s10, s5, 9
    s_lshr_b32 s11, s5, 1
    s_lshl_b32 s11, s11, 8
    s_and_b32 s12, s5, 1
    s_lshl_b32 s12, s12, 3
    s_add_u32 s11, s11, s12
    s_add_u32 s11, s11, 16384
    s_nop 4
    s_cmp_eq_u32 s9, 0
    s_cbranch_scc1 L_att_lower
    ds_write_b128 v{T+3}, {vr(O,4)}
    ds_write_b128 v{T+3}, {vr(O+4,4)} offset:1024
    ds_write_b128 v{T+3}, {vr(O+8,4)} offset:2048
    s_waitcnt lgkmcnt(0)
    s_barrier
    s_branch L_att_join
    """)
    a.label("L_att_lower")
    a(f"""
    s_barrier
    ds_read_b128 {vr(S,4)}, v{T+3}
    ds_read_b128 {vr(S+4,4)}, v{T+3} offset:1024
    ds_read_b128 {vr(S+8,4)}, v{T+3} offset:2048
    s_waitcnt lgkmcnt(0)
    """)
    for r in range(0, 12, 2):
        a(f"v_pk_add_f32 {vr(O+r,2)}, {vr(O+r,2)}, {vr(S+r,2)}")
    a(f"""
    v_mov_b32 v{T}, v{O+8}
    v_mov_b32 v{T+1}, v{O+8}
    v_mul_f32 v{T+2}, 0, v{O}
    s_nop 0
    v_permlane32_swap_b32 v{T}, v{T+1}
    """)
    for r in range(1, 12):
        a(f"v_fma_f32 v{T+2}, 0, v{O+r}, v{T+2}")
    a(f"v_rcp_f32 v{T+1}, v{T+1}")
    a(f"v_cmp_u_f32 vcc, v{T+2}, v{T+2}")
    for r in range(12):
        a(f"v_mul_f32 v{O+r}, v{O+r}, v{T+1}")
    for r in range(6):
        a(f"v_cvt_pk_bf16_f32 v{P+r}, v{O+2*r}, v{O+2*r+1}")
    a(f"""
    buffer_store_dwordx4 {vr(P,4)}, v15, s[48:51], s10 offen
    s_mov_b64 exec, s[64:65]
    buffer_store_dwordx2 {vr(P+4,2)}, v14, s[48:51], s11 offen
    s_mov_b64 exec, -1
    s_cbranch_vccz L_att_join
    v_mov_b32 v{T+1}, {FLAG}
    v_mov_b32 v{T}, 1
    ds_write_b32 v{T+1}, v{T}
    """)
    a.label("L_att_join")
    a(f"""
    s_cmp_lg_u32 s56, 0
    s_cbranch_scc1 L_att_done
    v_mov_b32 v{T+1}, {FLAG}
    s_waitcnt lgkmcnt(0)
    s_barrier
    ds_read_b32 v{T}, v{T+1}
    s_waitcnt lgkmcnt(0)
    v_readfirstlane_b32 s10, v{T}
    s_nop 3
    s_cmp_eq_u32 s10, 0
    s_cbranch_scc1 L_att_done
    """)
    a(f"""
    s_mov_b32 s56, 1
    s_mov_b64 exec, s[66:67]
    v_mov_b32 v{QT}, 0
    v_mov_b32 v{QT+1}, 0
    s_mov_b64 exec, -1
    v_mov_b32 v{T}, 0xff800000
    s_add_u32 s10, s5, 32
    s_mul_i32 s10, s10, 98304
    s_mov_b32 s11, 64
    """)
    a.label("L_att_maxloop")
    a(f"""
    buffer_load_dwordx4 {vr(KM,4)}, v{VKM0}, s[40:43], s10 offen
    buffer_load_dwordx2 {vr(KT,2)}, v{VKT0}, s[40:43], s10 offen
    s_waitcnt vmcnt(0)
    v_mfma_f32_32x32x16_bf16 {vr(S,16)}, {vr(KM,4)}, {vr(QM,4)}, 0
    v_mfma_f32_32x32x8_bf16 {vr(S,16)}, {vr(KT,2)}, {vr(QT,2)}, {vr(S,16)}
    s_nop 15
    """)
    for r in range(0, 16, 2):
        a(f"v_max3_f32 v{T}, v{T}, v{S+r}, v{S+r+1}")
    a("""
    s_add_u32 s10, s10, 1536
    s_sub_u32 s11, s11, 1
    s_cmp_lg_u32 s11, 0
    s_cbranch_scc1 L_att_maxloop
    s_branch L_att_set_m
    """)
    a.label("L_att_done")
    stamp_flush(a, 1, 8)
    a.label("L_att_exit")
    a("s_endpgm")
    return [("atta_kernel", 128), ("attb_kernel", 128)]
```

```python
from asmlib import *
from layout import *
import struct

def f32(x):
    return "0x%08x" % struct.unpack("<I", struct.pack("<f", x))[0]

QSCALE = 1.4426950408889634 / (20 ** 0.5)
NCH = 20
RING = 8
import os
DIST = int(os.environ.get('D13', 4))
RAMP = int(os.environ.get('R13', DIST))

def tile_map16(a):
    a("""
    s_and_b32 s3, s2, 7
    s_lshr_b32 s4, s2, 3
    s_and_b32 s5, s3, 3
    s_lshl_b32 s5, s5, 2
    s_and_b32 s8, s4, 3
    s_add_u32 s5, s5, s8
    s_lshr_b32 s6, s3, 2
    s_lshl_b32 s6, s6, 3
    s_lshr_b32 s8, s4, 2
    s_add_u32 s6, s6, s8
    v_lshrrev_b32 v1, 6, v0
    v_and_b32 v2, 63, v0
    s_nop 0
    v_readfirstlane_b32 s7, v1
    """)

def loader_loop(a, issue, ninstr, nch, dist, kid, ramp=None):
    ramp = dist if ramp is None else ramp
    nxt = 0
    for c in range(min(ramp, nch)):
        issue(c); nxt += 1
    for c in range(nch):
        a(f"s_waitcnt vmcnt({ninstr * (nxt - 1 - c)})")
        if c == 0: stamp(a, 2)
        if c == nch//2: stamp(a, 4)
        a("s_barrier")
        while nxt < nch and nxt <= c + dist and nxt < c + 1 + max(ramp, 0) + (c + 1):
            issue(nxt); nxt += 1
    stamp(a, 3)
    stamp_flush(a, kid, 8)
    a("s_endpgm")

def x_loader(a, stage_bytes):
    a(f"""
    s_lshl_b32 s10, s5, 2
    s_lshl_b32 s11, s9, 1
    s_add_u32 s10, s10, s11
    s_mul_i32 s10, s10, 40960
    v_lshl_add_u32 v8, v2, 4, s10
    v_add_u32 v9, 40960, v8
    s_lshl_b32 s57, s9, 12
    """)
    def issue(c):
        a(f"s_mov_b32 s58, {c*2048}")
        for t in range(2):
            a(f"s_add_u32 m0, s57, {(c % RING) * stage_bytes + t * 2048}")
            a("s_nop 0")
            for i in range(2):
                a(f"buffer_load_dwordx4 v{8+t}, s[40:43], s58 offen offset:{i*1024} lds")
    return issue

def w_loader(a, stage_bytes, nnt, wt_off, wt_bytes):
    n = 2 * nnt
    srd(a, 52, P_WS, wt_off, wt_bytes)
    a(f"""
    s_mul_i32 s10, s6, {41*n*1024}
    s_mul_i32 s11, s9, {n*1024}
    s_add_u32 s10, s10, s11
    v_lshl_add_u32 v8, v2, 4, s10
    v_add_u32 v9, 4096, v8
    s_add_u32 s57, s11, 8192
    """)
    def issue(c):
        a(f"s_mov_b32 s58, {c*2*n*1024}")
        for g in range((n + 3) // 4):
            a(f"s_add_u32 m0, s57, {(c % RING) * stage_bytes + g * 4096}")
            a("s_nop 0")
            for i in range(min(4, n - 4*g)):
                a(f"buffer_load_dwordx4 v{8+g}, s[52:55], s58 offen offset:{i*1024} lds")
    return issue, n

def compute_setup(a, nnt, VX, VW, XW, ST, stage_bytes, per_set, wt_off, wt_bytes, st_off):
    nset = (RING + per_set - 1) // per_set
    a(f"""
    s_lshr_b32 s8, s7, 1
    s_and_b32 s9, s7, 1
    v_and_b32 v3, 31, v2
    v_lshrrev_b32 v4, 5, v2
    """)
    srd(a, 52, P_WS, wt_off, wt_bytes)
    srd(a, 56, P_WS, st_off, 2048*64)
    a(f"""
    s_mul_i32 s10, s6, {41*2*nnt*1024}
    s_mul_i32 s11, s9, {nnt*1024}
    s_add_u32 s10, s10, s11
    s_add_u32 s10, s10, {40*2*nnt*1024}
    v_lshlrev_b32 v5, 4, v2
    s_lshl_b32 s13, s5, 7
    s_lshl_b32 s14, s8, 6
    s_add_u32 s12, s13, s14
    v_add_u32 v6, s12, v3
    v_lshlrev_b32 v6, 6, v6
    v_lshl_add_u32 v6, v4, 5, v6
    """)
    for mt in range(2):
        for i in range(2):
            a(f"buffer_load_dwordx4 {vr(ST+8*mt+4*i,4)}, v6, s[56:59], 0 offen offset:{mt*2048 + i*16}")
    for nt in range(nnt):
        a(f"buffer_load_dwordx4 {vr(XW+4*nt,4)}, v5, s[52:55], s10 offen offset:{nt*1024}")
    a(f"""
    s_add_u32 s11, s11, 8192
    v_add_u32 v{VW}, s11, v5
    s_lshl_b32 s14, s8, 12
    v_add_u32 v{VX}, s14, v5
    """)
    for s in range(1, nset):
        a(f"v_add_u32 v{VW+s}, {s*per_set*stage_bytes}, v{VW}")
        a(f"v_add_u32 v{VX+s}, {s*per_set*stage_bytes}, v{VX}")

def half_sum(a, v, t):
    a(f"v_mov_b32 v{t}, v{v}")
    a("s_nop 1")
    a(f"v_permlane32_swap_b32 v{v}, v{t}")
    a("s_nop 1")
    a(f"v_add_f32 v{v}, v{v}, v{t}")

def stats_finish(a, ST, RS, XM, T):
    a(f"s_mov_b32 s10, {f32(1.0/640)}")
    for mt in range(2):
        s = ST + 8*mt
        a(f"""
        v_pk_add_f32 {vr(s,2)}, {vr(s,2)}, {vr(s+2,2)}
        v_pk_add_f32 {vr(s+4,2)}, {vr(s+4,2)}, {vr(s+6,2)}
        v_pk_add_f32 {vr(s,2)}, {vr(s,2)}, {vr(s+4,2)}
        """)
        half_sum(a, s, T); half_sum(a, s+1, T)
        x = XM + 4*mt
        a(f"""
        v_mul_f32 v{s}, s10, v{s}
        v_mul_f32 v{s+1}, s10, v{s+1}
        v_fma_f32 v{s+1}, -v{s}, v{s}, v{s+1}
        v_max_f32 v{s+1}, 0, v{s+1}
        v_add_f32 v{s+1}, {f32(1e-5)}, v{s+1}
        v_rsq_f32 v{RS+mt}, v{s+1}
        v_xor_b32 v{s}, 0x80000000, v{s}
        v_and_b32 v{s+2}, 0xffff0000, v{s}
        v_sub_f32 v{s}, v{s}, v{s+2}
        v_lshrrev_b32 v{x+1}, 16, v{s+2}
        v_cvt_pk_bf16_f32 v{s+3}, 0, v{s}
        v_or_b32 v{x}, v{x+1}, v{s+3}
        v_mov_b32 v{x+3}, v{x+1}
        v_mov_b32 v{x+2}, v{x}
        """)

PFS3 = int(os.environ.get('PFS3', 24))
def main_loop(a, nnt, VX, VW, FX, FW, ACC, stage_bytes, per_set, pre, hooks={}):
    NB = 3
    def reads(s):
        c, ks = s // 2, s % 2
        buf = s % NB
        st = c % RING
        sset, sin = st // per_set, st % per_set
        for mt in range(2):
            a(f"ds_read_b128 {vr(FX + (buf*2+mt)*4, 4)}, v{VX + sset} offset:{sin*stage_bytes + mt*2048 + ks*1024}")
        for nt in range(nnt):
            a(f"ds_read_b128 {vr(FW + (buf*nnt+nt)*4, 4)}, v{VW + sset} offset:{sin*stage_bytes + (ks*2*nnt + nt)*1024}")
    nreads = 2 + nnt
    pre()
    a("s_barrier")
    stamp(a, 2)
    reads(0); reads(1)
    NS = 2*NCH
    for s in range(NS):
        buf = s % NB
        a(f"s_waitcnt lgkmcnt({nreads if s + 1 < NS else 0})")
        if s % 2 == 0 and s // 2 + 1 < NCH:
            a("s_barrier")
            if s // 2 + 1 == NCH // 2: stamp(a, 4)
        first = True
        for nt in range(nnt):
            for mt in range(2):
                acc = ACC + (nt*2+mt)*16
                a(f"v_mfma_f32_32x32x16_bf16 {vr(acc,16)}, {vr(FW + (buf*nnt+nt)*4, 4)}, {vr(FX + (buf*2+mt)*4, 4)}, {vr(acc,16)}")
                if first and s + 2 < NS:
                    reads(s + 2)
                first = False
        if s in hooks: hooks[s]()
    stamp(a, 3)

def extra_kstep(a, nnt, XW, XM, ACC, ST, RS, T):
    a(f"s_waitcnt vmcnt({nnt})")
    stats_finish(a, ST, RS, XM, T)
    a("s_waitcnt vmcnt(0)")
    for nt in range(nnt):
        for mt in range(2):
            acc = ACC + (nt*2+mt)*16
            a(f"v_mfma_f32_32x32x16_bf16 {vr(acc,16)}, {vr(XW+4*nt,4)}, {vr(XM+4*mt,4)}, 0")

def g1_epilogue_setup(a):
    srd(a, 48, P_WS, WS_QKV, 96*98304)
    a(f"""
    s_lshr_b32 s68, s12, 5
    s_mul_i32 s68, s68, 1536
    s_mul_i32 s10, s6, 6
    s_mul_i32 s11, s9, 3
    s_add_u32 s10, s10, s11
    s_mov_b32 s15, {f32(QSCALE)}
    """)
    for i in range(3):
        a(f"""
        s_add_u32 s11, s10, {i}
        s_mul_i32 s{61+i}, s11, 98304
        s_add_u32 s{61+i}, s{61+i}, s68
        s_cmp_lt_u32 s11, 32
        s_cselect_b32 s{12+i}, s15, 1.0
        s_cmp_lt_u32 s11, 64
        s_movk_i32 s{88+2*i}, 0x3f80
        s_cselect_b32 s{88+2*i}, 0x3f803f80, s{88+2*i}
        s_cselect_b32 s{89+2*i}, 0x3f80, 0
        """)
    LO, HI = "s[64:65]", "s[66:67]"
    a(f"""
    s_mov_b32 s64, -1
    s_mov_b32 s65, 0
    s_mov_b32 s66, 0
    s_mov_b32 s67, -1
    v_lshlrev_b32 v26, 4, v3
    v_xor_b32 v27, 128, v26
    v_add_u32 v27, 1024, v27
    v_mov_b32 v21, s13
    v_mov_b32 v22, s14
    v_mov_b32 v23, v26
    v_add_u32 v24, 98304, v26
    v_mov_b32 v25, v27
    s_mov_b64 exec, {HI}
    v_mov_b32 v21, s12
    v_mov_b32 v22, s13
    v_xor_b32 v23, 64, v26
    v_add_u32 v23, 512, v23
    v_mov_b32 v24, v27
    v_mov_b32 v25, v23
    s_mov_b64 exec, -1
    """)

def gen_g1(a):
    for name, off in (("g1b_kernel", WS_XB),):
        kernel_header(a, name)
        a("s_cmp_ge_u32 s2, 256")
        a("s_cbranch_scc1 L_g1_exit")
        load_ptrs(a)
        tile_map16(a)
        a("s_waitcnt lgkmcnt(0)")
        srd(a, 40, P_WS, off, 2048*1280)
        a("s_branch L_g1_body")
    a.label("L_g1_exit")
    a("s_endpgm")
    a.label("L_g1_body")
    stamp(a, 0); stamp_rt(a, 1)
    STAGE = 16384
    a("s_cmp_lt_u32 s7, 4")
    a("s_cbranch_scc1 L_g1_compute")
    a("s_sub_u32 s9, s7, 4")
    a("s_cmp_ge_u32 s9, 2")
    a("s_cbranch_scc1 L_g1_wload")
    loader_loop(a, x_loader(a, STAGE), 4, NCH, DIST, 0, RAMP)
    a.label("L_g1_wload")
    a("s_sub_u32 s9, s9, 2")
    iss, n = w_loader(a, STAGE, 2, WS_WT1, WT1_BYTES)
    loader_loop(a, iss, n, NCH, DIST, 0, RAMP)
    a.label("L_g1_compute")
    VX, VW, RS, FX, FW, ACC = 8, 12, 18, 32, 56, 80
    XW, ST, XM, T = 144, 152, 168, 20
    compute_setup(a, 2, VX, VW, XW, ST, STAGE, 4, WS_WT1, WT1_BYTES, WS_ST1)
    g1_epilogue_setup(a)
    main_loop(a, 2, VX, VW, FX, FW, ACC, STAGE, 4, lambda: extra_kstep(a, 2, XW, XM, ACC, ST, RS, T))
    a.label("L_g1_epilogue")
    LO, HI = "s[64:65]", "s[66:67]"
    PK = 32
    for mt in range(2):
        for d, sc in ((8, "s12"), (10, "s13"), (12, "s14"), (14, "v21"), (28, "v22")):
            a(f"v_mul_f32 v{d}, {sc}, v{RS+mt}")
            a(f"v_mul_f32 v{d+1}, {sc}, v{RS+mt}")
        if mt == 0:
            a("s_nop 4")
        pk = PK + 16*mt
        def pos(nt, aa, rs, dst):
            acc = ACC + (nt*2+mt)*16 + aa*4
            a(f"v_pk_mul_f32 {vr(acc,2)}, {vr(acc,2)}, {vr(rs,2)}")
            a(f"v_pk_mul_f32 {vr(acc+2,2)}, {vr(acc+2,2)}, {vr(rs,2)}")
            a(f"v_cvt_pk_bf16_f32 v{dst}, v{acc}, v{acc+1}")
            a(f"v_cvt_pk_bf16_f32 v{dst+1}, v{acc+2}, v{acc+3}")
        off = f"offset:{mt*1536}"
        pos(0, 0, 8, pk); pos(0, 1, 8, pk+2)
        a(f"buffer_store_dwordx4 {vr(pk,4)}, v23, s[48:51], s61 offen {off}")
        pos(1, 0, 12, pk+4); pos(1, 1, 12, pk+6)
        a(f"buffer_store_dwordx4 {vr(pk+4,4)}, v23, s[48:51], s63 offen {off}")
        pos(0, 2, 14, pk+8); pos(0, 3, 10, pk+10)
        a(f"""
        s_mov_b64 exec, {HI}
        v_mov_b32 v{pk+10}, s88
        v_mov_b32 v{pk+11}, s89
        s_mov_b64 exec, -1
        buffer_store_dwordx4 {vr(pk+8,4)}, v24, s[48:51], s61 offen {off}
        """)
        pos(1, 2, 10, pk+12); pos(1, 3, 28, pk+14)
        t = 64 + 4*mt
        a(f"""
        s_mov_b64 exec, {LO}
        v_mov_b32 v{t}, v{pk+14}
        v_mov_b32 v{t+1}, v{pk+15}
        v_mov_b32 v{t+2}, s92
        v_mov_b32 v{t+3}, s93
        v_mov_b32 v{pk+14}, s90
        v_mov_b32 v{pk+15}, s91
        buffer_store_dwordx4 {vr(t,4)}, v25, s[48:51], s63 offen {off}
        s_mov_b64 exec, -1
        buffer_store_dwordx4 {vr(pk+12,4)}, v25, s[48:51], s62 offen {off}
        """)
    stamp_flush(a, 0, 8)
    a("s_endpgm")
    return [("g1b_kernel", 176)]

def gen_g3(a):
    kernel_header(a, "g3_kernel")
    a("s_cmp_ge_u32 s2, 256")
    a("s_cbranch_scc1 L_g3_exit")
    load_ptrs(a)
    tile_map16(a)
    a("s_waitcnt lgkmcnt(0)")
    srd(a, 40, P_WS, WS_XA, 2048*1280)
    stamp(a, 0); stamp_rt(a, 1)
    STAGE = 20480
    a("s_cmp_lt_u32 s7, 4")
    a("s_cbranch_scc1 L_g3_compute")
    a("s_sub_u32 s9, s7, 4")
    a("s_cmp_ge_u32 s9, 2")
    a("s_cbranch_scc1 L_g3_wload")
    loader_loop(a, x_loader(a, STAGE), 4, NCH, DIST, 3, RAMP)
    a.label("L_g3_exit")
    a("s_endpgm")
    a.label("L_g3_wload")
    a("s_sub_u32 s9, s9, 2")
    iss, n = w_loader(a, STAGE, 3, WS_WT3, WT3_BYTES)
    loader_loop(a, iss, n, NCH, DIST, 3, RAMP)
    a.label("L_g3_compute")
    VX, VW, RS, FX, FW, ACC = 8, 12, 18, 24, 48, 84
    XW, ST, XM, T = 180, 192, 208, 20
    compute_setup(a, 3, VX, VW, XW, ST, STAGE, 3, WS_WT3, WT3_BYTES, WS_ST3)
    srd(a, 48, P_WS, WS_H, 2048*3072)
    a(f"""
    v_add_u32 v21, s12, v3
    v_lshrrev_b32 v22, 4, v21
    v_mul_u32_u24 v22, 49152, v22
    v_and_b32 v21, 15, v21
    v_lshl_add_u32 v22, v21, 4, v22
    v_lshl_add_u32 v22, v4, 8, v22
    v_add_u32 v23, {2*49152}, v22
    s_mul_i32 s10, s6, 6
    s_mul_i32 s11, s9, 3
    s_add_u32 s10, s10, s11
    s_lshl_b32 s61, s10, 9
    """)
    def pre3():
        extra_kstep(a, 3, XW, XM, ACC, ST, RS, T)
        a("""
        s_lshl_b32 s12, s4, 2
        s_add_u32 s12, s12, s7
        s_lshr_b32 s13, s3, 2
        """)
        if PF & 2:
            n = l2_prefetch_setup(a, 44, WS_WT4, WT4_BYTES//2, 128, 12, 5, 14, 13)
            assert n == 1
            hooks[PFS3] = lambda: l2_touch(a, 44, 5, 6, 14)
    hooks = {}
    main_loop(a, 3, VX, VW, FX, FW, ACC, STAGE, 3, pre3, hooks)
    for mt in range(2):
        a(f"v_mul_f32 v{8+2*mt}, v{RS+mt}, v{RS+mt}")
        a(f"v_mul_f32 v{9+2*mt}, v{RS+mt}, v{RS+mt}")
    a("s_nop 7")
    PK = 24
    for nt in range(3):
        for mt in range(2):
            acc = ACC + (nt*2+mt)*16
            dst = PK + (mt*3+nt)*4
            for r in range(8):
                a(f"v_max_f32 v{acc+r}, 0, v{acc+r}")
            for r in range(0, 8, 2):
                a(f"v_pk_mul_f32 {vr(acc+8+r,2)}, {vr(acc+8+r,2)}, {vr(8+2*mt,2)}")
            for r in range(0, 8, 2):
                a(f"v_pk_mul_f32 {vr(acc+r,2)}, {vr(acc+r,2)}, {vr(acc+8+r,2)}")
            for r in range(4):
                a(f"v_cvt_pk_bf16_f32 v{dst+r}, v{acc+2*r}, v{acc+2*r+1}")
            a(f"buffer_store_dwordx4 {vr(dst,4)}, v{22+mt}, s[48:51], s61 offen offset:{nt*512}")
    stamp_flush(a, 3, 8)
    a("s_endpgm")
    return [("g3_kernel", 216)]
```

```python
from asmlib import *
from layout import *
import g13
from g13 import f32, tile_map16, half_sum

STAGE = 32768
RING = 4
NCH = 10
STATS = 131072
LDS_BYTES = STATS + 4096

def gen_g1a(a):
    kernel_header(a, "g1a_kernel")
    a("s_cmp_ge_u32 s2, 256")
    a("s_cbranch_scc1 L_g1a_exit")
    load_ptrs(a)
    tile_map16(a)
    a("s_waitcnt lgkmcnt(0)")
    stamp(a, 0); stamp_rt(a, 1)
    a("s_cmp_lt_u32 s7, 4")
    a("s_cbranch_scc1 L_g1a_compute")
    VA = 8
    a("s_cmp_ge_u32 s7, 8")
    a("s_cbranch_scc1 L_g1a_stats")
    a("s_sub_u32 s9, s7, 4")
    a("s_cmp_ge_u32 s9, 2")
    a("s_cbranch_scc1 L_g1a_wl")
    srd(a, 52, P_AX, 0, 2048*1280)
    a(f"""
    v_lshrrev_b32 v3, 3, v2
    v_and_b32 v4, 7, v2
    v_lshrrev_b32 v5, 4, v2
    v_xor_b32 v4, v4, v5
    v_mul_u32_u24 v6, 1280, v3
    v_lshl_add_u32 v6, v4, 4, v6
    v_xor_b32 v7, 64, v6
    s_lshl_b32 s10, s5, 7
    s_lshl_b32 s11, s9, 6
    s_add_u32 s10, s10, s11
    s_mul_i32 s10, s10, 1280
    s_mov_b32 s56, 128
    s_lshl_b32 s57, s9, 13
    s_mov_b64 s[62:63], -1
    """)
    for i in range(8):
        a(f"s_add_u32 s11, s10, {8*i*1280}")
        a(f"v_add_u32 v{VA+i}, s11, v{6 + (i & 1)}")
    a("s_branch L_g1a_load")
    a.label("L_g1a_wl")
    srd(a, 52, P_WQKV, 0, 640*3840)
    m = (~((1 << 15) | (1 << 19) | (1 << 39) | (1 << 59))) & ((1 << 64) - 1)
    a(f"""
    s_sub_u32 s12, s9, 2
    v_lshrrev_b32 v5, 4, v2
    v_and_b32 v4, 15, v2
    v_lshlrev_b32 v6, 2, v5
    v_sub_u32 v4, v4, v6
    v_and_b32 v4, 15, v4
    v_mul_u32_u24 v6, 3840, v5
    v_lshl_add_u32 v6, v4, 4, v6
    s_mul_i32 s10, s12, {32*3840}
    s_mul_i32 s11, s6, 240
    s_add_u32 s10, s10, s11
    s_mov_b32 s56, {64*3840}
    s_lshl_b32 s57, s12, 13
    s_add_u32 s57, s57, 16384
    s_mov_b32 s62, 0x{m & 0xffffffff:08x}
    s_mov_b32 s63, 0x{m >> 32:08x}
    """)
    for i in range(8):
        a(f"s_add_u32 s11, s10, {4*i*3840}")
        a(f"v_add_u32 v{VA+i}, s11, v6")
    a.label("L_g1a_load")
    a("s_mov_b32 s58, 0")
    a("s_mov_b64 exec, s[62:63]")
    def issue(c):
        for i in range(8):
            a(f"s_add_u32 m0, s57, {(c % RING) * STAGE + i * 1024}")
            a("s_nop 0")
            a(f"buffer_load_dwordx4 v{VA+i}, s[52:55], s58 offen lds")
        a("s_add_u32 s58, s58, s56")
    g13.loader_loop(a, issue, 8, NCH, 2, 0)
    a.label("L_g1a_stats")
    a("s_sub_u32 s9, s7, 8")
    VXR, VWR = 16, 18
    XD, WD = 24, 40
    SUM, SQ, CS, U = 56, 58, 60, 68
    a(f"""
    v_and_b32 v3, 31, v2
    v_lshrrev_b32 v4, 5, v2
    s_lshl_b32 s10, s9, 5
    v_add_u32 v5, s10, v3
    v_lshlrev_b32 v5, 7, v5
    v_lshrrev_b32 v6, 1, v3
    v_and_b32 v6, 7, v6
    v_lshlrev_b32 v7, 2, v4
    v_xor_b32 v6, v6, v7
    v_and_b32 v20, 3, v6
    v_and_b32 v6, 4, v6
    v_lshl_add_u32 v5, v6, 4, v5
    """)
    for i in range(4):
        a(f"v_xor_b32 v6, {i}, v20")
        a(f"v_lshl_add_u32 v{72+i}, v6, 4, v5")
        a(f"v_add_u32 v{76+i}, 65536, v{72+i}")
    for r in range(SUM, CS+8):
        a(f"v_mov_b32 v{r}, 0")
    for c in range(NCH):
        a("s_barrier")
        if c == 0: stamp(a, 2)
        if c == NCH//2: stamp(a, 4)
        st = c % RING
        sset, sin = st // 2, st % 2
        for i in range(4):
            a(f"ds_read_b128 {vr(XD+4*i,4)}, v{72+4*sset+i} offset:{sin*STAGE}")
        for r in range(16):
            if r % 4 == 0: a(f"s_waitcnt lgkmcnt({3 - r//4})")
            u = U + 2*(r & 1)
            a(f"v_lshlrev_b32 v{u}, 16, v{XD+r}")
            a(f"v_and_b32 v{u+1}, 0xffff0000, v{XD+r}")
            a(f"v_add_f32 v{SUM}, v{SUM}, v{u}")
            a(f"v_add_f32 v{SUM+1}, v{SUM+1}, v{u+1}")
            a(f"v_fmac_f32 v{SQ}, v{u}, v{u}")
            a(f"v_fmac_f32 v{SQ+1}, v{u+1}, v{u+1}")
    stamp(a, 3)
    a(f"v_add_f32 v{SUM}, v{SUM}, v{SUM+1}")
    a(f"v_add_f32 v{SUM+1}, v{SQ}, v{SQ+1}")
    half_sum(a, SUM, U); half_sum(a, SUM+1, U)
    a(f"""
    s_lshl_b32 s10, s9, 8
    s_add_u32 s10, s10, {STATS + 2048}
    v_lshl_add_u32 v5, v3, 3, s10
    ds_write_b64 v5, {vr(SUM,2)}
    s_waitcnt lgkmcnt(0)
    s_barrier
    """)
    stamp_flush(a, 0, 8)
    a.label("L_g1a_exit")
    a("s_endpgm")
    a.label("L_g1a_compute")
    VX, VW, RS, FX, FW, ACC = 8, 28, 18, 32, 56, 80
    CSA, ONES = 144, 160
    XW, XM, T = 56, 64, 20
    a(f"""
    s_lshr_b32 s8, s7, 1
    s_and_b32 s9, s7, 1
    v_and_b32 v3, 31, v2
    v_lshrrev_b32 v4, 5, v2
    s_lshl_b32 s13, s5, 7
    s_lshl_b32 s14, s8, 6
    s_add_u32 s12, s13, s14
    v_lshrrev_b32 v5, 1, v3
    v_and_b32 v5, 7, v5
    v_add_u32 v6, s14, v3
    v_lshlrev_b32 v6, 7, v6
    """)
    for ks in range(4):
        a(f"v_add_u32 v7, {2*ks}, v4")
        a(f"v_xor_b32 v7, v7, v5")
        a(f"v_lshl_add_u32 v{VX+ks}, v7, 4, v6")
        a(f"v_add_u32 v{VX+4+ks}, 65536, v{VX+ks}")
    a(f"""
    v_lshrrev_b32 v5, 4, v2
    v_and_b32 v5, 1, v5
    v_and_b32 v6, 3, v2
    v_lshl_add_u32 v5, v5, 2, v6
    v_lshlrev_b32 v5, 2, v5
    v_bfe_u32 v6, v2, 2, 2
    v_lshl_add_u32 v7, v4, 3, v6
    v_lshlrev_b32 v7, 8, v7
    v_add_u32 v7, 16384, v7
    s_mul_i32 s10, s9, 120
    v_lshl_add_u32 v6, v6, 6, s10
    """)
    for nt, tab in enumerate((0x76453120, 0x8E79DBCA)):
        a(f"""
        s_mov_b32 s11, 0x{tab:08x}
        v_bfe_u32 v{VW+nt}, s11, v5, 4
        v_lshl_add_u32 v{VW+nt}, v{VW+nt}, 3, v6
        v_and_b32 v{VW+nt}, 255, v{VW+nt}
        v_add_u32 v{VW+nt}, v{VW+nt}, v7
        v_add_u32 v{VW+2+nt}, 65536, v{VW+nt}
        """)
    a(f"""
    v_add_u32 v17, s14, v3
    v_lshlrev_b32 v17, 3, v17
    v_add_u32 v17, {STATS + 2048}, v17
    s_lshl_b32 s10, s9, 8
    s_add_u32 s10, s10, {STATS}
    v_lshl_add_u32 v16, v3, 2, s10
    s_lshl_b32 s11, s8, 7
    s_add_u32 s10, s10, s11
    v_lshl_add_u32 v5, v4, 4, s10
    v_mov_b32 v{ONES}, 0x3f803f80
    v_mov_b32 v{ONES+1}, 0x3f803f80
    v_mov_b32 v{ONES+2}, 0x3f803f80
    v_mov_b32 v{ONES+3}, 0x3f803f80
    """)
    g13.g1_epilogue_setup(a)
    NB = 3
    def reads(s):
        c, ks = s // 4, s % 4
        buf = s % NB
        st = c % RING
        sset, sin = st // 2, st % 2
        for mt in range(2):
            a(f"ds_read_b128 {vr(FX + (buf*2+mt)*4, 4)}, v{VX + sset*4 + ks} offset:{sin*STAGE + mt*4096}")
        for nt in range(2):
            for i in range(2):
                a(f"ds_read_b64_tr_b16 {vr(FW + (buf*2+nt)*4 + 2*i, 2)}, v{VW + sset*2 + nt} offset:{sin*STAGE + (16*ks+4*i)*256}")
    a("s_cmp_eq_u32 s8, 1")
    a("s_barrier")
    stamp(a, 2)
    reads(0); reads(1)
    NS = 4*NCH
    for s in range(NS):
        buf = s % NB
        a(f"s_waitcnt lgkmcnt({6 if s + 1 < NS else 0})")
        if s % 4 == 2 and s // 4 + 1 < NCH:
            a("s_barrier")
            if s // 4 + 1 == NCH // 2: stamp(a, 4)
        first = True
        for nt in range(2):
            for mt in range(2):
                acc = ACC + (nt*2+mt)*16
                cin = "0" if s == 0 else vr(acc, 16)
                a(f"v_mfma_f32_32x32x16_bf16 {vr(acc,16)}, {vr(FW + (buf*2+nt)*4, 4)}, {vr(FX + (buf*2+mt)*4, 4)}, {cin}")
                if first and s + 2 < NS:
                    reads(s + 2)
                first = False
        l1, l2 = a.newlabel("cs"), a.newlabel("cs")
        cin = "0" if s == 0 else vr(CSA, 16)
        a(f"s_cbranch_scc1 {l1}")
        a(f"v_mfma_f32_32x32x16_bf16 {vr(CSA,16)}, {vr(FW + (buf*2+0)*4, 4)}, {vr(ONES,4)}, {cin}")
        a(f"s_branch {l2}")
        a.label(l1)
        a(f"v_mfma_f32_32x32x16_bf16 {vr(CSA,16)}, {vr(FW + (buf*2+1)*4, 4)}, {vr(ONES,4)}, {cin}")
        a.label(l2)
    stamp(a, 3)
    a("s_nop 15")
    a("s_mov_b32 exec_lo, 1")
    a("s_mov_b32 exec_hi, 1")
    for aa in range(4):
        a(f"ds_write_b128 v5, {vr(CSA+4*aa,4)} offset:{aa*32}")
    a("s_mov_b64 exec, -1")
    a("s_waitcnt lgkmcnt(0)")
    a("s_barrier")
    for nt in range(2):
        a(f"ds_read_b32 v{FX+4*nt}, v16 offset:{nt*128}")
    a(f"ds_read_b64 {vr(FX+8,2)}, v17")
    a(f"ds_read_b64 {vr(FX+10,2)}, v17 offset:256")
    a("s_waitcnt lgkmcnt(2)")
    for nt in range(2):
        c = FX + 4*nt
        x = XW + 4*nt
        a(f"""
        v_and_b32 v{c+1}, 0xffff0000, v{c}
        v_sub_f32 v{c}, v{c}, v{c+1}
        v_cvt_pk_bf16_f32 v{x+1}, v{c}, 0
        v_lshrrev_b32 v{c+2}, 16, v{c+1}
        v_or_b32 v{x}, v{c+1}, v{c+2}
        v_mov_b32 v{x+2}, 0
        v_mov_b32 v{x+3}, 0
        """)
    a(f"""
    s_mov_b64 exec, s[66:67]
    v_mov_b32 v{XW}, 0
    v_mov_b32 v{XW+1}, 0
    v_mov_b32 v{XW+4}, 0
    v_mov_b32 v{XW+5}, 0
    s_mov_b64 exec, -1
    s_mov_b32 s10, {f32(1.0/640)}
    s_waitcnt lgkmcnt(0)
    """)
    for mt in range(2):
        s = FX + 8 + 2*mt
        t = FX + 12
        x = XM + 4*mt
        a(f"""
        v_mul_f32 v{s}, s10, v{s}
        v_mul_f32 v{s+1}, s10, v{s+1}
        v_fma_f32 v{s+1}, -v{s}, v{s}, v{s+1}
        v_max_f32 v{s+1}, 0, v{s+1}
        v_add_f32 v{s+1}, {f32(1e-5)}, v{s+1}
        v_rsq_f32 v{RS+mt}, v{s+1}
        v_xor_b32 v{s}, 0x80000000, v{s}
        v_and_b32 v{t}, 0xffff0000, v{s}
        v_sub_f32 v{s}, v{s}, v{t}
        v_lshrrev_b32 v{x+1}, 16, v{t}
        v_cvt_pk_bf16_f32 v{t+1}, 0, v{s}
        v_or_b32 v{x}, v{x+1}, v{t+1}
        v_mov_b32 v{x+3}, v{x+1}
        v_mov_b32 v{x+2}, v{x}
        """)
    a("s_nop 1")
    for nt in range(2):
        for mt in range(2):
            acc = ACC + (nt*2+mt)*16
            a(f"v_mfma_f32_32x32x16_bf16 {vr(acc,16)}, {vr(XW+4*nt,4)}, {vr(XM+4*mt,4)}, {vr(acc,16)}")
    a("s_nop 7")
    a("s_branch L_g1_epilogue")
    return [("g1a_kernel", 164)]
```

```python
from asmlib import *
from layout import *

STAGE = 18432
NST = 8
import os
DIST = int(os.environ.get('D24', 4))
RAMP = int(os.environ.get('R24', DIST))

def gen_g24(a, tag, nch, entries, wt_off, wt_bytes, ksteps_total, xoff, st_off):
    L = f"L_{tag}"
    kid = 2 if tag == "g2" else 4
    for name, (rp, ro), (op, oo) in entries:
        kernel_header(a, name)
        a("s_cmp_ge_u32 s2, 256")
        a(f"s_cbranch_scc1 {L}_exit")
        load_ptrs(a)
        a("""
        s_and_b32 s3, s2, 7
        s_lshr_b32 s4, s2, 3
        s_and_b32 s5, s3, 3
        s_lshl_b32 s5, s5, 3
        s_and_b32 s8, s4, 7
        s_add_u32 s5, s5, s8
        s_lshr_b32 s6, s3, 2
        s_lshl_b32 s6, s6, 2
        s_lshr_b32 s8, s4, 3
        s_add_u32 s6, s6, s8
        v_lshrrev_b32 v1, 6, v0
        v_and_b32 v2, 63, v0
        s_nop 0
        v_readfirstlane_b32 s7, v1
        s_waitcnt lgkmcnt(0)
        """)
        srd(a, 40, rp, ro, 2048*1280)
        srd(a, 48, op, oo, 2048*1280)
        a(f"s_mov_b32 s69, {1 if op == P_OUT else 0}")
        a(f"s_mov_b32 s70, {1 if rp == P_AX else 0}")
        a(f"s_branch {L}_body")
    a.label(f"{L}_exit")
    a("s_endpgm")
    a.label(f"{L}_body")
    stamp(a, 0); stamp_rt(a, 1)
    a("s_cmp_lt_u32 s7, 4")
    a(f"s_cbranch_scc1 {L}_compute")
    a("s_sub_u32 s9, s7, 4")
    a("s_cmp_ge_u32 s9, 2")
    a(f"s_cbranch_scc1 {L}_xload")
    def lloop(issue, n):
        import g13
        g13.loader_loop(a, issue, n, nch, DIST, kid, RAMP)
    srd(a, 52, P_WS, wt_off, wt_bytes)
    a(f"""
    s_mul_i32 s11, s9, 5120
    s_add_u32 s57, s11, 8192
    s_mul_i32 s10, s6, {ksteps_total*5120}
    s_add_u32 s10, s10, s11
    v_lshl_add_u32 v8, v2, 4, s10
    v_add_u32 v9, 4096, v8
    """)
    def w_issue(c):
        a(f"s_mov_b32 s58, {c*10240}")
        a(f"s_add_u32 m0, s57, {(c % NST) * STAGE}")
        a("s_nop 0")
        for i in range(4):
            a(f"buffer_load_dwordx4 v8, s[52:55], s58 offen offset:{i*1024} lds")
        a(f"s_add_u32 m0, s57, {(c % NST) * STAGE + 4096}")
        a("s_nop 0")
        a(f"buffer_load_dwordx4 v9, s[52:55], s58 offen lds")
    lloop(w_issue, 5)
    a.label(f"{L}_xload")
    srd(a, 52, P_WS, xoff, 128*ksteps_total*1024)
    a(f"""
    s_sub_u32 s9, s9, 2
    s_lshl_b32 s57, s9, 12
    s_lshl_b32 s10, s5, 2
    s_lshl_b32 s11, s9, 1
    s_add_u32 s10, s10, s11
    s_mul_i32 s10, s10, {ksteps_total*1024}
    v_lshl_add_u32 v8, v2, 4, s10
    v_add_u32 v9, {ksteps_total*1024}, v8
    """)
    def x_issue(c):
        a(f"s_mov_b32 s58, {c*2048}")
        for t in range(2):
            a(f"s_add_u32 m0, s57, {(c % NST) * STAGE + t * 2048}")
            a("s_nop 0")
            for i in range(2):
                a(f"buffer_load_dwordx4 v{8+t}, s[52:55], s58 offen offset:{i*1024} lds")
    lloop(x_issue, 4)
    a.label(f"{L}_compute")
    VXA, VWA, VO, VS, VR = 4, 6, 8, 9, 3
    RES, FX, FW, ACC = 10, 20, 32, 92
    srd(a, 56, P_WS, st_off, 2048*64)
    a(f"""
    s_lshl_b32 s10, s5, 6
    s_lshl_b32 s11, s7, 4
    s_add_u32 s10, s10, s11
    v_and_b32 v4, 15, v2
    v_add_u32 v4, s10, v4
    v_lshlrev_b32 v{VS}, 6, v4
    v_lshrrev_b32 v1, 4, v2
    s_lshr_b32 s10, s10, 5
    s_mul_i32 s10, s10, 40960
    s_mul_i32 s11, s6, 5120
    s_add_u32 s10, s10, s11
    v_and_b32 v5, 31, v4
    v_lshl_add_u32 v5, v5, 4, s10
    v_lshrrev_b32 v6, 1, v1
    v_lshl_add_u32 v5, v6, 9, v5
    v_and_b32 v6, 1, v1
    v_lshl_add_u32 v{VR}, v6, 3, v5
    s_movk_i32 s62, 0x1000
    """)
    a(f"""
    v_mul_u32_u24 v4, 1280, v4
    v_lshl_add_u32 v4, v1, 3, v4
    s_mul_i32 s11, s6, 160
    v_add_u32 v{VO}, s11, v4
    s_cmp_eq_u32 s70, 1
    s_cbranch_scc1 {L}_rres
    """)
    for j in range(4):
        a(f"buffer_load_dwordx2 {vr(RES+2*j,2)}, v{VR}, s[40:43], 0 offen offset:{1024*j}")
    a(f"buffer_load_dwordx2 {vr(RES+8,2)}, v{VR}, s[40:43], s62 offen")
    a(f"s_branch {L}_resdone")
    a.label(f"{L}_rres")
    for j in range(5):
        a(f"buffer_load_dwordx2 {vr(RES+2*j,2)}, v{VO}, s[40:43], 0 offen offset:{32*j}")
    a.label(f"{L}_resdone")
    a(f"""
    s_cmp_eq_u32 s69, 1
    s_cselect_b32 s63, 32, 1024
    s_cbranch_scc1 {L}_rm
    v_mov_b32 v{VO}, v{VR}
    """)
    a.label(f"{L}_rm")
    a(f"""
    s_lshl_b32 s64, s63, 1
    s_mul_i32 s65, s63, 3
    s_lshl_b32 s66, s63, 2
    s_lshl_b32 s10, s7, 11
    v_lshl_add_u32 v{VXA}, v2, 4, s10
    v_add_u32 v{VXA+1}, {4*STAGE}, v{VXA}
    v_lshlrev_b32 v{VWA}, 4, v2
    v_add_u32 v{VWA}, 8192, v{VWA}
    v_add_u32 v{VWA+1}, {4*STAGE}, v{VWA}
    s_lshl_b32 s61, s6, 3
    """)
    hooks = {}
    if tag == "g4" and PF & 4:
        a(f"""
        s_lshl_b32 s12, s4, 2
        s_add_u32 s12, s12, s7
        s_lshr_b32 s13, s3, 2
        """)
        n = l2_prefetch_setup(a, 44, WS_WT1, WT1_BYTES//2, 128, 12, 1, 14, 13)
        a("s_cmp_eq_u32 s69, 1")
        a("s_cselect_b32 s46, 0, s46")
        PFS4 = int(os.environ.get('PFS4', 30))
        for i in range(n):
            hooks[PFS4 + 4*i] = lambda: l2_touch(a, 44, 1, 0, 14)
    NB = 3
    def reads(s):
        c, ks = s // 2, s % 2
        buf = s % NB
        st = c % NST
        sset, sin = st // 4, st % 4
        a(f"ds_read_b128 {vr(FX+buf*4,4)}, v{VXA+sset} offset:{sin*STAGE + ks*1024}")
        for j in range(5):
            a(f"ds_read_b128 {vr(FW+(buf*5+j)*4,4)}, v{VWA+sset} offset:{sin*STAGE + ks*5120 + 1024*j}")
    a("s_barrier")
    stamp(a, 2)
    reads(0); reads(1)
    NS = 2*nch
    for s_ in range(NS):
        buf = s_ % NB
        a(f"s_waitcnt lgkmcnt({6 if s_ + 1 < NS else 0})")
        if s_ % 2 == 0 and s_ // 2 + 1 < nch:
            a("s_barrier")
            if s_ // 2 + 1 == nch // 2: stamp(a, 4)
        for j in range(5):
            cin = "0" if s_ == 0 else vr(ACC+4*j, 4)
            a(f"v_mfma_f32_16x16x32_bf16 {vr(ACC+4*j,4)}, {vr(FW+(buf*5+j)*4,4)}, {vr(FX+buf*4,4)}, {cin}")
            if j == 0 and s_ + 2 < NS:
                reads(s_ + 2)
        if s_ in hooks: hooks[s_]()
    stamp(a, 3)
    a("s_waitcnt vmcnt(0)")
    a("s_nop 7")
    a("v_mov_b32 v4, 0")
    a("v_mov_b32 v5, 0")
    a("s_mov_b32 s60, 0x3f803f80")
    for j in range(5):
        t = FX + 4*(j & 1)
        so = "0" if j == 0 else f"s{62+j}"
        a(f"""
        v_lshlrev_b32 v{t}, 16, v{RES+2*j}
        v_and_b32 v{t+1}, 0xffff0000, v{RES+2*j}
        v_lshlrev_b32 v{t+2}, 16, v{RES+2*j+1}
        v_and_b32 v{t+3}, 0xffff0000, v{RES+2*j+1}
        v_pk_add_f32 {vr(t,2)}, {vr(t,2)}, {vr(ACC+4*j,2)}
        v_pk_add_f32 {vr(t+2,2)}, {vr(t+2,2)}, {vr(ACC+4*j+2,2)}
        v_cvt_pk_bf16_f32 v{RES+2*j}, v{t}, v{t+1}
        v_cvt_pk_bf16_f32 v{RES+2*j+1}, v{t+2}, v{t+3}
        buffer_store_dwordx2 {vr(RES+2*j,2)}, v{VO}, s[48:51], {so} offen
        """)
    for r in range(10):
        a(f"v_dot2_f32_bf16 v4, v{RES+r}, s60, v4")
        a(f"v_dot2_f32_bf16 v5, v{RES+r}, v{RES+r}, v5")
    a("s_nop 2")
    for sw in ("v_permlane16_swap_b32", "v_permlane32_swap_b32"):
        a(f"""
        v_mov_b32 v6, v4
        v_mov_b32 v7, v5
        s_nop 1
        {sw} v4, v6
        {sw} v5, v7
        s_nop 1
        v_add_f32 v4, v4, v6
        v_add_f32 v5, v5, v7
        """)
    a(f"""
    s_mov_b64 exec, 0xffff
    buffer_store_dwordx2 v[4:5], v{VS}, s[56:59], s61 offen
    """)
    stamp_flush(a, kid, 8)
    a("s_endpgm")
    return [(e[0], 112) for e in entries]

def gen_g2(a):
    return gen_g24(a, "g2", 10, [("g2a_kernel", (P_AX, 0), (P_WS, WS_XA)), ("g2b_kernel", (P_WS, WS_XB), (P_WS, WS_XA))], WS_WT2, WT2_BYTES, 20, WS_O, WS_ST3)
def gen_g4(a):
    return gen_g24(a, "g4", 24, [("g4a_kernel", (P_WS, WS_XA), (P_WS, WS_XB)), ("g4b_kernel", (P_WS, WS_XA), (P_OUT, 0))], WS_WT4, WT4_BYTES, 48, WS_H, WS_ST1)
```

```python
from asmlib import *
from layout import *

def split3(a, v, c1, c2, c3):
    a(f"""
    v_and_b32 v{c1}, 0xffff0000, v{v}
    v_sub_f32 v{v}, v{v}, v{c1}
    v_and_b32 v{c2}, 0xffff0000, v{v}
    v_sub_f32 v{v}, v{v}, v{c2}
    v_and_b32 v{c3}, 0xffff0000, v{v}
    """)

NTASK = 688
WPW = 3

def gen_k0(a):
    kernel_header(a, "k0_kernel")
    a("s_cmp_ge_u32 s2, 256")
    a("s_cbranch_scc1 L_k0_exit")
    load_ptrs(a)
    a(f"""
    v_lshrrev_b32 v1, 6, v0
    v_and_b32 v2, 63, v0
    v_and_b32 v3, 15, v2
    v_readfirstlane_b32 s7, v1
    v_lshrrev_b32 v4, 4, v2
    s_lshl_b32 s3, s7, 8
    s_add_u32 s3, s3, s2
    s_mov_b32 s60, 0x3f803f80
    s_mov_b32 s62, 0x05040100
    s_mov_b32 s63, 0x07060302
    s_waitcnt lgkmcnt(0)
    """)
    stamp(a, 0); stamp_rt(a, 1)
    a("s_cmp_lg_u32 s7, 2")
    a("s_cbranch_scc1 L_k0_nocpf")
    code_prefetch(a, "g1a_kernel", 36*1024, 64, 126, 127)
    a.label("L_k0_nocpf")
    a(f"""
    s_cmp_ge_u32 s3, {NTASK}
    s_cbranch_scc1 L_k0_fin
    s_cmp_ge_u32 s3, 432
    s_cbranch_scc1 L_k0_x
    s_cmp_ge_u32 s3, 352
    s_cbranch_scc1 L_k0_wd
    s_cmp_ge_u32 s3, 312
    s_cbranch_scc1 L_k0_wo
    s_cmp_ge_u32 s3, 120
    s_cbranch_scc1 L_k0_wgu
    """)
    LD, OUT, CS = 16, 112, 8
    VSRC, VDST, VSRC2 = 5, 6, 7
    def divmod_s(src, d, q, r, tmp):
        m = (1 << 20) // d + 1
        a(f"s_mul_i32 s{q}, s{src}, {m}")
        a(f"s_lshr_b32 s{q}, s{q}, 20")
        a(f"s_mul_i32 s{tmp}, s{q}, {d}")
        a(f"s_sub_u32 s{r}, s{src}, s{tmp}")
    def loads(b, vsrc, soffs):
        for e in range(8):
            a(f"s_mov_b32 s8, {soffs[e]}")
            a(f"buffer_load_dwordx2 {vr(LD+16*b+2*e,2)}, v{vsrc}, s[36:39], s8 offen")
    def transpose_store(b, nb, dst_soff, colsum, slot_stride=16):
        a(f"s_waitcnt vmcnt({min(63, 8*(nb-1-b) + 4*b)})")
        for c in range(4):
            sel = "s62" if c % 2 == 0 else "s63"
            for r in range(4):
                lo = LD + 16*b + 4*r + c//2
                hi = lo + 2
                a(f"v_perm_b32 v{OUT+4*c+r}, v{hi}, v{lo}, {sel}")
        a(f"s_mov_b32 s8, {dst_soff}")
        for c in range(4):
            a(f"buffer_store_dwordx4 {vr(OUT+4*c,4)}, v{VDST}, s[52:55], s8 offen offset:{c*slot_stride}")
        if colsum:
            for r in range(4):
                for c in range(4):
                    a(f"v_dot2_f32_bf16 v{CS+c}, v{OUT+4*c+r}, s60, v{CS+c}")
        else:
            a("s_nop 1")
    def colsum_finish(xk_off):
        a("s_nop 2")
        for sw in ("v_permlane16_swap_b32", "v_permlane32_swap_b32"):
            for c in range(4):
                a(f"v_mov_b32 v{LD+c}, v{CS+c}")
            a("s_nop 1")
            for c in range(4):
                a(f"{sw} v{CS+c}, v{LD+c}")
            a("s_nop 1")
            for c in range(4):
                a(f"v_add_f32 v{CS+c}, v{CS+c}, v{LD+c}")
        for c in range(4):
            a(f"""
            v_and_b32 v{LD}, 0xffff0000, v{CS+c}
            v_sub_f32 v{CS+c}, v{CS+c}, v{LD}
            v_cvt_pk_bf16_f32 v{OUT+2*c+1}, v{CS+c}, 0
            v_lshrrev_b32 v{LD+1}, 16, v{LD}
            v_or_b32 v{OUT+2*c}, v{LD}, v{LD+1}
            """)
        a(f"""
        s_lshr_b32 s8, s11, 1
        s_lshl_b32 s8, s8, 9
        s_and_b32 s9, s11, 1
        s_lshl_b32 s9, s9, 3
        s_add_u32 s8, s8, s9
        s_add_u32 s8, s8, {xk_off}
        s_mov_b64 exec, 0xffff
        """)
        for c in range(4):
            a(f"buffer_store_dwordx2 {vr(OUT+2*c,2)}, v12, s[52:55], s8 offen offset:{16*c}")
        a("s_mov_b64 exec, -1")
        a("s_branch L_k0_fin")
    srd(a, 36, P_WQKV, 0, 640*3840)
    srd(a, 52, P_WS, WS_WT1, WT1_BYTES)
    divmod_s(3, 30, 11, 10, 8)
    inv = {}
    for i, r in enumerate([0,2,1,3,5,4,6,7]): inv[r] = i
    for i, r in enumerate([10,12,11,13,9,7,14,8]): inv[r] = 8 + i
    lo = sum(inv[r] << (4*r) for r in range(8)); hi = sum(inv[r] << (4*(r-8)) for r in range(8, 15))
    a(f"""
    s_lshl_b32 s9, s10, 4
    v_add_u32 v8, s9, v3
    v_mul_u32_u24 v9, 4370, v8
    v_lshrrev_b32 v9, 16, v9
    v_mul_u32_u24 v10, 15, v9
    v_sub_u32 v10, v8, v10
    s_mov_b32 s12, 0x{lo:08x}
    s_mov_b32 s13, 0x{hi:08x}
    v_lshlrev_b32 v11, 2, v10
    v_bfe_u32 v13, s12, v11, 4
    v_bfe_u32 v14, s13, v11, 4
    v_cmp_gt_u32 vcc, 8, v10
    s_nop 1
    v_cndmask_b32 v13, v14, v13, vcc
    v_lshrrev_b32 v14, 1, v9
    v_mul_u32_u24 v14, {41*4096}, v14
    v_and_b32 v15, 1, v9
    v_lshl_add_u32 v14, v15, 11, v14
    v_lshrrev_b32 v15, 3, v13
    v_lshl_add_u32 v14, v15, 10, v14
    v_and_b32 v15, 7, v13
    v_lshl_add_u32 v12, v15, 6, v14
    v_lshrrev_b32 v14, 1, v4
    v_lshl_add_u32 v{VDST}, v14, 12, v12
    v_and_b32 v14, 1, v4
    v_lshl_add_u32 v{VDST}, v14, 9, v{VDST}
    s_mul_i32 s9, s11, {10*4096}
    v_add_u32 v{VDST}, s9, v{VDST}
    v_mul_u32_u24 v14, {8*3840}, v4
    v_lshl_add_u32 v14, v8, 3, v14
    s_mul_i32 s9, s11, {160*3840}
    v_add_u32 v{VSRC}, s9, v14
    """)
    for c in range(4): a(f"v_mov_b32 v{CS+c}, 0")
    for b in range(5): loads(b, VSRC, [(32*b+e)*3840 for e in range(8)])
    for b in range(5): transpose_store(b, 5, b*2*4096, True)
    colsum_finish(40*4096)
    a.label("L_k0_wgu")
    a(f"""
    s_cmp_ge_u32 s3, 216
    s_cselect_b32 s36, s{P_WU}, s{P_WG}
    s_cselect_b32 s37, s{P_WU+1}, s{P_WG+1}
    s_cselect_b32 s14, 256, 0
    s_movk_i32 s9, 120
    s_cselect_b32 s9, 216, s9
    s_sub_u32 s9, s3, s9
    s_mov_b32 s38, {640*3072}
    s_mov_b32 s39, 0x00020000
    """)
    srd(a, 52, P_WS, WS_WT3, WT3_BYTES)
    divmod_s(9, 24, 11, 10, 8)
    a(f"""
    s_lshl_b32 s9, s10, 4
    v_add_u32 v8, s9, v3
    v_lshrrev_b32 v9, 2, v8
    v_mul_u32_u24 v10, 43691, v9
    v_lshrrev_b32 v10, 18, v10
    v_mul_u32_u24 v11, 6, v10
    v_sub_u32 v11, v9, v11
    v_mul_u32_u24 v10, {41*6144}, v10
    v_lshl_add_u32 v10, v11, 10, v10
    v_and_b32 v11, 1, v8
    v_lshl_add_u32 v10, v11, 7, v10
    v_bfe_u32 v11, v8, 1, 1
    v_lshl_add_u32 v10, v11, 6, v10
    v_add_u32 v12, s14, v10
    v_lshrrev_b32 v14, 1, v4
    v_mul_u32_u24 v14, 6144, v14
    v_add_u32 v{VDST}, v14, v12
    v_and_b32 v14, 1, v4
    v_lshl_add_u32 v{VDST}, v14, 9, v{VDST}
    s_mul_i32 s9, s11, {10*6144}
    v_add_u32 v{VDST}, s9, v{VDST}
    v_mul_u32_u24 v14, {8*3072}, v4
    v_lshl_add_u32 v14, v8, 3, v14
    s_mul_i32 s9, s11, {160*3072}
    v_add_u32 v{VSRC}, s9, v14
    """)
    for c in range(4): a(f"v_mov_b32 v{CS+c}, 0")
    for b in range(5): loads(b, VSRC, [(32*b+e)*3072 for e in range(8)])
    for b in range(5): transpose_store(b, 5, b*2*6144, True)
    colsum_finish(40*6144)
    def dst24(nks):
        a(f"""
        s_lshl_b32 s9, s10, 4
        v_add_u32 v8, s9, v3
        v_lshrrev_b32 v9, 2, v8
        v_mul_u32_u24 v10, 52429, v9
        v_lshrrev_b32 v10, 18, v10
        v_mul_u32_u24 v11, 5, v10
        v_sub_u32 v11, v9, v11
        v_mul_u32_u24 v10, {nks*5120}, v10
        v_lshl_add_u32 v10, v11, 10, v10
        v_and_b32 v11, 3, v8
        v_lshl_add_u32 v10, v11, 6, v10
        v_lshl_add_u32 v{VDST}, v4, 8, v10
        """)
    a.label("L_k0_wo")
    srd(a, 36, P_WO, 0, 640*1280)
    srd(a, 52, P_WS, WS_WT2, WT2_BYTES)
    a("s_sub_u32 s9, s3, 312")
    divmod_s(9, 10, 11, 10, 8)
    dst24(20)
    a(f"""
    v_lshrrev_b32 v14, 1, v4
    v_mul_u32_u24 v14, {20*1280}, v14
    v_and_b32 v15, 1, v4
    v_mul_u32_u24 v15, {4*1280}, v15
    v_add_u32 v14, v14, v15
    v_lshl_add_u32 v14, v8, 3, v14
    s_mul_i32 s9, s11, {160*1280}
    v_add_u32 v{VSRC}, s9, v14
    v_mul_u32_u24 v14, {40*1280}, v4
    v_lshl_add_u32 v14, v8, 3, v14
    v_add_u32 v{VSRC2}, s9, v14
    s_mul_i32 s9, s11, {4*5120}
    v_add_u32 v13, s9, v{VDST}
    s_mul_i32 s9, s11, 5120
    v_add_u32 v12, s9, v{VDST}
    v_mov_b32 v{VDST}, v13
    """)
    for b in range(4): loads(b, VSRC, [(40*b + 8*(e//4) + e % 4)*1280 for e in range(8)])
    loads(4, VSRC2, [(16 + 20*(e//4) + e % 4)*1280 for e in range(8)])
    for b in range(4): transpose_store(b, 5, b*5120, False)
    a(f"v_mov_b32 v{VDST}, v12")
    transpose_store(4, 5, 16*5120, False)
    a("s_branch L_k0_fin")
    a.label("L_k0_wd")
    srd(a, 36, P_WD, 0, 1536*1280)
    srd(a, 52, P_WS, WS_WT4, WT4_BYTES)
    a("s_sub_u32 s9, s3, 352")
    divmod_s(9, 10, 11, 10, 8)
    dst24(48)
    a(f"""
    v_mul_u32_u24 v14, {8*1280}, v4
    v_lshl_add_u32 v14, v8, 3, v14
    s_mul_i32 s9, s11, {192*1280}
    v_add_u32 v{VSRC}, s9, v14
    s_mul_i32 s9, s11, {6*5120}
    v_add_u32 v{VDST}, s9, v{VDST}
    """)
    for b in range(6): loads(b, VSRC, [(32*b+e)*1280 for e in range(8)])
    for b in range(6): transpose_store(b, 6, b*5120, False)
    a("s_branch L_k0_fin")
    a.label("L_k0_x")
    srd(a, 36, P_AX, 0, 2048*1280)
    srd(a, 52, P_WS, WS_X0, 2048*1280)
    srd(a, 56, P_WS, WS_ST1, 2048*64)
    a(f"""
    s_sub_u32 s9, s3, 432
    s_lshl_b32 s9, s9, 3
    v_lshrrev_b32 v8, 3, v2
    v_add_u32 v8, s9, v8
    v_and_b32 v9, 7, v2
    v_mul_u32_u24 v{VSRC}, 1280, v8
    v_lshl_add_u32 v{VSRC}, v9, 4, v{VSRC}
    """)
    for i in range(10):
        a(f"buffer_load_dwordx4 {vr(LD+4*i,4)}, v{VSRC}, s[36:39], 0 offen offset:{128*i}")
    a(f"""
    v_lshrrev_b32 v10, 5, v8
    v_mul_u32_u24 v10, 40960, v10
    v_and_b32 v11, 31, v8
    v_lshl_add_u32 v10, v11, 4, v10
    v_lshl_add_u32 v{VDST}, v9, 9, v10
    v_mov_b32 v12, 0
    v_mov_b32 v13, 0
    """)
    for i in range(10):
        a(f"s_waitcnt vmcnt({9})")
        a(f"s_mov_b32 s8, {i*4096}")
        a(f"buffer_store_dwordx4 {vr(LD+4*i,4)}, v{VDST}, s[52:55], s8 offen")
        for r in range(4):
            a(f"v_dot2_f32_bf16 v12, v{LD+4*i+r}, s60, v12")
            a(f"v_dot2_f32_bf16 v13, v{LD+4*i+r}, v{LD+4*i+r}, v13")
    a(f"""
    v_lshlrev_b32 v10, 6, v8
    v_lshl_add_u32 v10, v9, 3, v10
    s_nop 1
    buffer_store_dwordx2 v[12:13], v10, s[56:59], 0 offen
    """)
    a.label("L_k0_fin")
    stamp_flush(a, 5, 8)
    a.label("L_k0_exit")
    a("s_endpgm")
    return [("k0_kernel", 128)]
```

```python
from asmlib import *
from layout import *

SRC, DST = 36, 68
SP, SP4 = 88, 89
SFLAG, SFLAG2, SQ_, SXK = 62, 63, 90, 91
LD, OUT = 108, 124
import os
PSTF = os.environ.get('PSTF', '')
PVAR = int(os.environ.get('PVAR', 0))

def setup(a, L, VSRC, VDST, VXK, t0):
    R, A, B, C, D, G, L16 = t0, t0+1, t0+2, t0+3, t0+4, t0+5, t0+6
    ST, SB, S1, S2, SSEG = 92, 93, 94, 95, 12
    def divmod_s(src, d, q, r, tmp):
        m = (1 << 20) // d + 1
        a(f"s_mul_i32 s{q}, s{src}, {m}")
        a(f"s_lshr_b32 s{q}, s{q}, 20")
        a(f"s_mul_i32 s{tmp}, s{q}, {d}")
        a(f"s_sub_u32 s{r}, s{src}, s{tmp}")
    a(f"""
    s_mov_b32 s{SFLAG2}, 0
    s_cmp_eq_u32 s{SFLAG}, 0
    s_cbranch_scc1 {L}_done
    s_lshr_b32 s{ST}, s7, 3
    s_lshl_b32 s{ST}, s{ST}, 8
    s_add_u32 s{ST}, s{ST}, s2
    s_and_b32 s{SB}, s7, 7
    s_mov_b32 s{SFLAG}, 0
    s_cmp_ge_u32 s{ST}, 432
    s_cbranch_scc1 {L}_done
    s_cmp_ge_u32 s{ST}, 352
    s_cselect_b32 s{S1}, 6, 5
    s_cmp_ge_u32 s{SB}, s{S1}
    s_cbranch_scc1 {L}_done
    s_mov_b32 s{SFLAG}, 1
    v_and_b32 v{L16}, 15, v2
    v_lshrrev_b32 v{G}, 4, v2
    s_cmp_ge_u32 s{ST}, 352
    s_cbranch_scc1 {L}_wd
    s_cmp_ge_u32 s{ST}, 312
    s_cbranch_scc1 {L}_wo
    s_mov_b32 s{SFLAG}, 2
    s_cmp_eq_u32 s{SB}, 0
    s_cselect_b32 s{SFLAG2}, 1, 0
    s_cmp_ge_u32 s{ST}, 120
    s_cbranch_scc1 {L}_wgu
    """)
    srd(a, SRC, P_WQKV, 0, 640*3840)
    srd(a, DST, P_WS, WS_WT1, WT1_BYTES)
    divmod_s(ST, 30, SQ_, SSEG, S1)
    inv = {}
    for i, r in enumerate([0,2,1,3,5,4,6,7]): inv[r] = i
    for i, r in enumerate([10,12,11,13,9,7,14,8]): inv[r] = 8 + i
    lo = sum(inv[r] << (4*r) for r in range(8)); hi = sum(inv[r] << (4*(r-8)) for r in range(8, 15))
    a(f"""
    s_lshl_b32 s{S1}, s{SSEG}, 4
    v_add_u32 v{R}, s{S1}, v{L16}
    v_mul_u32_u24 v{A}, 4370, v{R}
    v_lshrrev_b32 v{A}, 16, v{A}
    v_mul_u32_u24 v{B}, 15, v{A}
    v_sub_u32 v{B}, v{R}, v{B}
    s_mov_b32 s13, 0x{lo:08x}
    s_mov_b32 s14, 0x{hi:08x}
    v_lshlrev_b32 v{C}, 2, v{B}
    v_bfe_u32 v{D}, s13, v{C}, 4
    v_bfe_u32 v{C}, s14, v{C}, 4
    v_cmp_gt_u32 vcc, 8, v{B}
    s_nop 1
    v_cndmask_b32 v{D}, v{C}, v{D}, vcc
    v_lshrrev_b32 v{C}, 1, v{A}
    v_mul_u32_u24 v{C}, {41*4096}, v{C}
    v_and_b32 v{B}, 1, v{A}
    v_lshl_add_u32 v{C}, v{B}, 11, v{C}
    v_lshrrev_b32 v{B}, 3, v{D}
    v_lshl_add_u32 v{C}, v{B}, 10, v{C}
    v_and_b32 v{B}, 7, v{D}
    v_lshl_add_u32 v{VXK}, v{B}, 6, v{C}
    s_movk_i32 s{SP}, 3840
    s_movk_i32 s{S2}, 4096
    s_branch {L}_c13
    """)
    a.label(f"{L}_wgu")
    a(f"""
    s_cmp_ge_u32 s{ST}, 216
    s_cselect_b32 s{SRC}, s{P_WU}, s{P_WG}
    s_cselect_b32 s{SRC+1}, s{P_WU+1}, s{P_WG+1}
    s_cselect_b32 s14, 256, 0
    s_movk_i32 s{S1}, 120
    s_cselect_b32 s{S1}, 216, s{S1}
    s_sub_u32 s13, s{ST}, s{S1}
    s_mov_b32 s{SRC+2}, {640*3072}
    s_mov_b32 s{SRC+3}, 0x00020000
    """)
    srd(a, DST, P_WS, WS_WT3, WT3_BYTES)
    divmod_s(13, 24, SQ_, SSEG, S1)
    a(f"""
    s_lshl_b32 s{S1}, s{SSEG}, 4
    v_add_u32 v{R}, s{S1}, v{L16}
    v_lshrrev_b32 v{A}, 2, v{R}
    v_mul_u32_u24 v{B}, 43691, v{A}
    v_lshrrev_b32 v{B}, 18, v{B}
    v_mul_u32_u24 v{C}, 6, v{B}
    v_sub_u32 v{C}, v{A}, v{C}
    v_mul_u32_u24 v{B}, {41*6144}, v{B}
    v_lshl_add_u32 v{B}, v{C}, 10, v{B}
    v_and_b32 v{C}, 1, v{R}
    v_lshl_add_u32 v{B}, v{C}, 7, v{B}
    v_bfe_u32 v{C}, v{R}, 1, 1
    v_lshl_add_u32 v{B}, v{C}, 6, v{B}
    v_add_u32 v{VXK}, s14, v{B}
    s_movk_i32 s{SP}, 3072
    s_movk_i32 s{S2}, 6144
    """)
    a.label(f"{L}_c13")
    a(f"""
    s_lshl_b32 s{SP4}, s{SP}, 2
    s_mul_i32 s{SXK}, s{S2}, 40
    v_lshrrev_b32 v{A}, 1, v{G}
    v_mul_lo_u32 v{A}, v{A}, s{S2}
    v_add_u32 v{VDST}, v{A}, v{VXK}
    v_and_b32 v{A}, 1, v{G}
    v_lshl_add_u32 v{VDST}, v{A}, 9, v{VDST}
    s_mul_i32 s{S1}, s{SQ_}, 5
    s_add_u32 s{S1}, s{S1}, s{SB}
    s_mul_i32 s13, s{S1}, s{S2}
    s_lshl_b32 s13, s13, 1
    v_add_u32 v{VDST}, s13, v{VDST}
    s_lshl_b32 s13, s{SP}, 3
    v_mul_lo_u32 v{A}, v{G}, s13
    v_lshl_add_u32 v{A}, v{R}, 3, v{A}
    s_mul_i32 s13, s{S1}, s{SP}
    s_lshl_b32 s13, s13, 5
    v_add_u32 v{VSRC}, s13, v{A}
    s_branch {L}_done
    """)
    def dst24(nks):
        a(f"""
        s_lshl_b32 s{S1}, s{SSEG}, 4
        v_add_u32 v{R}, s{S1}, v{L16}
        v_lshrrev_b32 v{A}, 2, v{R}
        v_mul_u32_u24 v{B}, 52429, v{A}
        v_lshrrev_b32 v{B}, 18, v{B}
        v_mul_u32_u24 v{C}, 5, v{B}
        v_sub_u32 v{C}, v{A}, v{C}
        v_mul_u32_u24 v{B}, {nks*5120}, v{B}
        v_lshl_add_u32 v{B}, v{C}, 10, v{B}
        v_and_b32 v{C}, 3, v{R}
        v_lshl_add_u32 v{B}, v{C}, 6, v{B}
        v_lshl_add_u32 v{VDST}, v{G}, 8, v{B}
        s_movk_i32 s{SP}, 1280
        """)
    a.label(f"{L}_wo")
    srd(a, SRC, P_WO, 0, 640*1280)
    srd(a, DST, P_WS, WS_WT2, WT2_BYTES)
    a(f"s_sub_u32 s13, s{ST}, 312")
    divmod_s(13, 10, SQ_, SSEG, S1)
    dst24(20)
    a(f"""
    s_cmp_eq_u32 s{SB}, 4
    s_cbranch_scc1 {L}_wot
    s_movk_i32 s{SP4}, {8*1280}
    v_lshrrev_b32 v{A}, 1, v{G}
    v_mul_u32_u24 v{A}, {20*1280}, v{A}
    v_and_b32 v{B}, 1, v{G}
    v_mul_u32_u24 v{B}, {4*1280}, v{B}
    v_add_u32 v{A}, v{A}, v{B}
    v_lshl_add_u32 v{A}, v{R}, 3, v{A}
    s_lshl_b32 s{S1}, s{SQ_}, 2
    s_add_u32 s{S1}, s{S1}, s{SB}
    s_mul_i32 s13, s{S1}, {40*1280}
    v_add_u32 v{VSRC}, s13, v{A}
    s_mul_i32 s13, s{S1}, 5120
    v_add_u32 v{VDST}, s13, v{VDST}
    s_branch {L}_done
    """)
    a.label(f"{L}_wot")
    a(f"""
    s_movk_i32 s{SP4}, {20*1280}
    v_mul_u32_u24 v{A}, {40*1280}, v{G}
    v_lshl_add_u32 v{A}, v{R}, 3, v{A}
    s_mul_i32 s13, s{SQ_}, {160*1280}
    s_add_u32 s13, s13, {16*1280}
    v_add_u32 v{VSRC}, s13, v{A}
    s_add_u32 s13, s{SQ_}, 16
    s_mul_i32 s13, s13, 5120
    v_add_u32 v{VDST}, s13, v{VDST}
    s_branch {L}_done
    """)
    a.label(f"{L}_wd")
    srd(a, SRC, P_WD, 0, 1536*1280)
    srd(a, DST, P_WS, WS_WT4, WT4_BYTES)
    a(f"s_sub_u32 s13, s{ST}, 352")
    divmod_s(13, 10, SQ_, SSEG, S1)
    dst24(48)
    a(f"""
    s_movk_i32 s{SP4}, {4*1280}
    v_mul_u32_u24 v{A}, {8*1280}, v{G}
    v_lshl_add_u32 v{A}, v{R}, 3, v{A}
    s_mul_i32 s{S1}, s{SQ_}, 6
    s_add_u32 s{S1}, s{S1}, s{SB}
    s_mul_i32 s13, s{S1}, {32*1280}
    v_add_u32 v{VSRC}, s13, v{A}
    s_mul_i32 s13, s{S1}, 5120
    v_add_u32 v{VDST}, s13, v{VDST}
    """)
    a.label(f"{L}_done")

def issue_loads(a, L, VSRC):
    a(f"""
    s_cmp_eq_u32 s{SFLAG}, 0
    s_cbranch_scc1 {L}_nold
    s_mov_b32 s12, 0
    """)
    for e in range(8):
        if e == 4:
            a(f"s_mov_b32 s12, s{SP4}")
        elif e:
            a(f"s_add_u32 s12, s12, s{SP}")
        if PVAR != 2: a(f"buffer_load_dwordx2 {vr(LD+2*e,2)}, v{VSRC}, s[{SRC}:{SRC+3}], s12 offen")
    a.label(f"{L}_nold")

def stage1(a, L, VDST, CS, PART, tmp):
    a(f"""
    s_cmp_eq_u32 s{SFLAG}, 0
    s_cbranch_scc1 {L}_s1done
    s_mov_b32 s12, 0x05040100
    s_mov_b32 s13, 0x07060302
    s_mov_b32 s14, 0x3f803f80
    """)
    for c in range(4):
        sel = "s12" if c % 2 == 0 else "s13"
        a(f"v_mov_b32 v{CS+c}, 0")
        for r in range(4):
            lo = LD + 4*r + c//2
            a(f"v_perm_b32 v{OUT+r}, v{lo+2}, v{lo}, {sel}")
        if PVAR != 1: a(f"buffer_store_dwordx4 {vr(OUT,4)}, v{VDST}, s[{DST}:{DST+3}], 0 offen offset:{c*16}{PSTF}")
        for r in range(4):
            a(f"v_dot2_f32_bf16 v{CS+c}, v{OUT+r}, s14, v{CS+c}")
        a("s_nop 1")
    a(f"""
    s_cmp_eq_u32 s{SFLAG}, 1
    s_mov_b32 s{SFLAG}, 0
    s_cbranch_scc1 {L}_s1done
    s_nop 0
    """)
    for sw in ("v_permlane16_swap_b32", "v_permlane32_swap_b32"):
        for c in range(4):
            a(f"v_mov_b32 v{OUT+c}, v{CS+c}")
        a("s_nop 1")
        for c in range(4):
            a(f"{sw} v{CS+c}, v{OUT+c}")
        a("s_nop 1")
        for c in range(4):
            a(f"v_add_f32 v{CS+c}, v{CS+c}, v{OUT+c}")
    a(f"""
    s_lshl_b32 s12, s7, 8
    s_add_u32 s12, s12, {PART}
    v_and_b32 v{tmp}, 15, v2
    v_lshl_add_u32 v{tmp}, v{tmp}, 4, s12
    ds_write_b128 v{tmp}, {vr(CS,4)}
    s_waitcnt lgkmcnt(0)
    """)
    a.label(f"{L}_s1done")

def stage2(a, L, VXK, CS, PART, tmp):
    a(f"""
    s_cmp_eq_u32 s{SFLAG2}, 0
    s_cbranch_scc1 {L}_s2done
    s_mov_b32 s{SFLAG2}, 0
    s_lshl_b32 s12, s7, 8
    s_add_u32 s12, s12, {PART}
    v_and_b32 v{tmp}, 15, v2
    v_lshl_add_u32 v{tmp}, v{tmp}, 4, s12
    """)
    for b in range(1, 5):
        a(f"ds_read_b128 {vr(LD+4*(b-1),4)}, v{tmp} offset:{b*256}")
    a("s_waitcnt lgkmcnt(0)")
    for b in range(4):
        for c in range(4):
            a(f"v_add_f32 v{CS+c}, v{CS+c}, v{LD+4*b+c}")
    for c in range(4):
        a(f"""
        v_and_b32 v{OUT}, 0xffff0000, v{CS+c}
        v_sub_f32 v{CS+c}, v{CS+c}, v{OUT}
        v_cvt_pk_bf16_f32 v{LD+2*c+1}, v{CS+c}, 0
        v_lshrrev_b32 v{OUT+1}, 16, v{OUT}
        v_or_b32 v{LD+2*c}, v{OUT}, v{OUT+1}
        """)
    a(f"""
    s_lshr_b32 s12, s{SQ_}, 1
    s_lshl_b32 s12, s12, 9
    s_and_b32 s13, s{SQ_}, 1
    s_lshl_b32 s13, s13, 3
    s_add_u32 s12, s12, s13
    s_add_u32 s12, s12, s{SXK}
    s_mov_b64 exec, 0xffff
    """)
    for c in range(4):
        a(f"buffer_store_dwordx2 {vr(LD+2*c,2)}, v{VXK}, s[{DST}:{DST+3}], s12 offen offset:{16*c}")
    a("s_mov_b64 exec, -1")
    a.label(f"{L}_s2done")
```

```python
import sys
sys.path.insert(0, "gen")
from asmlib import *
import g13, g24, att, k0, g1raw

def build(extra_launches=0):
    a = Asm()
    launches = [("g1a_kernel", 768, g1raw.LDS_BYTES), ("atta_kernel", 1024, att.LDS_BYTES), ("g2a_kernel", 512, g24.STAGE*g24.NST), ("g3_kernel", 512, 163840), ("g4a_kernel", 512, g24.STAGE*g24.NST),
                ("g1b_kernel", 512, 131072), ("attb_kernel", 1024, att.LDS_BYTES), ("g2b_kernel", 512, g24.STAGE*g24.NST), ("g3_kernel", 512, 163840), ("g4b_kernel", 512, g24.STAGE*g24.NST)]
    hdr = open("interleave_layers__mha_block__glu_gated_reglu__prompt.s.ref").read().split("\n")
    head = [l for l in hdr if l.startswith(";") and "@launch" not in l and "Override" not in l and "grid=ceil" not in l]
    out = head[:11]
    for k, b, lds in launches:
        out.append(f"; @launch kernel={k} grid=(256,1,1) block=({b},1,1) lds={lds}")
    for _ in range(extra_launches):
        out.append(f"; @launch kernel=nop_kernel grid=(256,1,1) block=(256,1,1) lds=0")
    out.append('.amdgcn_target "amdgcn-amd-amdhsa--gfx950"')
    out.append(".text")
    ks = []
    a.gemm = True
    ks += g1raw.gen_g1a(a)
    ks += g13.gen_g1(a)
    a.gemm = False
    ks += att.gen_att(a)
    a.gemm = True
    ks += g24.gen_g2(a)
    ks += g13.gen_g3(a)
    ks += g24.gen_g4(a)
    if extra_launches:
        kernel_header(a, "nop_kernel"); a("s_endpgm"); ks.append(("nop_kernel", 8))
    a.raw(".p2align 8")
    a.raw("L_text_end:")
    a.raw(".fill (65536 - (L_text_end - g1a_kernel))/4, 4, 0xbf800000")
    txt = "\n".join(out) + "\n" + a.text() + '.section .rodata,"a"\n'
    for k, v in ks:
        txt += kernel_desc(k, v)
    return txt

if __name__ == "__main__":
    dst = sys.argv[1] if len(sys.argv) > 1 else "interleave_layers__mha_block__glu_gated_reglu__prompt.s"
    extra = int(sys.argv[2]) if len(sys.argv) > 2 else 0
    if len(sys.argv) > 3 and sys.argv[3] == "stamps":
        import asmlib
        asmlib.STAMPS = True
    open(dst, "w").write(build(extra))
    print("wrote", dst)
```

```python
from asmlib import *
from layout import *
import g13
from g13 import f32, tile_map16, half_sum

STAGE = 32768
RING = 4
NCH = 10
STATS = 131072
LDS_BYTES = STATS + 4096

def gen_g1a(a):
    kernel_header(a, "g1a_kernel")
    a("s_cmp_ge_u32 s2, 256")
    a("s_cbranch_scc1 L_g1a_exit")
    load_ptrs(a)
    tile_map16(a)
    a("s_waitcnt lgkmcnt(0)")
    stamp(a, 0); stamp_rt(a, 1)
    a("s_cmp_lt_u32 s7, 4")
    a("s_cbranch_scc1 L_g1a_compute")
    VA = 8
    a("s_cmp_ge_u32 s7, 8")
    a("s_cbranch_scc1 L_g1a_stats")
    a("s_sub_u32 s9, s7, 4")
    a("s_cmp_ge_u32 s9, 2")
    a("s_cbranch_scc1 L_g1a_wl")
    srd(a, 52, P_AX, 0, 2048*1280)
    a(f"""
    v_lshrrev_b32 v3, 3, v2
    v_and_b32 v4, 7, v2
    v_lshrrev_b32 v5, 4, v2
    v_xor_b32 v4, v4, v5
    v_mul_u32_u24 v6, 1280, v3
    v_lshl_add_u32 v6, v4, 4, v6
    v_xor_b32 v7, 64, v6
    s_lshl_b32 s10, s5, 7
    s_lshl_b32 s11, s9, 6
    s_add_u32 s10, s10, s11
    s_mul_i32 s10, s10, 1280
    s_mov_b32 s56, 128
    s_lshl_b32 s57, s9, 13
    s_mov_b64 s[62:63], -1
    """)
    for i in range(8):
        a(f"s_add_u32 s11, s10, {8*i*1280}")
        a(f"v_add_u32 v{VA+i}, s11, v{6 + (i & 1)}")
    a("s_branch L_g1a_load")
    a.label("L_g1a_wl")
    srd(a, 52, P_WQKV, 0, 640*3840)
    m = (~((1 << 15) | (1 << 19) | (1 << 39) | (1 << 59))) & ((1 << 64) - 1)
    a(f"""
    s_sub_u32 s12, s9, 2
    v_lshrrev_b32 v5, 4, v2
    v_and_b32 v4, 15, v2
    v_lshlrev_b32 v6, 2, v5
    v_sub_u32 v4, v4, v6
    v_and_b32 v4, 15, v4
    v_mul_u32_u24 v6, 3840, v5
    v_lshl_add_u32 v6, v4, 4, v6
    s_mul_i32 s10, s12, {32*3840}
    s_mul_i32 s11, s6, 240
    s_add_u32 s10, s10, s11
    s_mov_b32 s56, {64*3840}
    s_lshl_b32 s57, s12, 13
    s_add_u32 s57, s57, 16384
    s_mov_b32 s62, 0x{m & 0xffffffff:08x}
    s_mov_b32 s63, 0x{m >> 32:08x}
    """)
    for i in range(8):
        a(f"s_add_u32 s11, s10, {4*i*3840}")
        a(f"v_add_u32 v{VA+i}, s11, v6")
    a.label("L_g1a_load")
    a("s_mov_b32 s58, 0")
    a("s_mov_b64 exec, s[62:63]")
    def issue(c):
        for i in range(8):
            a(f"s_add_u32 m0, s57, {(c % RING) * STAGE + i * 1024}")
            a("s_nop 0")
            a(f"buffer_load_dwordx4 v{VA+i}, s[52:55], s58 offen lds")
        a("s_add_u32 s58, s58, s56")
    g13.loader_loop(a, issue, 8, NCH, 2, 0)
    a.label("L_g1a_stats")
    a("s_sub_u32 s9, s7, 8")
    a("s_cmp_lg_u32 s9, 0")
    a("s_cbranch_scc1 L_g1a_nocpf")
    code_prefetch(a, "g1a_kernel", 56*1024, 64, 80, 81)
    a.label("L_g1a_nocpf")
    VXR, VWR = 16, 18
    XD, WD = 24, 40
    SUM, SQ, CS, U = 56, 58, 60, 68
    a(f"""
    v_and_b32 v3, 31, v2
    v_lshrrev_b32 v4, 5, v2
    s_lshl_b32 s10, s9, 5
    v_add_u32 v5, s10, v3
    v_lshlrev_b32 v5, 7, v5
    v_lshrrev_b32 v6, 1, v3
    v_and_b32 v6, 7, v6
    v_lshlrev_b32 v7, 2, v4
    v_xor_b32 v6, v6, v7
    v_and_b32 v20, 3, v6
    v_and_b32 v6, 4, v6
    v_lshl_add_u32 v5, v6, 4, v5
    """)
    for i in range(4):
        a(f"v_xor_b32 v6, {i}, v20")
        a(f"v_lshl_add_u32 v{72+i}, v6, 4, v5")
        a(f"v_add_u32 v{76+i}, 65536, v{72+i}")
    for r in range(SUM, CS+8):
        a(f"v_mov_b32 v{r}, 0")
    for c in range(NCH):
        a("s_barrier")
        if c == 0: stamp(a, 2)
        if c == NCH//2: stamp(a, 4)
        st = c % RING
        sset, sin = st // 2, st % 2
        for i in range(4):
            a(f"ds_read_b128 {vr(XD+4*i,4)}, v{72+4*sset+i} offset:{sin*STAGE}")
        for r in range(16):
            if r % 4 == 0: a(f"s_waitcnt lgkmcnt({3 - r//4})")
            u = U + 2*(r & 1)
            a(f"v_lshlrev_b32 v{u}, 16, v{XD+r}")
            a(f"v_and_b32 v{u+1}, 0xffff0000, v{XD+r}")
            a(f"v_add_f32 v{SUM}, v{SUM}, v{u}")
            a(f"v_add_f32 v{SUM+1}, v{SUM+1}, v{u+1}")
            a(f"v_fmac_f32 v{SQ}, v{u}, v{u}")
            a(f"v_fmac_f32 v{SQ+1}, v{u+1}, v{u+1}")
    stamp(a, 3)
    a(f"v_add_f32 v{SUM}, v{SUM}, v{SUM+1}")
    a(f"v_add_f32 v{SUM+1}, v{SQ}, v{SQ+1}")
    half_sum(a, SUM, U); half_sum(a, SUM+1, U)
    a(f"""
    s_lshl_b32 s10, s9, 8
    s_add_u32 s10, s10, {STATS + 2048}
    v_lshl_add_u32 v5, v3, 3, s10
    ds_write_b64 v5, {vr(SUM,2)}
    s_waitcnt lgkmcnt(0)
    s_barrier
    """)
    stamp_flush(a, 0, 8)
    a.label("L_g1a_exit")
    a("s_endpgm")
    a.label("L_g1a_compute")
    VX, VW, RS, FX, FW, ACC = 8, 28, 18, 32, 56, 80
    CSA, ONES = 144, 160
    XW, XM, T = 56, 64, 20
    a(f"""
    s_lshr_b32 s8, s7, 1
    s_and_b32 s9, s7, 1
    v_and_b32 v3, 31, v2
    v_lshrrev_b32 v4, 5, v2
    s_lshl_b32 s13, s5, 7
    s_lshl_b32 s14, s8, 6
    s_add_u32 s12, s13, s14
    v_lshrrev_b32 v5, 1, v3
    v_and_b32 v5, 7, v5
    v_add_u32 v6, s14, v3
    v_lshlrev_b32 v6, 7, v6
    """)
    for ks in range(4):
        a(f"v_add_u32 v7, {2*ks}, v4")
        a(f"v_xor_b32 v7, v7, v5")
        a(f"v_lshl_add_u32 v{VX+ks}, v7, 4, v6")
        a(f"v_add_u32 v{VX+4+ks}, 65536, v{VX+ks}")
    a(f"""
    v_lshrrev_b32 v5, 4, v2
    v_and_b32 v5, 1, v5
    v_and_b32 v6, 3, v2
    v_lshl_add_u32 v5, v5, 2, v6
    v_lshlrev_b32 v5, 2, v5
    v_bfe_u32 v6, v2, 2, 2
    v_lshl_add_u32 v7, v4, 3, v6
    v_lshlrev_b32 v7, 8, v7
    v_add_u32 v7, 16384, v7
    s_mul_i32 s10, s9, 120
    v_lshl_add_u32 v6, v6, 6, s10
    """)
    for nt, tab in enumerate((0x76453120, 0x8E79DBCA)):
        a(f"""
        s_mov_b32 s11, 0x{tab:08x}
        v_bfe_u32 v{VW+nt}, s11, v5, 4
        v_lshl_add_u32 v{VW+nt}, v{VW+nt}, 3, v6
        v_and_b32 v{VW+nt}, 255, v{VW+nt}
        v_add_u32 v{VW+nt}, v{VW+nt}, v7
        v_add_u32 v{VW+2+nt}, 65536, v{VW+nt}
        """)
    a(f"""
    v_add_u32 v17, s14, v3
    v_lshlrev_b32 v17, 3, v17
    v_add_u32 v17, {STATS + 2048}, v17
    s_lshl_b32 s10, s9, 8
    s_add_u32 s10, s10, {STATS}
    v_lshl_add_u32 v16, v3, 2, s10
    s_lshl_b32 s11, s8, 7
    s_add_u32 s10, s10, s11
    v_lshl_add_u32 v5, v4, 4, s10
    v_mov_b32 v{ONES}, 0x3f803f80
    v_mov_b32 v{ONES+1}, 0x3f803f80
    v_mov_b32 v{ONES+2}, 0x3f803f80
    v_mov_b32 v{ONES+3}, 0x3f803f80
    """)
    g13.g1_epilogue_setup(a)
    NB = 3
    def reads(s):
        c, ks = s // 4, s % 4
        buf = s % NB
        st = c % RING
        sset, sin = st // 2, st % 2
        for mt in range(2):
            a(f"ds_read_b128 {vr(FX + (buf*2+mt)*4, 4)}, v{VX + sset*4 + ks} offset:{sin*STAGE + mt*4096}")
        for nt in range(2):
            for i in range(2):
                a(f"ds_read_b64_tr_b16 {vr(FW + (buf*2+nt)*4 + 2*i, 2)}, v{VW + sset*2 + nt} offset:{sin*STAGE + (16*ks+4*i)*256}")
    a("s_cmp_eq_u32 s8, 1")
    a("s_barrier")
    stamp(a, 2)
    reads(0); reads(1)
    NS = 4*NCH
    for s in range(NS):
        buf = s % NB
        a(f"s_waitcnt lgkmcnt({6 if s + 1 < NS else 0})")
        if s % 4 == 2 and s // 4 + 1 < NCH:
            a("s_barrier")
            if s // 4 + 1 == NCH // 2: stamp(a, 4)
        first = True
        for nt in range(2):
            for mt in range(2):
                acc = ACC + (nt*2+mt)*16
                cin = "0" if s == 0 else vr(acc, 16)
                a(f"v_mfma_f32_32x32x16_bf16 {vr(acc,16)}, {vr(FW + (buf*2+nt)*4, 4)}, {vr(FX + (buf*2+mt)*4, 4)}, {cin}")
                if first and s + 2 < NS:
                    reads(s + 2)
                first = False
        l1, l2 = a.newlabel("cs"), a.newlabel("cs")
        cin = "0" if s == 0 else vr(CSA, 16)
        a(f"s_cbranch_scc1 {l1}")
        a(f"v_mfma_f32_32x32x16_bf16 {vr(CSA,16)}, {vr(FW + (buf*2+0)*4, 4)}, {vr(ONES,4)}, {cin}")
        a(f"s_branch {l2}")
        a.label(l1)
        a(f"v_mfma_f32_32x32x16_bf16 {vr(CSA,16)}, {vr(FW + (buf*2+1)*4, 4)}, {vr(ONES,4)}, {cin}")
        a.label(l2)
    stamp(a, 3)
    a("s_nop 15")
    a("s_mov_b32 exec_lo, 1")
    a("s_mov_b32 exec_hi, 1")
    for aa in range(4):
        a(f"ds_write_b128 v5, {vr(CSA+4*aa,4)} offset:{aa*32}")
    a("s_mov_b64 exec, -1")
    a("s_waitcnt lgkmcnt(0)")
    a("s_barrier")
    for nt in range(2):
        a(f"ds_read_b32 v{FX+4*nt}, v16 offset:{nt*128}")
    a(f"ds_read_b64 {vr(FX+8,2)}, v17")
    a(f"ds_read_b64 {vr(FX+10,2)}, v17 offset:256")
    a("s_waitcnt lgkmcnt(2)")
    for nt in range(2):
        c = FX + 4*nt
        x = XW + 4*nt
        a(f"""
        v_and_b32 v{c+1}, 0xffff0000, v{c}
        v_sub_f32 v{c}, v{c}, v{c+1}
        v_cvt_pk_bf16_f32 v{x+1}, v{c}, 0
        v_lshrrev_b32 v{c+2}, 16, v{c+1}
        v_or_b32 v{x}, v{c+1}, v{c+2}
        v_mov_b32 v{x+2}, 0
        v_mov_b32 v{x+3}, 0
        """)
    a(f"""
    s_mov_b64 exec, s[66:67]
    v_mov_b32 v{XW}, 0
    v_mov_b32 v{XW+1}, 0
    v_mov_b32 v{XW+4}, 0
    v_mov_b32 v{XW+5}, 0
    s_mov_b64 exec, -1
    s_mov_b32 s10, {f32(1.0/640)}
    s_waitcnt lgkmcnt(0)
    """)
    for mt in range(2):
        s = FX + 8 + 2*mt
        t = FX + 12
        x = XM + 4*mt
        a(f"""
        v_mul_f32 v{s}, s10, v{s}
        v_mul_f32 v{s+1}, s10, v{s+1}
        v_fma_f32 v{s+1}, -v{s}, v{s}, v{s+1}
        v_max_f32 v{s+1}, 0, v{s+1}
        v_add_f32 v{s+1}, {f32(1e-5)}, v{s+1}
        v_rsq_f32 v{RS+mt}, v{s+1}
        v_xor_b32 v{s}, 0x80000000, v{s}
        v_and_b32 v{t}, 0xffff0000, v{s}
        v_sub_f32 v{s}, v{s}, v{t}
        v_lshrrev_b32 v{x+1}, 16, v{t}
        v_cvt_pk_bf16_f32 v{t+1}, 0, v{s}
        v_or_b32 v{x}, v{x+1}, v{t+1}
        v_mov_b32 v{x+3}, v{x+1}
        v_mov_b32 v{x+2}, v{x}
        """)
    a("s_nop 1")
    for nt in range(2):
        for mt in range(2):
            acc = ACC + (nt*2+mt)*16
            a(f"v_mfma_f32_32x32x16_bf16 {vr(acc,16)}, {vr(XW+4*nt,4)}, {vr(XM+4*mt,4)}, {vr(acc,16)}")
    a("s_nop 7")
    a("s_branch L_g1_epilogue")
    return [("g1a_kernel", 164)]
```

```python
from asmlib import *
from layout import *
import prep

HSTG = 24576
STG = 2 * HSTG
NSTG = 3
FLAG = NSTG * STG
PART = FLAG + 64
LDS_BYTES = PART + 4096
import os
PRIO = int(os.environ.get('APRIO', 1))

def gen_att(a, NZ=48):
    kernel_header(a, "atta_kernel")
    a(f"s_mov_b32 s62, {0 if prep.PVAR == 3 else 1}")
    a("s_mov_b32 s96, 0")
    a("s_branch L_att_entry")
    kernel_header(a, "attb_kernel")
    a("s_mov_b32 s62, 0")
    a("s_movk_i32 s96, 12288")
    a.label("L_att_entry")
    a("s_cmp_ge_u32 s2, 256")
    a("s_cbranch_scc1 L_att_exit")
    load_ptrs(a)
    VDMA, VKM0, VKT0, VV0, VKM, VKT, VV = 5, 6, 7, 8, 10, 11, 12
    QM, QT = 16, 20
    KM, KT = 24, 32
    VF = 36
    P = 44
    O = 52
    S = 68
    T = 100
    a(f"""
    s_and_b32 s3, s2, 7
    s_lshl_b32 s5, s3, 2
    s_bfe_u32 s4, s2, 0x20003
    s_add_u32 s5, s5, s4
    s_lshr_b32 s6, s2, 5
    v_lshrrev_b32 v1, 6, v0
    v_and_b32 v2, 63, v0
    v_and_b32 v3, 31, v0
    v_readfirstlane_b32 s7, v1
    v_lshrrev_b32 v4, 5, v2
    v_lshlrev_b32 v14, 2, v4
    v_xor_b32 v14, v14, v3
    v_lshlrev_b32 v14, 4, v14
    v_lshl_add_u32 v{VKM0}, v4, 9, v14
    v_xor_b32 v14, 8, v3
    v_lshlrev_b32 v14, 4, v14
    v_lshl_add_u32 v14, v4, 3, v14
    v_add_u32 v{VKT0}, 1024, v14
    v_bfe_u32 v15, v2, 4, 1
    v_and_b32 v{T}, 3, v2
    v_lshlrev_b32 v{T+1}, 1, v15
    v_sub_u32 v{T+1}, 3, v{T+1}
    v_min_u32 v{T}, v{T}, v{T+1}
    v_lshl_add_u32 v{T}, v15, 2, v{T}
    v_lshrrev_b32 v{T+1}, 1, v{T}
    v_and_b32 v{T}, 1, v{T}
    v_bfe_u32 v14, v2, 2, 2
    v_lshl_add_u32 v14, v4, 2, v14
    v_lshlrev_b32 v{T+2}, 2, v{T+1}
    v_xor_b32 v14, v14, v{T+2}
    v_lshlrev_b32 v14, 4, v14
    v_lshl_add_u32 v14, v{T+1}, 9, v14
    v_lshl_add_u32 v14, v{T}, 3, v14
    v_add_u32 v{VV0}, 12288, v14
    v_xor_b32 v{VV0+1}, 128, v{VV0}
    s_and_b32 s8, s7, 7
    s_lshr_b32 s9, s7, 3
    s_mul_i32 s59, s9, {HSTG}
    s_bfe_u32 s10, s7, 0x10002
    s_lshl_b32 s10, s10, 5
    s_add_u32 s10, s10, 32
    s_add_u32 s10, s10, s5
    s_mul_i32 s10, s10, 98304
    s_mul_i32 s11, s9, 49152
    s_add_u32 s10, s10, s11
    s_and_b32 s11, s7, 3
    s_mul_i32 s11, s11, 3072
    s_add_u32 s10, s10, s11
    v_lshl_add_u32 v{VDMA}, v2, 4, s10
    s_mul_i32 s53, s7, 3072
    s_lshl_b32 s10, s6, 3
    s_add_u32 s10, s10, s8
    s_lshl_b32 s54, s10, 5
    s_mul_i32 s10, s10, 1536
    s_mul_i32 s11, s5, 98304
    s_add_u32 s55, s10, s11
    s_mov_b32 s64, -1
    s_mov_b32 s65, 0
    s_mov_b32 s66, 0
    s_mov_b32 s67, -1
    s_mov_b32 s56, 0
    v_mov_b32 v{T}, 0
    v_mov_b32 v{T+1}, {FLAG}
    ds_write_b32 v{T+1}, v{T}
    s_waitcnt lgkmcnt(0)
    """)
    stamp(a, 0); stamp_rt(a, 1)
    srd(a, 40, P_WS, WS_QKV, 96*98304)
    srd(a, 48, P_WS, WS_O, 2048*1280)
    srd(a, 44, P_WS, WS_FLAGS, FLAGS_BYTES)
    a(f"""
    s_cmp_ge_u32 s2, {NZ}
    s_cbranch_scc1 L_att_nofl
    s_cmp_lg_u32 s7, 15
    s_cbranch_scc1 L_att_nofl
    s_lshl_b32 s10, s2, 8
    s_add_u32 s10, s10, s96
    v_lshlrev_b32 v14, 2, v2
    buffer_store_dword v{T}, v14, s[44:47], s10 offen
    """)
    a.label("L_att_nofl")
    def dma(c):
        a(f"s_mov_b32 s57, {c*12288}")
        a(f"s_add_u32 m0, s53, {(c % NSTG)*STG}")
        a("s_nop 0")
        for i in range(3):
            a(f"buffer_load_dwordx4 v{VDMA}, s[40:43], s57 offen offset:{i*1024} lds")
    a(f"""
    buffer_load_dwordx4 {vr(QM,4)}, v{VKM0}, s[40:43], s55 offen
    buffer_load_dwordx2 {vr(QT,2)}, v{VKT0}, s[40:43], s55 offen
    """)
    a.label("L_att_restart")
    a("s_bitcmp1_b32 s7, 1")
    a("s_cbranch_scc1 L_att_late")
    dma(0)
    a.label("L_att_late")
    prep.setup(a, "L_attp", 0, 22, 23, S)
    for r in range(16):
        a(f"v_mov_b32 v{O+r}, 0")
    for r in range(4):
        a(f"v_mov_b32 v{P+4+r}, 0")
        a(f"v_mov_b32 v{VF+4+r}, 0")
    a(f"v_mov_b32 v{S+16+14}, 0")
    a(f"v_mov_b32 v{S+16+15}, 0")
    a(f"""
    v_add_u32 v{VKM}, s59, v{VKM0}
    v_add_u32 v{VKT}, s59, v{VKT0}
    s_mov_b32 s52, 0
    s_mov_b32 s58, s59
    s_mov_b32 s60, 12288
    s_add_u32 s61, s53, {STG}
    s_waitcnt vmcnt(0)
    """)
    stamp(a, 5)
    a(f"""
    s_barrier
    s_bitcmp0_b32 s7, 1
    s_cbranch_scc1 L_att_early
    """)
    dma(0)
    a.label("L_att_early")
    a(f"""
    s_cmp_lg_u32 s56, 0
    s_cbranch_scc1 L_att_have_m
    ds_read_b128 {vr(KM,4)}, v{VKM0}
    ds_read_b64 {vr(KT,2)}, v{VKT0}
    s_mov_b64 exec, s[66:67]
    v_mov_b32 v{QT}, 0
    v_mov_b32 v{QT+1}, 0
    s_mov_b64 exec, -1
    s_waitcnt lgkmcnt(0)
    s_nop 1
    v_mfma_f32_32x32x16_bf16 {vr(S,16)}, {vr(KM,4)}, {vr(QM,4)}, 0
    v_mfma_f32_32x32x8_bf16 {vr(S,16)}, {vr(KT,2)}, {vr(QT,2)}, {vr(S,16)}
    s_nop 15
    v_max3_f32 v{T}, v{S}, v{S+1}, v{S+2}
    """)
    for r in range(3, 15, 2):
        a(f"v_max3_f32 v{T}, v{T}, v{S+r}, v{S+r+1}")
    a(f"v_max_f32 v{T}, v{T}, v{S+15}")
    a.label("L_att_set_m")
    a(f"""
    v_mov_b32 v{T+1}, v{T}
    s_nop 1
    v_permlane32_swap_b32 v{T}, v{T+1}
    s_nop 1
    v_max_f32 v{T}, v{T}, v{T+1}
    v_xor_b32 v{T}, 0x80000000, v{T}
    v_and_b32 v{T+1}, 0xffff0000, v{T}
    v_sub_f32 v{T}, v{T}, v{T+1}
    v_and_b32 v{T+2}, 0xffff0000, v{T}
    v_sub_f32 v{T}, v{T}, v{T+2}
    v_lshrrev_b32 v{T+1}, 16, v{T+1}
    s_mov_b64 exec, s[66:67]
    v_or_b32 v{QT}, v{T+1}, v{T+2}
    v_lshrrev_b32 v{QT+1}, 16, v{T}
    s_mov_b64 exec, -1
    s_cmp_lg_u32 s56, 0
    s_cbranch_scc1 L_att_restart
    """)
    a.label("L_att_have_m")
    a(f"""
    ds_read_b128 {vr(KM,4)}, v{VKM}
    ds_read_b64 {vr(KT,2)}, v{VKT}
    ds_read_b128 {vr(KM+4,4)}, v{VKM} offset:1536
    ds_read_b64 {vr(KT+2,2)}, v{VKT} offset:1536
    s_waitcnt lgkmcnt(2)
    v_mfma_f32_32x32x16_bf16 {vr(S,16)}, {vr(KM,4)}, {vr(QM,4)}, 0
    v_mfma_f32_32x32x8_bf16 {vr(S,16)}, {vr(KT,2)}, {vr(QT,2)}, {vr(S,16)}
    s_nop 15
    """)
    stamp(a, 2)
    a.raw(".p2align 6")
    a.label("L_att_loop")
    for t in range(8):
        Sc = S + (t & 1)*16
        Sn = S + ((t+1) & 1)*16
        kb_use = (t+1) & 1
        kb_ld = t & 1
        e = lambda i: a(f"v_exp_f32 v{Sc+i}, v{Sc+i}")
        c = lambda i: a(f"v_cvt_pk_bf16_f32 v{P+i}, v{Sc+2*i}, v{Sc+2*i+1}")
        if PRIO and t % 2 == 0 and t != 6:
            a(f"s_setprio {2 - t//2}")
        e(0)
        a(f"v_cvt_pk_bf16_f32 v{P+7}, v{Sn+14}, v{Sn+15}")
        if t == 0:
            a(f"v_add_u32 v{VV}, s58, v{VV0}")
            a(f"v_add_u32 v{VV+1}, s58, v{VV0+1}")
        e(1)
        a("s_waitcnt lgkmcnt(2)")
        a(f"v_mfma_f32_32x32x16_bf16 {vr(O,16)}, {vr(VF+4,4)}, {vr(P+4,4)}, {vr(O,16)}")
        if t == 6:
            lab = a.newlabel("nodma")
            a(f"""
            s_add_u32 s58, s58, {STG}
            s_cmp_ge_u32 s58, {NSTG*STG}
            s_cselect_b32 s58, s59, s58
            v_add_u32 v{VKM}, s58, v{VKM0}
            v_add_u32 v{VKT}, s58, v{VKT0}
            s_cmp_eq_u32 s52, 0
            s_cselect_b32 s12, s62, 0
            s_cmp_lg_u32 s12, 0
            s_waitcnt vmcnt(8)
            s_cbranch_scc1 {lab}
            s_waitcnt vmcnt(0)
            """)
            a.label(lab)
            a(f"""
            s_barrier
            s_add_u32 s60, s60, 12288
            s_add_u32 s61, s61, {STG}
            s_cmp_ge_u32 s61, {NSTG*STG}
            s_cselect_b32 s61, s53, s61
            """)
            lab3 = a.newlabel("nos2")
            a(f"s_cmp_lg_u32 s52, 2")
            a(f"s_cbranch_scc1 {lab3}")
            prep.stage2(a, "L_attp", 23, T+4, PART, 1)
            a.label(lab3)
            lab4 = a.newlabel("nos1")
            a(f"s_cmp_lg_u32 s52, 1")
            a(f"s_cbranch_scc1 {lab4}")
            prep.stage1(a, "L_attp", 22, T+4, PART, 1)
            a.label(lab4)
            lab2 = a.newlabel("nopf")
            a(f"""
            s_cmp_lg_u32 s52, 2
            s_cbranch_scc1 {lab2}
            s_lshr_b32 s12, s2, 3
            s_lshl_b32 s12, s12, 4
            s_add_u32 s12, s12, s7
            s_lshr_b32 s13, s3, 2
            """)
            if PF & 1:
                l2_prefetch(a, 44, WS_WT2, WT2_BYTES//2, 9, 12, T+4, T+5, 14, 13)
                l2_prefetch(a, 44, WS_WT3, WT3_BYTES//2, 9, 12, T+4, T+5, 14, 13)
            if PF & 8:
                l2_prefetch(a, 44, WS_WT4, WT4_BYTES//2, 9, 12, T+4, T+5, 14, 13)
            a.label(lab2)
            if PRIO: a("s_setprio 3")
        if t == 2:
            lab = a.newlabel("nobar")
            a(f"""
            s_cmp_lg_u32 s52, 0
            s_cbranch_scc1 {lab}
            s_waitcnt vmcnt(2)
            s_barrier
            """)
            a.label(lab)
        if t == 3:
            lab = a.newlabel("nold")
            a(f"s_cmp_lg_u32 s52, 0")
            a(f"s_cbranch_scc1 {lab}")
            prep.issue_loads(a, "L_attp", 0)
            a.label(lab)
        if t < 3:
            lab = a.newlabel("nodma")
            a(f"""
            s_cmp_eq_u32 s52, 3
            s_cbranch_scc1 {lab}
            s_mov_b32 m0, s61
            s_nop 0
            buffer_load_dwordx4 v{VDMA}, s[40:43], s60 offen offset:{t*1024} lds
            """)
            a.label(lab)
        for j in range(2):
            for i in range(2):
                a(f"ds_read_b64_tr_b16 {vr(VF+4*j+2*i,2)}, v{VV+i} offset:{t*1536 + j*256}")
        kt = (t+2) % 8
        a(f"ds_read_b128 {vr(KM+4*kb_ld,4)}, v{VKM} offset:{kt*1536}")
        a(f"ds_read_b64 {vr(KT+2*kb_ld,2)}, v{VKT} offset:{kt*1536}")
        e(2); c(0); e(3); e(4); c(1)
        a("s_waitcnt lgkmcnt(6)")
        a(f"v_mfma_f32_32x32x16_bf16 {vr(Sn,16)}, {vr(KM+4*kb_use,4)}, {vr(QM,4)}, 0")
        e(5); e(6); c(2); e(7); e(8); c(3)
        a(f"v_mfma_f32_32x32x8_bf16 {vr(Sn,16)}, {vr(KT+2*kb_use,2)}, {vr(QT,2)}, {vr(Sn,16)}")
        e(9); e(10); c(4); e(11)
        a("s_waitcnt lgkmcnt(4)")
        a(f"v_mfma_f32_32x32x16_bf16 {vr(O,16)}, {vr(VF,4)}, {vr(P,4)}, {vr(O,16)}")
        e(12); c(5); e(13); e(14); c(6); e(15)
    a("""
    s_add_u32 s52, s52, 1
    s_cmp_lt_u32 s52, 4
    s_cbranch_scc1 L_att_loop
    """)
    stamp(a, 3)
    a(f"""
    s_nop 0
    v_cvt_pk_bf16_f32 v{P+7}, v{S+16+14}, v{S+16+15}
    s_waitcnt lgkmcnt(0)
    s_nop 1
    v_mfma_f32_32x32x16_bf16 {vr(O,16)}, {vr(VF+4,4)}, {vr(P+4,4)}, {vr(O,16)}
    s_mul_i32 s10, s8, 3072
    s_add_u32 s10, s10, {STG}
    v_lshl_add_u32 v{T+3}, v2, 4, s10
    v_add_u32 v13, s54, v3
    v_lshrrev_b32 v14, 4, v13
    v_mul_u32_u24 v14, 20480, v14
    v_and_b32 v13, 15, v13
    v_lshl_add_u32 v14, v13, 4, v14
    v_lshl_add_u32 v15, v4, 8, v14
    s_lshl_b32 s10, s5, 9
    s_lshr_b32 s11, s5, 1
    s_lshl_b32 s11, s11, 8
    s_and_b32 s12, s5, 1
    s_lshl_b32 s12, s12, 3
    s_add_u32 s11, s11, s12
    s_add_u32 s11, s11, 16384
    s_nop 4
    s_cmp_eq_u32 s9, 0
    s_cbranch_scc1 L_att_lower
    ds_write_b128 v{T+3}, {vr(O,4)}
    ds_write_b128 v{T+3}, {vr(O+4,4)} offset:1024
    ds_write_b128 v{T+3}, {vr(O+8,4)} offset:2048
    s_waitcnt lgkmcnt(0)
    s_barrier
    s_branch L_att_join
    """)
    a.label("L_att_lower")
    a(f"""
    s_barrier
    ds_read_b128 {vr(S,4)}, v{T+3}
    ds_read_b128 {vr(S+4,4)}, v{T+3} offset:1024
    ds_read_b128 {vr(S+8,4)}, v{T+3} offset:2048
    s_waitcnt lgkmcnt(0)
    """)
    for r in range(0, 12, 2):
        a(f"v_pk_add_f32 {vr(O+r,2)}, {vr(O+r,2)}, {vr(S+r,2)}")
    a(f"""
    v_mov_b32 v{T}, v{O+8}
    v_mov_b32 v{T+1}, v{O+8}
    v_mul_f32 v{T+2}, 0, v{O}
    s_nop 0
    v_permlane32_swap_b32 v{T}, v{T+1}
    """)
    for r in range(1, 12):
        a(f"v_fma_f32 v{T+2}, 0, v{O+r}, v{T+2}")
    a(f"v_rcp_f32 v{T+1}, v{T+1}")
    a(f"v_cmp_u_f32 vcc, v{T+2}, v{T+2}")
    for r in range(12):
        a(f"v_mul_f32 v{O+r}, v{O+r}, v{T+1}")
    for r in range(6):
        a(f"v_cvt_pk_bf16_f32 v{P+r}, v{O+2*r}, v{O+2*r+1}")
    a(f"""
    buffer_store_dwordx4 {vr(P,4)}, v15, s[48:51], s10 offen
    s_mov_b64 exec, s[64:65]
    buffer_store_dwordx2 {vr(P+4,2)}, v14, s[48:51], s11 offen
    s_mov_b64 exec, -1
    s_cbranch_vccz L_att_join
    v_mov_b32 v{T+1}, {FLAG}
    v_mov_b32 v{T}, 1
    ds_write_b32 v{T+1}, v{T}
    """)
    a.label("L_att_join")
    a(f"""
    s_cmp_lg_u32 s56, 0
    s_cbranch_scc1 L_att_done
    v_mov_b32 v{T+1}, {FLAG}
    s_waitcnt lgkmcnt(0)
    s_barrier
    ds_read_b32 v{T}, v{T+1}
    s_waitcnt lgkmcnt(0)
    v_readfirstlane_b32 s10, v{T}
    s_nop 3
    s_cmp_eq_u32 s10, 0
    s_cbranch_scc1 L_att_done
    """)
    a(f"""
    s_mov_b32 s56, 1
    s_mov_b64 exec, s[66:67]
    v_mov_b32 v{QT}, 0
    v_mov_b32 v{QT+1}, 0
    s_mov_b64 exec, -1
    v_mov_b32 v{T}, 0xff800000
    s_add_u32 s10, s5, 32
    s_mul_i32 s10, s10, 98304
    s_mov_b32 s11, 64
    """)
    a.label("L_att_maxloop")
    a(f"""
    buffer_load_dwordx4 {vr(KM,4)}, v{VKM0}, s[40:43], s10 offen
    buffer_load_dwordx2 {vr(KT,2)}, v{VKT0}, s[40:43], s10 offen
    s_waitcnt vmcnt(0)
    v_mfma_f32_32x32x16_bf16 {vr(S,16)}, {vr(KM,4)}, {vr(QM,4)}, 0
    v_mfma_f32_32x32x8_bf16 {vr(S,16)}, {vr(KT,2)}, {vr(QT,2)}, {vr(S,16)}
    s_nop 15
    """)
    for r in range(0, 16, 2):
        a(f"v_max3_f32 v{T}, v{T}, v{S+r}, v{S+r+1}")
    a("""
    s_add_u32 s10, s10, 1536
    s_sub_u32 s11, s11, 1
    s_cmp_lg_u32 s11, 0
    s_cbranch_scc1 L_att_maxloop
    s_branch L_att_set_m
    """)
    a.label("L_att_done")
    stamp_flush(a, 1, 8)
    a.label("L_att_exit")
    a("s_endpgm")
    return [("atta_kernel", 128), ("attb_kernel", 128)]
```

```python
from asmlib import *
from layout import *
import g13, os
from g13 import f32, half_sum

D13 = int(os.environ.get('D13', 4)); D24 = int(os.environ.get('D24', 4))
SC = " sc1"
MAXPOLL = 200000

def maps(a):
    a("""
    s_and_b32 s3, s2, 7
    s_lshr_b32 s4, s2, 3
    s_and_b32 s5, s3, 3
    s_lshl_b32 s5, s5, 2
    s_and_b32 s8, s4, 3
    s_add_u32 s36, s5, s8
    s_lshr_b32 s6, s3, 2
    s_lshl_b32 s9, s6, 3
    s_lshr_b32 s8, s4, 2
    s_add_u32 s37, s9, s8
    s_lshl_b32 s38, s36, 1
    s_and_b32 s8, s8, 1
    s_add_u32 s38, s38, s8
    s_lshl_b32 s39, s6, 2
    s_lshr_b32 s8, s4, 3
    s_add_u32 s39, s39, s8
    v_lshrrev_b32 v1, 6, v0
    v_and_b32 v2, 63, v0
    s_nop 0
    v_readfirstlane_b32 s7, v1
    """)

def flag_off(a, phase, sdst):
    a(f"s_mul_i32 s{sdst}, s98, {3*16*128}")
    a(f"s_lshl_b32 s8, s36, 7")
    a(f"s_add_u32 s{sdst}, s{sdst}, s8")
    if phase: a(f"s_add_u32 s{sdst}, s{sdst}, {phase*16*128}")

def poll(a, phase):
    l, d = a.newlabel("poll"), a.newlabel("polled")
    srd(a, 44, P_WS, WS_FLAGS, FLAGS_BYTES)
    flag_off(a, phase, 12)
    a(f"""
    v_lshlrev_b32 v10, 2, v2
    s_mov_b32 s13, {MAXPOLL}
    s_mov_b64 exec, 0xffff
    """)
    a.label(l)
    a(f"""
    buffer_load_dword v11, v10, s[44:47], s12 offen sc1
    s_waitcnt vmcnt(0)
    v_cmp_eq_u32 vcc, 1, v11
    s_nop 3
    s_cmp_eq_u32 vcc_lo, 0xffff
    s_cbranch_scc1 {d}
    s_sleep 1
    s_sub_u32 s13, s13, 1
    s_cmp_lg_u32 s13, 0
    s_cbranch_scc1 {l}
    """)
    a.label(d)
    a("s_mov_b64 exec, -1")

def publish(a, phase):
    l = a.newlabel("nopub")
    a("s_waitcnt vmcnt(0)")
    a("s_barrier")
    a("s_cmp_lg_u32 s7, 0")
    a(f"s_cbranch_scc1 {l}")
    srd(a, 44, P_WS, WS_FLAGS, FLAGS_BYTES)
    flag_off(a, phase, 12)
    a(f"""
    s_lshl_b32 s13, s37, 2
    s_add_u32 s12, s12, s13
    v_mov_b32 v1, 1
    s_mov_b64 exec, 1
    buffer_store_dword v1, off, s[44:47], s12 sc1
    s_mov_b64 exec, -1
    """)
    a.label(l)

def loader(a, issue, n, nch, dist, first, wait_phase, kid):
    stamp(a, 0); stamp_rt(a, 1)
    if wait_phase is None:
        for c in range(dist): issue(c)
        if not first: a("s_barrier")
    else:
        if not first:
            a("s_barrier")
            poll(a, wait_phase)
        stamp(a, 5)
        for c in range(dist): issue(c)
    nxt = dist
    for c in range(nch):
        a(f"s_waitcnt vmcnt({n * (nxt - 1 - c)})")
        if c == 0: stamp(a, 2)
        if c == nch//2: stamp(a, 4)
        a("s_barrier")
        if nxt < nch:
            issue(nxt); nxt += 1
    stamp(a, 3)
    a("s_barrier")
    stamp_flush(a, kid, 8)

ST24, NST24 = 18432, 8
def w24(a, wt_off, wt_bytes, nks):
    srd(a, 52, P_WS, wt_off, wt_bytes)
    a(f"""
    s_mul_i32 s11, s9, 5120
    s_add_u32 s57, s11, 8192
    s_mul_i32 s10, s39, {nks*5120}
    s_add_u32 s10, s10, s11
    v_lshl_add_u32 v8, v2, 4, s10
    v_add_u32 v9, 4096, v8
    """)
    def issue(c):
        a(f"s_mov_b32 s58, {c*10240}")
        a(f"s_add_u32 m0, s57, {(c % NST24) * ST24}")
        a("s_nop 0")
        for i in range(4):
            a(f"buffer_load_dwordx4 v8, s[52:55], s58 offen offset:{i*1024} lds")
        a(f"s_add_u32 m0, s57, {(c % NST24) * ST24 + 4096}")
        a("s_nop 0")
        a(f"buffer_load_dwordx4 v9, s[52:55], s58 offen lds")
    return issue, 5
def x24(a, xoff, nks, sc):
    srd(a, 52, P_WS, xoff, 128*nks*1024)
    a(f"""
    s_lshl_b32 s57, s9, 12
    s_lshl_b32 s10, s38, 2
    s_lshl_b32 s11, s9, 1
    s_add_u32 s10, s10, s11
    s_mul_i32 s10, s10, {nks*1024}
    v_lshl_add_u32 v8, v2, 4, s10
    v_add_u32 v9, {nks*1024}, v8
    """)
    def issue(c):
        a(f"s_mov_b32 s58, {c*2048}")
        for t in range(2):
            a(f"s_add_u32 m0, s57, {(c % NST24) * ST24 + t * 2048}")
            a("s_nop 0")
            for i in range(2):
                a(f"buffer_load_dwordx4 v{8+t}, s[52:55], s58 offen offset:{i*1024}{sc} lds")
    return issue, 4

def c24(a, tag, nch, st_off, kid):
    L = f"L_ch_{tag}"
    VXA, VWA, VO, VS, VR = 4, 6, 8, 9, 3
    RES, FX, FW, ACC = 10, 20, 32, 92
    stamp(a, 0); stamp_rt(a, 1)
    if tag == "g2":
        a("s_mov_b32 s40, s94\ns_mov_b32 s41, s95\ns_mov_b32 s42, 2621440\ns_mov_b32 s43, 0x00020000")
        srd(a, 48, P_WS, WS_XA, 2048*1280)
    else:
        srd(a, 40, P_WS, WS_XA, 2048*1280)
        a("s_mov_b32 s48, s96\ns_mov_b32 s49, s97\ns_mov_b32 s50, 2621440\ns_mov_b32 s51, 0x00020000")
    srd(a, 56, P_WS, st_off, 2048*64)
    a(f"""
    s_lshl_b32 s10, s38, 6
    s_lshl_b32 s11, s7, 4
    s_add_u32 s10, s10, s11
    v_and_b32 v4, 15, v2
    v_add_u32 v4, s10, v4
    v_lshlrev_b32 v{VS}, 6, v4
    v_lshrrev_b32 v1, 4, v2
    s_lshr_b32 s10, s10, 5
    s_mul_i32 s10, s10, 40960
    s_mul_i32 s11, s39, 5120
    s_add_u32 s10, s10, s11
    v_and_b32 v5, 31, v4
    v_lshl_add_u32 v5, v5, 4, s10
    v_lshrrev_b32 v6, 1, v1
    v_lshl_add_u32 v5, v6, 9, v5
    v_and_b32 v6, 1, v1
    v_lshl_add_u32 v{VR}, v6, 3, v5
    s_movk_i32 s62, 0x1000
    v_mul_u32_u24 v4, 1280, v4
    v_lshl_add_u32 v4, v1, 3, v4
    s_mul_i32 s11, s39, 160
    v_add_u32 v{VO}, s11, v4
    """)
    def frag_res(sc):
        for j in range(4):
            a(f"buffer_load_dwordx2 {vr(RES+2*j,2)}, v{VR}, s[40:43], 0 offen offset:{1024*j}{sc}")
        a(f"buffer_load_dwordx2 {vr(RES+8,2)}, v{VR}, s[40:43], s62 offen{sc}")
    if tag == "g2":
        a("s_cmp_eq_u32 s98, 0")
        a(f"s_cbranch_scc1 {L}_rres")
        frag_res("")
        a(f"s_branch {L}_resdone")
        a.label(f"{L}_rres")
        for j in range(5):
            a(f"buffer_load_dwordx2 {vr(RES+2*j,2)}, v{VO}, s[40:43], 0 offen offset:{32*j}")
        a.label(f"{L}_resdone")
    else:
        frag_res(SC)
    a(f"""
    s_lshl_b32 s10, s7, 11
    v_lshl_add_u32 v{VXA}, v2, 4, s10
    v_add_u32 v{VXA+1}, {4*ST24}, v{VXA}
    v_lshlrev_b32 v{VWA}, 4, v2
    v_add_u32 v{VWA}, 8192, v{VWA}
    v_add_u32 v{VWA+1}, {4*ST24}, v{VWA}
    s_lshl_b32 s61, s39, 3
    """)
    NB = 3
    def reads(s):
        c, ks = s // 2, s % 2
        buf = s % NB
        st = c % NST24
        sset, sin = st // 4, st % 4
        a(f"ds_read_b128 {vr(FX+buf*4,4)}, v{VXA+sset} offset:{sin*ST24 + ks*1024}")
        for j in range(5):
            a(f"ds_read_b128 {vr(FW+(buf*5+j)*4,4)}, v{VWA+sset} offset:{sin*ST24 + ks*5120 + 1024*j}")
    a("s_barrier")
    stamp(a, 2)
    reads(0); reads(1)
    NS = 2*nch
    for s_ in range(NS):
        buf = s_ % NB
        a(f"s_waitcnt lgkmcnt({6 if s_ + 1 < NS else 0})")
        if s_ % 2 == 0 and s_ // 2 + 1 < nch:
            a("s_barrier")
            if s_ // 2 + 1 == nch // 2: stamp(a, 4)
        if s_ == NS - 1:
            a("s_barrier")
        for j in range(5):
            cin = "0" if s_ == 0 else vr(ACC+4*j, 4)
            a(f"v_mfma_f32_16x16x32_bf16 {vr(ACC+4*j,4)}, {vr(FW+(buf*5+j)*4,4)}, {vr(FX+buf*4,4)}, {cin}")
            if j == 0 and s_ + 2 < NS:
                reads(s_ + 2)
    stamp(a, 3)
    a("s_waitcnt vmcnt(0)")
    a("s_nop 7")
    for j in range(5):
        t = FX + 4*(j & 1)
        a(f"""
        v_lshlrev_b32 v{t}, 16, v{RES+2*j}
        v_and_b32 v{t+1}, 0xffff0000, v{RES+2*j}
        v_lshlrev_b32 v{t+2}, 16, v{RES+2*j+1}
        v_and_b32 v{t+3}, 0xffff0000, v{RES+2*j+1}
        v_pk_add_f32 {vr(t,2)}, {vr(t,2)}, {vr(ACC+4*j,2)}
        v_pk_add_f32 {vr(t+2,2)}, {vr(t+2,2)}, {vr(ACC+4*j+2,2)}
        v_cvt_pk_bf16_f32 v{RES+2*j}, v{t}, v{t+1}
        v_cvt_pk_bf16_f32 v{RES+2*j+1}, v{t+2}, v{t+3}
        """)
    if tag == "g4":
        a("s_cmp_eq_u32 s98, 0")
        a(f"s_cbranch_scc1 {L}_frag")
        for j in range(5):
            a(f"buffer_store_dwordx2 {vr(RES+2*j,2)}, v{VO}, s[48:51], 0 offen offset:{32*j}")
        stamp_flush(a, kid, 8)
        a("s_endpgm")
        a.label(f"{L}_frag")
    for j in range(4):
        a(f"buffer_store_dwordx2 {vr(RES+2*j,2)}, v{VR}, s[48:51], 0 offen offset:{1024*j}{SC}")
    a(f"buffer_store_dwordx2 {vr(RES+8,2)}, v{VR}, s[48:51], s62 offen{SC}")
    a("v_mov_b32 v4, 0\nv_mov_b32 v5, 0\ns_mov_b32 s60, 0x3f803f80")
    for r in range(10):
        a(f"v_dot2_f32_bf16 v4, v{RES+r}, s60, v4")
        a(f"v_dot2_f32_bf16 v5, v{RES+r}, v{RES+r}, v5")
    a("s_nop 2")
    for sw in ("v_permlane16_swap_b32", "v_permlane32_swap_b32"):
        a(f"""
        v_mov_b32 v6, v4
        v_mov_b32 v7, v5
        s_nop 1
        {sw} v4, v6
        {sw} v5, v7
        s_nop 1
        v_add_f32 v4, v4, v6
        v_add_f32 v5, v5, v7
        """)
    a(f"""
    s_mov_b64 exec, 0xffff
    buffer_store_dwordx2 v[4:5], v{VS}, s[56:59], s61 offen{SC}
    s_mov_b64 exec, -1
    """)

RING = 8; NCH13 = 20
def x13(a, xoff, stage):
    srd(a, 52, P_WS, xoff, 2048*1280)
    a(f"""
    s_lshl_b32 s10, s36, 2
    s_lshl_b32 s11, s9, 1
    s_add_u32 s10, s10, s11
    s_mul_i32 s10, s10, 40960
    v_lshl_add_u32 v8, v2, 4, s10
    v_add_u32 v9, 40960, v8
    s_lshl_b32 s57, s9, 12
    """)
    def issue(c):
        a(f"s_mov_b32 s58, {c*2048}")
        for t in range(2):
            a(f"s_add_u32 m0, s57, {(c % RING) * stage + t * 2048}")
            a("s_nop 0")
            for i in range(2):
                a(f"buffer_load_dwordx4 v{8+t}, s[52:55], s58 offen offset:{i*1024}{SC} lds")
    return issue, 4
def w13(a, stage, nnt, wt_off, wt_bytes):
    n = 2 * nnt
    srd(a, 52, P_WS, wt_off, wt_bytes)
    a(f"""
    s_mul_i32 s10, s37, {41*n*1024}
    s_mul_i32 s11, s9, {n*1024}
    s_add_u32 s10, s10, s11
    v_lshl_add_u32 v8, v2, 4, s10
    v_add_u32 v9, 4096, v8
    s_add_u32 s57, s11, 8192
    """)
    def issue(c):
        a(f"s_mov_b32 s58, {c*2*n*1024}")
        for g in range((n + 3) // 4):
            a(f"s_add_u32 m0, s57, {(c % RING) * stage + g * 4096}")
            a("s_nop 0")
            for i in range(min(4, n - 4*g)):
                a(f"buffer_load_dwordx4 v{8+g}, s[52:55], s58 offen offset:{i*1024} lds")
    return issue, n

def c13_main(a, nnt, VX, VW, RS, FX, FW, ACC, XW, ST, XM, T, stage, per_set, wt_off, wt_bytes, st_off, mid_setup):
    nset = (RING + per_set - 1) // per_set
    stamp(a, 0); stamp_rt(a, 1)
    a(f"""
    s_mov_b32 s5, s36
    s_mov_b32 s6, s37
    s_lshr_b32 s8, s7, 1
    s_and_b32 s9, s7, 1
    v_and_b32 v3, 31, v2
    v_lshrrev_b32 v4, 5, v2
    """)
    srd(a, 52, P_WS, wt_off, wt_bytes)
    srd(a, 56, P_WS, st_off, 2048*64)
    a(f"""
    s_mul_i32 s10, s6, {41*2*nnt*1024}
    s_mul_i32 s11, s9, {nnt*1024}
    s_add_u32 s10, s10, s11
    s_add_u32 s10, s10, {40*2*nnt*1024}
    v_lshlrev_b32 v5, 4, v2
    s_lshl_b32 s13, s5, 7
    s_lshl_b32 s14, s8, 6
    s_add_u32 s12, s13, s14
    v_add_u32 v6, s12, v3
    v_lshlrev_b32 v6, 6, v6
    v_lshl_add_u32 v6, v4, 5, v6
    """)
    for nt in range(nnt):
        a(f"buffer_load_dwordx4 {vr(XW+4*nt,4)}, v5, s[52:55], s10 offen offset:{nt*1024}")
    a(f"""
    s_add_u32 s11, s11, 8192
    v_add_u32 v{VW}, s11, v5
    s_lshl_b32 s14, s8, 12
    v_add_u32 v{VX}, s14, v5
    """)
    for s in range(1, nset):
        a(f"v_add_u32 v{VW+s}, {s*per_set*stage}, v{VW}")
        a(f"v_add_u32 v{VX+s}, {s*per_set*stage}, v{VX}")
    mid_setup()
    NB = 3
    def reads(s):
        c, ks = s // 2, s % 2
        buf = s % NB
        st = c % RING
        sset, sin = st // per_set, st % per_set
        for mt in range(2):
            a(f"ds_read_b128 {vr(FX + (buf*2+mt)*4, 4)}, v{VX + sset} offset:{sin*stage + mt*2048 + ks*1024}")
        for nt in range(nnt):
            a(f"ds_read_b128 {vr(FW + (buf*nnt+nt)*4, 4)}, v{VW + sset} offset:{sin*stage + (ks*2*nnt + nt)*1024}")
    nreads = 2 + nnt
    a("s_barrier")
    stamp(a, 2)
    reads(0); reads(1)
    for mt in range(2):
        for i in range(2):
            a(f"buffer_load_dwordx4 {vr(ST+8*mt+4*i,4)}, v6, s[56:59], 0 offen offset:{mt*2048 + i*16}{SC}")
    NS = 2*NCH13
    for s in range(NS):
        buf = s % NB
        a(f"s_waitcnt lgkmcnt({nreads if s + 1 < NS else 0})")
        if s % 2 == 0 and s // 2 + 1 < NCH13:
            a("s_barrier")
            if s // 2 + 1 == NCH13 // 2: stamp(a, 4)
        if s == NS - 1:
            a("s_barrier")
        first = True
        for nt in range(nnt):
            for mt in range(2):
                acc = ACC + (nt*2+mt)*16
                cin = "0" if s == 0 else vr(acc, 16)
                a(f"v_mfma_f32_32x32x16_bf16 {vr(acc,16)}, {vr(FW + (buf*nnt+nt)*4, 4)}, {vr(FX + (buf*2+mt)*4, 4)}, {cin}")
                if first and s + 2 < NS:
                    reads(s + 2)
                first = False
        if s == 20:
            a("s_waitcnt vmcnt(0)")
            g13.stats_finish(a, ST, RS, XM, T)
            a("s_nop 1")
            for nt in range(nnt):
                for mt in range(2):
                    acc = ACC + (nt*2+mt)*16
                    a(f"v_mfma_f32_32x32x16_bf16 {vr(acc,16)}, {vr(XW+4*nt,4)}, {vr(XM+4*mt,4)}, {vr(acc,16)}")
    stamp(a, 3)

def c3(a):
    VX, VW, RS, FX, FW, ACC = 8, 12, 18, 24, 48, 84
    XW, ST, XM, T = 180, 192, 208, 20
    def mid():
        srd(a, 48, P_WS, WS_H, 2048*3072)
        a(f"""
        v_add_u32 v21, s12, v3
        v_lshrrev_b32 v22, 4, v21
        v_mul_u32_u24 v22, 49152, v22
        v_and_b32 v21, 15, v21
        v_lshl_add_u32 v22, v21, 4, v22
        v_lshl_add_u32 v22, v4, 8, v22
        v_add_u32 v23, {2*49152}, v22
        s_mul_i32 s10, s6, 6
        s_mul_i32 s11, s9, 3
        s_add_u32 s10, s10, s11
        s_lshl_b32 s61, s10, 9
        """)
    c13_main(a, 3, VX, VW, RS, FX, FW, ACC, XW, ST, XM, T, 20480, 3, WS_WT3, WT3_BYTES, WS_ST3, mid)
    for mt in range(2):
        a(f"v_mul_f32 v{8+2*mt}, v{RS+mt}, v{RS+mt}")
        a(f"v_mul_f32 v{9+2*mt}, v{RS+mt}, v{RS+mt}")
    a("s_nop 7")
    PK = 24
    for nt in range(3):
        for mt in range(2):
            acc = ACC + (nt*2+mt)*16
            dst = PK + (mt*3+nt)*4
            for r in range(8):
                a(f"v_max_f32 v{acc+r}, 0, v{acc+r}")
            for r in range(0, 8, 2):
                a(f"v_pk_mul_f32 {vr(acc+8+r,2)}, {vr(acc+8+r,2)}, {vr(8+2*mt,2)}")
            for r in range(0, 8, 2):
                a(f"v_pk_mul_f32 {vr(acc+r,2)}, {vr(acc+r,2)}, {vr(acc+8+r,2)}")
            for r in range(4):
                a(f"v_cvt_pk_bf16_f32 v{dst+r}, v{acc+2*r}, v{acc+2*r+1}")
            a(f"buffer_store_dwordx4 {vr(dst,4)}, v{22+mt}, s[48:51], s61 offen offset:{nt*512}{SC}")

def c1(a):
    VX, VW, RS, FX, FW, ACC = 8, 12, 18, 32, 56, 80
    XW, ST, XM, T = 144, 152, 168, 20
    c13_main(a, 2, VX, VW, RS, FX, FW, ACC, XW, ST, XM, T, 16384, 4, WS_WT1, WT1_BYTES, WS_ST1, lambda: g13.g1_epilogue_setup(a))
    a("s_branch L_g1_epilogue")

def gen_chain(a):
    for name, layer in (("cha_kernel", 0), ("chb_kernel", 1)):
        kernel_header(a, name)
        a("s_cmp_ge_u32 s2, 256")
        a("s_cbranch_scc1 L_ch_exit")
        load_ptrs(a)
        maps(a)
        a("s_waitcnt lgkmcnt(0)")
        a(f"s_mov_b32 s98, {layer}")
        if layer == 0:
            a(f"s_mov_b32 s94, s{P_AX}\ns_mov_b32 s95, s{P_AX+1}\ns_add_u32 s96, s{P_WS}, {WS_XB}\ns_addc_u32 s97, s{P_WS+1}, 0")
        else:
            a(f"s_add_u32 s94, s{P_WS}, {WS_XB}\ns_addc_u32 s95, s{P_WS+1}, 0\ns_mov_b32 s96, s{P_OUT}\ns_mov_b32 s97, s{P_OUT+1}")
        a("s_branch L_ch_body")
    a.label("L_ch_exit")
    a("s_endpgm")
    a.label("L_ch_body")
    a("s_cmp_lt_u32 s7, 4")
    a("s_cbranch_scc1 L_ch_compute")
    a("s_and_b32 s9, s7, 1")
    a("s_cmp_ge_u32 s7, 6")
    a("s_cbranch_scc1 L_ch_xload")
    i, n = w24(a, WS_WT2, WT2_BYTES, 20); loader(a, i, n, 10, D24, True, None, 2)
    i, n = w13(a, 20480, 3, WS_WT3, WT3_BYTES); loader(a, i, n, NCH13, D13, False, None, 3)
    i, n = w24(a, WS_WT4, WT4_BYTES, 48); loader(a, i, n, 24, D24, False, None, 4)
    a("s_cmp_eq_u32 s98, 1")
    a("s_cbranch_scc1 L_ch_exit")
    i, n = w13(a, 16384, 2, WS_WT1, WT1_BYTES); loader(a, i, n, NCH13, D13, False, None, 0)
    a("s_endpgm")
    a.label("L_ch_xload")
    i, n = x24(a, WS_O, 20, ""); loader(a, i, n, 10, D24, True, 0, 2)
    i, n = x13(a, WS_XA, 20480); loader(a, i, n, NCH13, D13, False, 0, 3)
    i, n = x24(a, WS_H, 48, SC); loader(a, i, n, 24, D24, False, 1, 4)
    a("s_cmp_eq_u32 s98, 1")
    a("s_cbranch_scc1 L_ch_exit")
    i, n = x13(a, WS_XB, 16384); loader(a, i, n, NCH13, D13, False, 2, 0)
    a("s_endpgm")
    a.label("L_ch_compute")
    c24(a, "g2", 10, WS_ST3, 2); publish(a, 0); stamp_flush(a, 2, 8)
    c3(a); publish(a, 1); stamp_flush(a, 3, 8)
    c24(a, "g4", 24, WS_ST1, 4); publish(a, 2); stamp_flush(a, 4, 8)
    c1(a)
    return [("cha_kernel", 216), ("chb_kernel", 216)]
```

```python
import sys
sys.path.insert(0, "gen")
from asmlib import *
import g13, g24, att, k0, g1raw, chain, os
CHAIN = int(os.environ.get('CHAIN', 1))

def build(extra_launches=0):
    a = Asm()
    launches = [("g1a_kernel", 768, g1raw.LDS_BYTES), ("atta_kernel", 1024, att.LDS_BYTES), ("g2a_kernel", 512, g24.STAGE*g24.NST), ("g3_kernel", 512, 163840), ("g4a_kernel", 512, g24.STAGE*g24.NST),
                ("g1b_kernel", 512, 131072), ("attb_kernel", 1024, att.LDS_BYTES), ("g2b_kernel", 512, g24.STAGE*g24.NST), ("g3_kernel", 512, 163840), ("g4b_kernel", 512, g24.STAGE*g24.NST)]
    if CHAIN:
        launches = [launches[0], launches[1], ("cha_kernel", 512, 163840), launches[6], ("chb_kernel", 512, 163840)]
    hdr = open("interleave_layers__mha_block__glu_gated_reglu__prompt.s.ref").read().split("\n")
    head = [l for l in hdr if l.startswith(";") and "@launch" not in l and "Override" not in l and "grid=ceil" not in l]
    out = head[:11]
    for k, b, lds in launches:
        out.append(f"; @launch kernel={k} grid=(256,1,1) block=({b},1,1) lds={lds}")
    for _ in range(extra_launches):
        out.append(f"; @launch kernel=nop_kernel grid=(256,1,1) block=(256,1,1) lds=0")
    out.append('.amdgcn_target "amdgcn-amd-amdhsa--gfx950"')
    out.append(".text")
    ks = []
    a.gemm = True
    ks += g1raw.gen_g1a(a)
    ks += g13.gen_g1(a)
    a.gemm = False
    ks += att.gen_att(a)
    a.gemm = True
    if CHAIN:
        ks = [k for k in ks if k[0] != "g1b_kernel"]
        ks += chain.gen_chain(a)
    else:
        ks += g24.gen_g2(a)
        ks += g13.gen_g3(a)
        ks += g24.gen_g4(a)
    if extra_launches:
        kernel_header(a, "nop_kernel"); a("s_endpgm"); ks.append(("nop_kernel", 8))
    a.raw(".p2align 8")
    a.raw("L_text_end:")
    a.raw(".fill (65536 - (L_text_end - g1a_kernel))/4, 4, 0xbf800000")
    txt = "\n".join(out) + "\n" + a.text() + '.section .rodata,"a"\n'
    for k, v in ks:
        txt += kernel_desc(k, v, 100)
    return txt

if __name__ == "__main__":
    dst = sys.argv[1] if len(sys.argv) > 1 else "interleave_layers__mha_block__glu_gated_reglu__prompt.s"
    extra = int(sys.argv[2]) if len(sys.argv) > 2 else 0
    if len(sys.argv) > 3 and sys.argv[3] == "stamps":
        import asmlib
        asmlib.STAMPS = True
    open(dst, "w").write(build(extra))
    print("wrote", dst)
```

```python
from asmlib import *
from layout import *
import os

HSTG = 24576
STG = 2 * HSTG
NSTG = 3
FLAG = NSTG * STG
LDS_BYTES = FLAG + 64
PRIO8 = int(os.environ.get('PRIO8', 1))

def body(a, L, sc_load="", sc_store="", wait_hook=None, end_hook=None, layer_flag_zero=None):
    VDMA, VKM0, VKT0, VV0, VKM, VKT, VV = 5, 6, 7, 8, 10, 11, 12
    Q = [16, 24]
    KM, KT = 32, 40
    VF = 44
    P = [60, 68]
    O = [76, 92]
    S = [108, 124]
    T = 140
    a(f"""
    s_and_b32 s3, s2, 7
    s_lshl_b32 s5, s3, 2
    s_bfe_u32 s4, s2, 0x20003
    s_add_u32 s5, s5, s4
    s_lshr_b32 s6, s2, 5
    v_and_b32 v3, 31, v2
    v_lshrrev_b32 v4, 5, v2
    v_lshlrev_b32 v14, 2, v4
    v_xor_b32 v14, v14, v3
    v_lshlrev_b32 v14, 4, v14
    v_lshl_add_u32 v{VKM0}, v4, 9, v14
    v_xor_b32 v14, 8, v3
    v_lshlrev_b32 v14, 4, v14
    v_lshl_add_u32 v14, v4, 3, v14
    v_add_u32 v{VKT0}, 1024, v14
    v_bfe_u32 v15, v2, 4, 1
    v_and_b32 v{T}, 3, v2
    v_lshlrev_b32 v{T+1}, 1, v15
    v_sub_u32 v{T+1}, 3, v{T+1}
    v_min_u32 v{T}, v{T}, v{T+1}
    v_lshl_add_u32 v{T}, v15, 2, v{T}
    v_lshrrev_b32 v{T+1}, 1, v{T}
    v_and_b32 v{T}, 1, v{T}
    v_bfe_u32 v14, v2, 2, 2
    v_lshl_add_u32 v14, v4, 2, v14
    v_lshlrev_b32 v{T+2}, 2, v{T+1}
    v_xor_b32 v14, v14, v{T+2}
    v_lshlrev_b32 v14, 4, v14
    v_lshl_add_u32 v14, v{T+1}, 9, v14
    v_lshl_add_u32 v14, v{T}, 3, v14
    v_add_u32 v{VV0}, 12288, v14
    v_xor_b32 v{VV0+1}, 128, v{VV0}
    s_and_b32 s8, s7, 3
    s_lshr_b32 s9, s7, 2
    s_mul_i32 s59, s9, {HSTG}
    s_bfe_u32 s10, s7, 0x10001
    s_lshl_b32 s10, s10, 5
    s_add_u32 s10, s10, 32
    s_add_u32 s10, s10, s5
    s_mul_i32 s10, s10, 98304
    s_mul_i32 s11, s9, 49152
    s_add_u32 s10, s10, s11
    s_and_b32 s11, s7, 1
    s_mul_i32 s11, s11, 6144
    s_add_u32 s10, s10, s11
    v_lshl_add_u32 v{VDMA}, v2, 4, s10
    v_add_u32 v15, 3072, v{VDMA}
    s_mul_i32 s53, s7, 6144
    s_lshl_b32 s10, s6, 3
    s_lshl_b32 s11, s8, 1
    s_add_u32 s10, s10, s11
    s_lshl_b32 s54, s10, 5
    s_mul_i32 s10, s10, 1536
    s_mul_i32 s11, s5, 98304
    s_add_u32 s55, s10, s11
    s_mov_b32 s64, -1
    s_mov_b32 s65, 0
    s_mov_b32 s66, 0
    s_mov_b32 s67, -1
    s_mov_b32 s56, 0
    v_mov_b32 v{T}, 0
    v_mov_b32 v{T+1}, {FLAG}
    ds_write_b32 v{T+1}, v{T}
    s_waitcnt lgkmcnt(0)
    """)
    stamp(a, 0); stamp_rt(a, 1)
    srd(a, 40, P_WS, WS_QKV, 96*98304)
    srd(a, 48, P_WS, WS_O, 2048*1280)
    if layer_flag_zero: layer_flag_zero(T)
    if wait_hook: wait_hook()
    def dma_i(i, ssoff, sbase):
        a(f"s_add_u32 m0, {sbase}, {3072*(i//3)}")
        a("s_nop 0")
        a(f"buffer_load_dwordx4 v{VDMA if i < 3 else 15}, s[40:43], {ssoff} offen offset:{(i%3)*1024}{sc_load} lds")
    def dma0():
        for i in range(6): dma_i(i, "0", "s53")
    for b in range(2):
        a(f"buffer_load_dwordx4 {vr(Q[b],4)}, v{VKM0}, s[40:43], s55 offen offset:{b*1536}{sc_load}")
        a(f"buffer_load_dwordx2 {vr(Q[b]+4,2)}, v{VKT0}, s[40:43], s55 offen offset:{b*1536}{sc_load}")
    a.label(f"{L}_restart")
    a("s_bitcmp1_b32 s7, 0")
    a(f"s_cbranch_scc1 {L}_late")
    dma0()
    a.label(f"{L}_late")
    for b in range(2):
        for r in range(16):
            a(f"v_mov_b32 v{O[b]+r}, 0")
    for r in range(8):
        a(f"v_mov_b32 v{P[1]+r}, 0")
        a(f"v_mov_b32 v{VF+8+r}, 0")
    a(f"""
    v_add_u32 v{VKM}, s59, v{VKM0}
    v_add_u32 v{VKT}, s59, v{VKT0}
    s_mov_b32 s52, 0
    s_mov_b32 s58, s59
    s_mov_b32 s60, 12288
    s_add_u32 s61, s53, {STG}
    s_waitcnt vmcnt(0)
    """)
    stamp(a, 5)
    a(f"""
    s_barrier
    s_bitcmp0_b32 s7, 0
    s_cbranch_scc1 {L}_early
    """)
    dma0()
    a.label(f"{L}_early")
    a(f"""
    s_cmp_lg_u32 s56, 0
    s_cbranch_scc1 {L}_have_m
    ds_read_b128 {vr(KM,4)}, v{VKM0}
    ds_read_b64 {vr(KT,2)}, v{VKT0}
    s_mov_b64 exec, s[66:67]
    v_mov_b32 v{Q[0]+4}, 0
    v_mov_b32 v{Q[0]+5}, 0
    v_mov_b32 v{Q[1]+4}, 0
    v_mov_b32 v{Q[1]+5}, 0
    s_mov_b64 exec, -1
    s_waitcnt lgkmcnt(0)
    s_nop 1
    """)
    for b in range(2):
        a(f"v_mfma_f32_32x32x16_bf16 {vr(S[b],16)}, {vr(KM,4)}, {vr(Q[b],4)}, 0")
        a(f"v_mfma_f32_32x32x8_bf16 {vr(S[b],16)}, {vr(KT,2)}, {vr(Q[b]+4,2)}, {vr(S[b],16)}")
    a("s_nop 15")
    for b in range(2):
        m = T + 4*b
        a(f"v_max3_f32 v{m}, v{S[b]}, v{S[b]+1}, v{S[b]+2}")
        for r in range(3, 15, 2):
            a(f"v_max3_f32 v{m}, v{m}, v{S[b]+r}, v{S[b]+r+1}")
        a(f"v_max_f32 v{m}, v{m}, v{S[b]+15}")
    a.label(f"{L}_set_m")
    for b in range(2):
        m = T + 4*b
        a(f"""
        v_mov_b32 v{m+1}, v{m}
        s_nop 1
        v_permlane32_swap_b32 v{m}, v{m+1}
        s_nop 1
        v_max_f32 v{m}, v{m}, v{m+1}
        v_xor_b32 v{m}, 0x80000000, v{m}
        v_and_b32 v{m+1}, 0xffff0000, v{m}
        v_sub_f32 v{m}, v{m}, v{m+1}
        v_and_b32 v{m+2}, 0xffff0000, v{m}
        v_sub_f32 v{m}, v{m}, v{m+2}
        v_lshrrev_b32 v{m+1}, 16, v{m+1}
        s_mov_b64 exec, s[66:67]
        v_or_b32 v{Q[b]+4}, v{m+1}, v{m+2}
        v_lshrrev_b32 v{Q[b]+5}, 16, v{m}
        s_mov_b64 exec, -1
        """)
    a(f"""
    s_cmp_lg_u32 s56, 0
    s_cbranch_scc1 {L}_restart
    """)
    a.label(f"{L}_have_m")
    a(f"""
    ds_read_b128 {vr(KM,4)}, v{VKM}
    ds_read_b64 {vr(KT,2)}, v{VKT}
    v_mov_b32 v{S[1]+14}, 0
    v_mov_b32 v{S[1]+15}, 0
    s_waitcnt lgkmcnt(0)
    v_mfma_f32_32x32x16_bf16 {vr(S[0],16)}, {vr(KM,4)}, {vr(Q[0],4)}, 0
    v_mfma_f32_32x32x8_bf16 {vr(S[0],16)}, {vr(KT,2)}, {vr(Q[0]+4,2)}, {vr(S[0],16)}
    s_nop 15
    """)
    stamp(a, 2)
    a.raw(".p2align 6")
    a.label(f"{L}_loop")
    def phase(X, Y, kb, vb, pre=None, mid=None, waits=(None, None)):
        Sx, Sy = S[X], S[Y]
        e = lambda i: a(f"v_exp_f32 v{Sx+i}, v{Sx+i}")
        c = lambda i: a(f"v_cvt_pk_bf16_f32 v{P[X]+i}, v{Sx+2*i}, v{Sx+2*i+1}")
        e(0)
        a(f"v_cvt_pk_bf16_f32 v{P[Y]+7}, v{Sy+14}, v{Sy+15}")
        e(1)
        if pre: pre()
        if waits[0] is not None: a(f"s_waitcnt lgkmcnt({waits[0]})")
        a(f"v_mfma_f32_32x32x16_bf16 {vr(Sy,16)}, {vr(KM+4*kb,4)}, {vr(Q[Y],4)}, 0")
        if mid: mid()
        e(2); c(0); e(3); e(4); c(1)
        a(f"v_mfma_f32_32x32x8_bf16 {vr(Sy,16)}, {vr(KT+2*kb,2)}, {vr(Q[Y]+4,2)}, {vr(Sy,16)}")
        e(5); e(6); c(2); e(7); e(8)
        if waits[1] is not None: a(f"s_waitcnt lgkmcnt({waits[1]})")
        a(f"v_mfma_f32_32x32x16_bf16 {vr(O[Y],16)}, {vr(VF+8*vb,4)}, {vr(P[Y],4)}, {vr(O[Y],16)}")
        c(3); e(9); e(10); c(4); e(11); e(12)
        a(f"v_mfma_f32_32x32x16_bf16 {vr(O[Y],16)}, {vr(VF+8*vb+4,4)}, {vr(P[Y]+4,4)}, {vr(O[Y],16)}")
        c(5); e(13); e(14); c(6); e(15)
    for t in range(8):
        kb, vb = t & 1, t & 1
        def pre():
            if PRIO8 and t % 2 == 0:
                a(f"s_setprio {[2,1,0,3][t//2] if t != 6 else 0}")
            if t == 0:
                a(f"v_add_u32 v{VV}, s58, v{VV0}")
                a(f"v_add_u32 v{VV+1}, s58, v{VV0+1}")
        def mid():
            if t == 3:
                lab = a.newlabel("nobar")
                a(f"""
                s_cmp_lg_u32 s52, 0
                s_cbranch_scc1 {lab}
                s_waitcnt vmcnt(3)
                s_barrier
                """)
                a.label(lab)
            if t == 7:
                a(f"""
                s_add_u32 s58, s58, {STG}
                s_cmp_ge_u32 s58, {NSTG*STG}
                s_cselect_b32 s58, s59, s58
                v_add_u32 v{VKM}, s58, v{VKM0}
                v_add_u32 v{VKT}, s58, v{VKT0}
                s_waitcnt vmcnt(0)
                s_barrier
                s_add_u32 s60, s60, 12288
                s_add_u32 s61, s61, {STG}
                s_cmp_ge_u32 s61, {NSTG*STG}
                s_cselect_b32 s61, s53, s61
                """)
                if PRIO8: a("s_setprio 3")
                if PF & 1:
                    lab2 = a.newlabel("nopf")
                    a(f"""
                    s_cmp_lg_u32 s52, 2
                    s_cbranch_scc1 {lab2}
                    s_lshr_b32 s12, s2, 3
                    s_lshl_b32 s12, s12, 3
                    s_add_u32 s12, s12, s7
                    s_lshr_b32 s13, s3, 2
                    """)
                    l2_prefetch(a, 44, WS_WT2, WT2_BYTES//2, 8, 12, T+4, T+5, 14, 13)
                    l2_prefetch(a, 44, WS_WT3, WT3_BYTES//2, 8, 12, T+4, T+5, 14, 13)
                    a.label(lab2)
            if t < 6:
                lab = a.newlabel("nodma")
                a(f"s_cmp_eq_u32 s52, 3")
                a(f"s_cbranch_scc1 {lab}")
                dma_i(t, "s60", "s61")
                a.label(lab)
            kt = (t+1) % 8
            a(f"ds_read_b128 {vr(KM+4*(kb^1),4)}, v{VKM} offset:{kt*1536}")
            a(f"ds_read_b64 {vr(KT+2*(kb^1),2)}, v{VKT} offset:{kt*1536}")
            for j in range(2):
                for i in range(2):
                    a(f"ds_read_b64_tr_b16 {vr(VF+8*vb+4*j+2*i,2)}, v{VV+i} offset:{t*1536 + j*256}")
        phase(0, 1, kb, vb ^ 1, pre, mid)
        phase(1, 0, kb ^ 1, vb, None, None, (4, 0))
    a(f"""
    s_add_u32 s52, s52, 1
    s_cmp_lt_u32 s52, 4
    s_cbranch_scc1 {L}_loop
    """)
    stamp(a, 3)
    a(f"""
    s_nop 0
    v_cvt_pk_bf16_f32 v{P[1]+7}, v{S[1]+14}, v{S[1]+15}
    s_setprio 0
    s_nop 1
    v_mfma_f32_32x32x16_bf16 {vr(O[1],16)}, {vr(VF+8,4)}, {vr(P[1],4)}, {vr(O[1],16)}
    v_mfma_f32_32x32x16_bf16 {vr(O[1],16)}, {vr(VF+12,4)}, {vr(P[1]+4,4)}, {vr(O[1],16)}
    s_mul_i32 s10, s8, 6144
    s_add_u32 s10, s10, {STG}
    v_lshl_add_u32 v{T+3}, v2, 4, s10
    v_add_u32 v13, s54, v3
    v_lshrrev_b32 v14, 4, v13
    v_mul_u32_u24 v14, 20480, v14
    v_and_b32 v13, 15, v13
    v_lshl_add_u32 v14, v13, 4, v14
    v_lshl_add_u32 v13, v4, 8, v14
    s_lshl_b32 s10, s5, 9
    s_lshr_b32 s11, s5, 1
    s_lshl_b32 s11, s11, 8
    s_and_b32 s12, s5, 1
    s_lshl_b32 s12, s12, 3
    s_add_u32 s11, s11, s12
    s_add_u32 s11, s11, 16384
    s_nop 4
    """)
    a(f"""
    s_cmp_eq_u32 s9, 0
    s_cbranch_scc1 {L}_lo
    """)
    for k in range(3):
        a(f"ds_write_b128 v{T+3}, {vr(O[0]+4*k,4)} offset:{1024*k}")
    for r in range(12):
        a(f"v_mov_b32 v{O[0]+r}, v{O[1]+r}")
    a(f"""
    v_add_u32 v{T+3}, 3072, v{T+3}
    v_add_u32 v13, 40960, v13
    v_add_u32 v14, 40960, v14
    s_branch {L}_x
    """)
    a.label(f"{L}_lo")
    for k in range(3):
        a(f"ds_write_b128 v{T+3}, {vr(O[1]+4*k,4)} offset:{3072 + 1024*k}")
    a.label(f"{L}_x")
    Oa, Sa, Pa = O[0], S[0], P[0]
    a(f"""
    s_waitcnt lgkmcnt(0)
    s_barrier
    ds_read_b128 {vr(Sa,4)}, v{T+3}
    ds_read_b128 {vr(Sa+4,4)}, v{T+3} offset:1024
    ds_read_b128 {vr(Sa+8,4)}, v{T+3} offset:2048
    s_waitcnt lgkmcnt(0)
    """)
    for r in range(0, 12, 2):
        a(f"v_pk_add_f32 {vr(Oa+r,2)}, {vr(Oa+r,2)}, {vr(Sa+r,2)}")
    a(f"""
    v_mov_b32 v{T}, v{Oa+8}
    v_mov_b32 v{T+1}, v{Oa+8}
    v_mul_f32 v{T+2}, 0, v{Oa}
    s_nop 0
    v_permlane32_swap_b32 v{T}, v{T+1}
    """)
    for r in range(1, 12):
        a(f"v_fma_f32 v{T+2}, 0, v{Oa+r}, v{T+2}")
    a(f"v_rcp_f32 v{T+1}, v{T+1}")
    a(f"v_cmp_u_f32 vcc, v{T+2}, v{T+2}")
    for r in range(12):
        a(f"v_mul_f32 v{Oa+r}, v{Oa+r}, v{T+1}")
    for r in range(6):
        a(f"v_cvt_pk_bf16_f32 v{Pa+r}, v{Oa+2*r}, v{Oa+2*r+1}")
    a(f"""
    buffer_store_dwordx4 {vr(Pa,4)}, v13, s[48:51], s10 offen{sc_store}
    s_mov_b64 exec, s[64:65]
    buffer_store_dwordx2 {vr(Pa+4,2)}, v14, s[48:51], s11 offen{sc_store}
    s_mov_b64 exec, -1
    s_cmp_lg_u32 s56, 0
    s_cbranch_scc1 {L}_done
    v_mov_b32 v{T+1}, {FLAG}
    s_cbranch_vccz {L}_ok
    v_mov_b32 v{T}, 1
    ds_write_b32 v{T+1}, v{T}
    """)
    a.label(f"{L}_ok")
    a(f"""
    s_waitcnt lgkmcnt(0)
    s_barrier
    ds_read_b32 v{T}, v{T+1}
    s_waitcnt lgkmcnt(0)
    v_readfirstlane_b32 s10, v{T}
    s_nop 3
    s_cmp_eq_u32 s10, 0
    s_cbranch_scc1 {L}_done
    s_mov_b32 s56, 1
    s_mov_b64 exec, s[66:67]
    v_mov_b32 v{Q[0]+4}, 0
    v_mov_b32 v{Q[0]+5}, 0
    v_mov_b32 v{Q[1]+4}, 0
    v_mov_b32 v{Q[1]+5}, 0
    s_mov_b64 exec, -1
    v_mov_b32 v{T}, 0xff800000
    v_mov_b32 v{T+4}, 0xff800000
    s_add_u32 s10, s5, 32
    s_mul_i32 s10, s10, 98304
    s_mov_b32 s11, 64
    """)
    a.label(f"{L}_maxloop")
    a(f"""
    buffer_load_dwordx4 {vr(KM,4)}, v{VKM0}, s[40:43], s10 offen{sc_load}
    buffer_load_dwordx2 {vr(KT,2)}, v{VKT0}, s[40:43], s10 offen{sc_load}
    s_waitcnt vmcnt(0)
    """)
    for b in range(2):
        a(f"v_mfma_f32_32x32x16_bf16 {vr(S[b],16)}, {vr(KM,4)}, {vr(Q[b],4)}, 0")
        a(f"v_mfma_f32_32x32x8_bf16 {vr(S[b],16)}, {vr(KT,2)}, {vr(Q[b]+4,2)}, {vr(S[b],16)}")
    a("s_nop 15")
    for b in range(2):
        for r in range(0, 16, 2):
            a(f"v_max3_f32 v{T+4*b}, v{T+4*b}, v{S[b]+r}, v{S[b]+r+1}")
    a(f"""
    s_add_u32 s10, s10, 1536
    s_sub_u32 s11, s11, 1
    s_cmp_lg_u32 s11, 0
    s_cbranch_scc1 {L}_maxloop
    s_branch {L}_set_m
    """)
    a.label(f"{L}_done")
    if end_hook: end_hook()
    stamp_flush(a, 1, 8)

def gen_att8(a):
    kernel_header(a, "attc_kernel")
    a("s_cmp_ge_u32 s2, 256")
    a("s_cbranch_scc1 L_a8_exit")
    load_ptrs(a)
    a("""
    v_lshrrev_b32 v1, 6, v0
    v_and_b32 v2, 63, v0
    s_nop 0
    v_readfirstlane_b32 s7, v1
    """)
    def zero(T):
        srd(a, 44, P_WS, WS_FLAGS, FLAGS_BYTES)
        a(f"""
        s_cmp_ge_u32 s2, 48
        s_cbranch_scc1 L_a8_nofl
        s_cmp_lg_u32 s7, 7
        s_cbranch_scc1 L_a8_nofl
        s_lshl_b32 s10, s2, 8
        s_add_u32 s10, s10, 12288
        v_lshlrev_b32 v14, 2, v2
        buffer_store_dword v{T}, v14, s[44:47], s10 offen
        """)
        a.label("L_a8_nofl")
    body(a, "L_a8", layer_flag_zero=zero)
    a.label("L_a8_exit")
    a("s_endpgm")
    return [("attc_kernel", 148)]
```

```python
from asmlib import *
from layout import *
import g13, att8, os
from g13 import f32, half_sum

D13 = int(os.environ.get('D13', 4)); D24 = int(os.environ.get('D24', 4))
SC = " sc1"
MAXPOLL = 200000
SLP = int(os.environ.get('SLP', 2))

def maps(a):
    a("""
    s_and_b32 s3, s2, 7
    s_lshr_b32 s4, s2, 3
    s_and_b32 s5, s3, 3
    s_lshl_b32 s5, s5, 2
    s_and_b32 s8, s4, 3
    s_add_u32 s36, s5, s8
    s_lshr_b32 s6, s3, 2
    s_lshl_b32 s9, s6, 3
    s_lshr_b32 s8, s4, 2
    s_add_u32 s37, s9, s8
    s_lshl_b32 s38, s36, 1
    s_and_b32 s8, s8, 1
    s_add_u32 s38, s38, s8
    s_lshl_b32 s39, s6, 2
    s_lshr_b32 s8, s4, 3
    s_add_u32 s39, s39, s8
    v_lshrrev_b32 v1, 6, v0
    v_and_b32 v2, 63, v0
    s_nop 0
    v_readfirstlane_b32 s7, v1
    """)

def flag_off(a, phase, sdst):
    a(f"s_mul_i32 s{sdst}, s98, {3*16*256}")
    a(f"s_lshl_b32 s8, s36, 8")
    a(f"s_add_u32 s{sdst}, s{sdst}, s8")
    if phase: a(f"s_add_u32 s{sdst}, s{sdst}, {phase*16*256}")

def poll(a, phase):
    l, d = a.newlabel("poll"), a.newlabel("polled")
    srd(a, 44, P_WS, WS_FLAGS, FLAGS_BYTES)
    flag_off(a, phase, 12)
    a(f"""
    v_lshlrev_b32 v10, 2, v2
    s_mov_b32 s13, {MAXPOLL}
    """)
    a.label(l)
    a(f"""
    buffer_load_dword v11, v10, s[44:47], s12 offen sc1
    s_waitcnt vmcnt(0)
    v_cmp_eq_u32 vcc, 1, v11
    s_nop 3
    s_cmp_eq_u64 vcc, -1
    s_cbranch_scc1 {d}
    s_sleep {SLP}
    s_sub_u32 s13, s13, 1
    s_cmp_lg_u32 s13, 0
    s_cbranch_scc1 {l}
    """)
    a.label(d)

def poll_v(a, vaddrs):
    l, d = a.newlabel("poll"), a.newlabel("polled")
    a(f"s_mov_b32 s13, {MAXPOLL}")
    a.label(l)
    for i, v in enumerate(vaddrs):
        a(f"buffer_load_dword v{148+i}, v{v}, s[44:47], 0 offen sc1")
    a("s_waitcnt vmcnt(0)")
    for i in range(1, len(vaddrs)):
        a(f"v_and_b32 v148, v148, v{148+i}")
    a(f"""
    v_cmp_eq_u32 vcc, 1, v148
    s_nop 3
    s_cmp_eq_u64 vcc, -1
    s_cbranch_scc1 {d}
    s_sleep {SLP}
    s_sub_u32 s13, s13, 1
    s_cmp_lg_u32 s13, 0
    s_cbranch_scc1 {l}
    """)
    a.label(d)

def raise_flag(a):
    srd(a, 44, P_WS, WS_FLAGS, FLAGS_BYTES)
    a(f"""
    v_mov_b32 v1, 1
    s_mov_b64 exec, 1
    s_waitcnt vmcnt(0)
    buffer_store_dword v1, off, s[44:47], s12 sc1
    s_mov_b64 exec, -1
    """)

def publish(a, phase):
    srd(a, 44, P_WS, WS_FLAGS, FLAGS_BYTES)
    flag_off(a, phase, 12)
    a(f"""
    s_lshl_b32 s13, s37, 4
    s_add_u32 s12, s12, s13
    s_lshl_b32 s13, s7, 2
    s_add_u32 s12, s12, s13
    v_mov_b32 v1, 1
    s_mov_b64 exec, 1
    s_waitcnt vmcnt(0)
    buffer_store_dword v1, off, s[44:47], s12 sc1
    s_mov_b64 exec, -1
    s_barrier
    """)

WT = int(os.environ.get('WT', 0))
MEGA = int(os.environ.get('MEGA', 1))
def loader(a, issue, n, nch, dist, first, wait_phase, kid, touch=None):
    stamp(a, 0); stamp_rt(a, 1)
    T = 0
    if wait_phase is None:
        for c in range(dist): issue(c)
        if touch and WT:
            sidx, total, cbytes, nshare, ssh = touch
            start = dist * cbytes
            lines = (total - start) // 128
            T = (lines + 64*2*nshare - 1) // (64*2*nshare)
            a(f"""
            s_and_b32 s12, s{ssh}, {nshare-1}
            s_lshl_b32 s12, s12, 1
            s_add_u32 s12, s12, s9
            s_lshl_b32 s12, s12, 7
            s_mul_i32 s13, s{sidx}, {total}
            s_add_u32 s12, s12, s13
            s_add_u32 s12, s12, {start}
            s_mov_b32 s44, s52
            s_mov_b32 s45, s53
            s_add_u32 s46, s13, {total}
            s_mov_b32 s47, 0x00020000
            v_mul_u32_u24 v10, {256*nshare}, v2
            """)
            for t in range(T):
                a(f"buffer_load_dword v11, v10, s[44:47], s12 offen")
                a(f"s_add_u32 s12, s12, {64*256*nshare}")
        if not first: a("s_barrier")
    else:
        if not first:
            a("s_barrier")
            poll(a, wait_phase)
        elif MEGA:
            l = a.newlabel("noatt")
            a("s_cmp_eq_u32 s98, 0")
            a(f"s_cbranch_scc1 {l}")
            srd(a, 44, P_WS, WS_FLAGS, FLAGS_BYTES)
            a(f"s_lshl_b32 s12, s38, 8")
            a(f"s_add_u32 s12, s12, {FL_ATT}")
            a(f"v_lshl_add_u32 v10, v2, 2, s12")
            poll_v(a, [10])
            a.label(l)
        stamp(a, 5)
        for c in range(dist): issue(c)
    nxt = dist
    for c in range(nch):
        a(f"s_waitcnt vmcnt({n * (nxt - 1 - c) + (T if c < dist else 0)})")
        if c == 0: stamp(a, 2)
        if c == nch//2: stamp(a, 4)
        a("s_barrier")
        if nxt < nch:
            issue(nxt); nxt += 1
    stamp(a, 3)
    a("s_barrier")
    stamp_flush(a, kid, 8)

ST24, NST24 = 18432, 8
def w24(a, wt_off, wt_bytes, nks):
    srd(a, 52, P_WS, wt_off, wt_bytes)
    a(f"""
    s_mul_i32 s11, s9, 5120
    s_add_u32 s57, s11, 8192
    s_mul_i32 s10, s39, {nks*5120}
    s_add_u32 s10, s10, s11
    v_lshl_add_u32 v8, v2, 4, s10
    v_add_u32 v9, 4096, v8
    """)
    def issue(c):
        a(f"s_mov_b32 s58, {c*10240}")
        a(f"s_add_u32 m0, s57, {(c % NST24) * ST24}")
        a("s_nop 0")
        for i in range(4):
            a(f"buffer_load_dwordx4 v8, s[52:55], s58 offen offset:{i*1024} lds")
        a(f"s_add_u32 m0, s57, {(c % NST24) * ST24 + 4096}")
        a("s_nop 0")
        a(f"buffer_load_dwordx4 v9, s[52:55], s58 offen lds")
    return issue, 5
def x24(a, xoff, nks, sc):
    srd(a, 52, P_WS, xoff, 128*nks*1024)
    a(f"""
    s_lshl_b32 s57, s9, 12
    s_lshl_b32 s10, s38, 2
    s_lshl_b32 s11, s9, 1
    s_add_u32 s10, s10, s11
    s_mul_i32 s10, s10, {nks*1024}
    v_lshl_add_u32 v8, v2, 4, s10
    v_add_u32 v9, {nks*1024}, v8
    """)
    def issue(c):
        a(f"s_mov_b32 s58, {c*2048}")
        for t in range(2):
            a(f"s_add_u32 m0, s57, {(c % NST24) * ST24 + t * 2048}")
            a("s_nop 0")
            for i in range(2):
                a(f"buffer_load_dwordx4 v{8+t}, s[52:55], s58 offen offset:{i*1024}{sc} lds")
    return issue, 4

def c24(a, tag, nch, st_off, kid):
    L = f"L_ch_{tag}"
    VXA, VWA, VO, VS, VR = 4, 6, 8, 9, 3
    RES, FX, FW, ACC = 10, 20, 32, 92
    stamp(a, 0); stamp_rt(a, 1)
    if tag == "g2":
        a("s_mov_b32 s40, s94\ns_mov_b32 s41, s95\ns_mov_b32 s42, 2621440\ns_mov_b32 s43, 0x00020000")
        srd(a, 48, P_WS, WS_XA, 2048*1280)
    else:
        srd(a, 40, P_WS, WS_XA, 2048*1280)
        a("s_mov_b32 s48, s96\ns_mov_b32 s49, s97\ns_mov_b32 s50, 2621440\ns_mov_b32 s51, 0x00020000")
    srd(a, 56, P_WS, st_off, 2048*64)
    a(f"""
    s_lshl_b32 s10, s38, 6
    s_lshl_b32 s11, s7, 4
    s_add_u32 s10, s10, s11
    v_and_b32 v4, 15, v2
    v_add_u32 v4, s10, v4
    v_and_b32 v{VS}, 63, v4
    v_lshlrev_b32 v{VS}, 3, v{VS}
    v_lshrrev_b32 v1, 4, v2
    s_lshr_b32 s10, s10, 5
    s_mul_i32 s10, s10, 40960
    s_mul_i32 s11, s39, 5120
    s_add_u32 s10, s10, s11
    v_and_b32 v5, 31, v4
    v_lshl_add_u32 v5, v5, 4, s10
    v_lshrrev_b32 v6, 1, v1
    v_lshl_add_u32 v5, v6, 9, v5
    v_and_b32 v6, 1, v1
    v_lshl_add_u32 v{VR}, v6, 3, v5
    v_lshl_add_u32 v112, v6, 10, v5
    s_movk_i32 s62, 0x1000
    v_mul_u32_u24 v4, 1280, v4
    s_mul_i32 s11, s39, 160
    v_add_u32 v4, s11, v4
    v_lshl_add_u32 v{VO}, v1, 3, v4
    v_lshl_add_u32 v113, v6, 5, v4
    v_lshrrev_b32 v6, 1, v1
    v_lshl_add_u32 v113, v6, 4, v113
    """)
    def frag_res(sc):
        for j in range(4):
            a(f"buffer_load_dwordx2 {vr(RES+2*j,2)}, v{VR}, s[40:43], 0 offen offset:{1024*j}{sc}")
        a(f"buffer_load_dwordx2 {vr(RES+8,2)}, v{VR}, s[40:43], s62 offen{sc}")
    if tag == "g2":
        a("s_cmp_eq_u32 s98, 0")
        a(f"s_cbranch_scc1 {L}_rres")
        frag_res(SC)
        a(f"s_branch {L}_resdone")
        a.label(f"{L}_rres")
        for j in range(5):
            a(f"buffer_load_dwordx2 {vr(RES+2*j,2)}, v{VO}, s[40:43], 0 offen offset:{32*j}")
        a.label(f"{L}_resdone")
    else:
        frag_res(SC)
    a(f"""
    s_lshl_b32 s10, s7, 11
    v_lshl_add_u32 v{VXA}, v2, 4, s10
    v_add_u32 v{VXA+1}, {4*ST24}, v{VXA}
    v_lshlrev_b32 v{VWA}, 4, v2
    v_add_u32 v{VWA}, 8192, v{VWA}
    v_add_u32 v{VWA+1}, {4*ST24}, v{VWA}
    s_lshl_b32 s61, s38, 3
    s_add_u32 s61, s61, s39
    s_lshl_b32 s61, s61, 9
    """)
    NB = 3
    def reads(s):
        c, ks = s // 2, s % 2
        buf = s % NB
        st = c % NST24
        sset, sin = st // 4, st % 4
        a(f"ds_read_b128 {vr(FX+buf*4,4)}, v{VXA+sset} offset:{sin*ST24 + ks*1024}")
        for j in range(5):
            a(f"ds_read_b128 {vr(FW+(buf*5+j)*4,4)}, v{VWA+sset} offset:{sin*ST24 + ks*5120 + 1024*j}")
    a("s_barrier")
    stamp(a, 2)
    reads(0); reads(1)
    NS = 2*nch
    for s_ in range(NS):
        buf = s_ % NB
        a(f"s_waitcnt lgkmcnt({6 if s_ + 1 < NS else 0})")
        if s_ % 2 == 0 and s_ // 2 + 1 < nch:
            a("s_barrier")
            if s_ // 2 + 1 == nch // 2: stamp(a, 4)
        if s_ == NS - 1:
            a("s_barrier")
        for j in range(5):
            cin = "0" if s_ == 0 else vr(ACC+4*j, 4)
            a(f"v_mfma_f32_16x16x32_bf16 {vr(ACC+4*j,4)}, {vr(FW+(buf*5+j)*4,4)}, {vr(FX+buf*4,4)}, {cin}")
            if j == 0 and s_ + 2 < NS:
                reads(s_ + 2)
    stamp(a, 3)
    a("s_waitcnt vmcnt(0)")
    a("s_nop 7")
    for j in range(5):
        t = FX + 4*(j & 1)
        a(f"""
        v_lshlrev_b32 v{t}, 16, v{RES+2*j}
        v_and_b32 v{t+1}, 0xffff0000, v{RES+2*j}
        v_lshlrev_b32 v{t+2}, 16, v{RES+2*j+1}
        v_and_b32 v{t+3}, 0xffff0000, v{RES+2*j+1}
        v_pk_add_f32 {vr(t,2)}, {vr(t,2)}, {vr(ACC+4*j,2)}
        v_pk_add_f32 {vr(t+2,2)}, {vr(t+2,2)}, {vr(ACC+4*j+2,2)}
        v_cvt_pk_bf16_f32 v{RES+2*j}, v{t}, v{t+1}
        v_cvt_pk_bf16_f32 v{RES+2*j+1}, v{t+2}, v{t+3}
        """)
    a("s_nop 0")
    for j0 in (0, 2):
        for d in range(2):
            a(f"v_permlane16_swap_b32 v{RES+2*j0+d}, v{RES+2*j0+2+d}")
    if tag == "g4":
        a("s_cmp_eq_u32 s98, 0")
        a(f"s_cbranch_scc1 {L}_frag")
        for j0 in (0, 2):
            a(f"buffer_store_dwordx4 {vr(RES+2*j0,4)}, v113, s[48:51], 0 offen offset:{32*j0}")
        a(f"buffer_store_dwordx2 {vr(RES+8,2)}, v{VO}, s[48:51], 0 offen offset:128")
        stamp_flush(a, kid, 8)
        a("s_endpgm")
        a.label(f"{L}_frag")
    else:
        a("s_nop 0")
    for j0 in (0, 2):
        a(f"buffer_store_dwordx4 {vr(RES+2*j0,4)}, v112, s[48:51], 0 offen offset:{1024*j0}{SC}")
    a(f"buffer_store_dwordx2 {vr(RES+8,2)}, v{VR}, s[48:51], s62 offen{SC}")
    a("v_mov_b32 v4, 0\nv_mov_b32 v5, 0\ns_mov_b32 s60, 0x3f803f80")
    for r in range(10):
        a(f"v_dot2_f32_bf16 v4, v{RES+r}, s60, v4")
        a(f"v_dot2_f32_bf16 v5, v{RES+r}, v{RES+r}, v5")
    a("s_nop 2")
    for sw in ("v_permlane16_swap_b32", "v_permlane32_swap_b32"):
        a(f"""
        v_mov_b32 v6, v4
        v_mov_b32 v7, v5
        s_nop 1
        {sw} v4, v6
        {sw} v5, v7
        s_nop 1
        v_add_f32 v4, v4, v6
        v_add_f32 v5, v5, v7
        """)
    a(f"""
    s_mov_b64 exec, 0xffff
    buffer_store_dwordx2 v[4:5], v{VS}, s[56:59], s61 offen{SC}
    s_mov_b64 exec, -1
    """)

RING = 8; NCH13 = 20
def x13(a, xoff, stage):
    srd(a, 52, P_WS, xoff, 2048*1280)
    a(f"""
    s_lshl_b32 s10, s36, 2
    s_lshl_b32 s11, s9, 1
    s_add_u32 s10, s10, s11
    s_mul_i32 s10, s10, 40960
    v_lshl_add_u32 v8, v2, 4, s10
    v_add_u32 v9, 40960, v8
    s_lshl_b32 s57, s9, 12
    """)
    def issue(c):
        a(f"s_mov_b32 s58, {c*2048}")
        for t in range(2):
            a(f"s_add_u32 m0, s57, {(c % RING) * stage + t * 2048}")
            a("s_nop 0")
            for i in range(2):
                a(f"buffer_load_dwordx4 v{8+t}, s[52:55], s58 offen offset:{i*1024}{SC} lds")
    return issue, 4
def w13(a, stage, nnt, wt_off, wt_bytes):
    n = 2 * nnt
    srd(a, 52, P_WS, wt_off, wt_bytes)
    a(f"""
    s_mul_i32 s10, s37, {41*n*1024}
    s_mul_i32 s11, s9, {n*1024}
    s_add_u32 s10, s10, s11
    v_lshl_add_u32 v8, v2, 4, s10
    v_add_u32 v9, 4096, v8
    s_add_u32 s57, s11, 8192
    """)
    def issue(c):
        a(f"s_mov_b32 s58, {c*2*n*1024}")
        for g in range((n + 3) // 4):
            a(f"s_add_u32 m0, s57, {(c % RING) * stage + g * 4096}")
            a("s_nop 0")
            for i in range(min(4, n - 4*g)):
                a(f"buffer_load_dwordx4 v{8+g}, s[52:55], s58 offen offset:{i*1024} lds")
    return issue, n

def c13_main(a, nnt, VX, VW, RS, FX, FW, ACC, XW, ST, XM, T, stage, per_set, wt_off, wt_bytes, st_off, mid_setup):
    nset = (RING + per_set - 1) // per_set
    stamp(a, 0); stamp_rt(a, 1)
    a(f"""
    s_mov_b32 s5, s36
    s_mov_b32 s6, s37
    s_lshr_b32 s8, s7, 1
    s_and_b32 s9, s7, 1
    v_and_b32 v3, 31, v2
    v_lshrrev_b32 v4, 5, v2
    """)
    srd(a, 52, P_WS, wt_off, wt_bytes)
    srd(a, 56, P_WS, st_off, 2048*64)
    a(f"""
    s_mul_i32 s10, s6, {41*2*nnt*1024}
    s_mul_i32 s11, s9, {nnt*1024}
    s_add_u32 s10, s10, s11
    s_add_u32 s10, s10, {40*2*nnt*1024}
    v_lshlrev_b32 v5, 4, v2
    s_lshl_b32 s13, s5, 7
    s_lshl_b32 s14, s8, 6
    s_add_u32 s12, s13, s14
    s_lshl_b32 s13, s12, 6
    v_lshl_add_u32 v6, v3, 3, s13
    v_lshl_add_u32 v6, v4, 11, v6
    """)
    for nt in range(nnt):
        a(f"buffer_load_dwordx4 {vr(XW+4*nt,4)}, v5, s[52:55], s10 offen offset:{nt*1024}")
    a(f"""
    s_add_u32 s11, s11, 8192
    v_add_u32 v{VW}, s11, v5
    s_lshl_b32 s14, s8, 12
    v_add_u32 v{VX}, s14, v5
    """)
    for s in range(1, nset):
        a(f"v_add_u32 v{VW+s}, {s*per_set*stage}, v{VW}")
        a(f"v_add_u32 v{VX+s}, {s*per_set*stage}, v{VX}")
    mid_setup()
    NB = 3
    def reads(s):
        c, ks = s // 2, s % 2
        buf = s % NB
        st = c % RING
        sset, sin = st // per_set, st % per_set
        for mt in range(2):
            a(f"ds_read_b128 {vr(FX + (buf*2+mt)*4, 4)}, v{VX + sset} offset:{sin*stage + mt*2048 + ks*1024}")
        for nt in range(nnt):
            a(f"ds_read_b128 {vr(FW + (buf*nnt+nt)*4, 4)}, v{VW + sset} offset:{sin*stage + (ks*2*nnt + nt)*1024}")
    nreads = 2 + nnt
    a("s_barrier")
    stamp(a, 2)
    reads(0); reads(1)
    for mt in range(2):
        for i in range(4):
            a(f"buffer_load_dwordx2 {vr(ST+8*mt+2*i,2)}, v6, s[56:59], 0 offen offset:{mt*256 + i*512}{SC}")
    NS = 2*NCH13
    for s in range(NS):
        buf = s % NB
        a(f"s_waitcnt lgkmcnt({nreads if s + 1 < NS else 0})")
        if s % 2 == 0 and s // 2 + 1 < NCH13:
            a("s_barrier")
            if s // 2 + 1 == NCH13 // 2: stamp(a, 4)
        if s == NS - 1:
            a("s_barrier")
        first = True
        for nt in range(nnt):
            for mt in range(2):
                acc = ACC + (nt*2+mt)*16
                cin = "0" if s == 0 else vr(acc, 16)
                a(f"v_mfma_f32_32x32x16_bf16 {vr(acc,16)}, {vr(FW + (buf*nnt+nt)*4, 4)}, {vr(FX + (buf*2+mt)*4, 4)}, {cin}")
                if first and s + 2 < NS:
                    reads(s + 2)
                first = False
        if s == 20:
            a("s_waitcnt vmcnt(0)")
            g13.stats_finish(a, ST, RS, XM, T)
            a("s_nop 1")
            for nt in range(nnt):
                for mt in range(2):
                    acc = ACC + (nt*2+mt)*16
                    a(f"v_mfma_f32_32x32x16_bf16 {vr(acc,16)}, {vr(XW+4*nt,4)}, {vr(XM+4*mt,4)}, {vr(acc,16)}")
    stamp(a, 3)

def c3(a):
    VX, VW, RS, FX, FW, ACC = 8, 12, 18, 24, 48, 84
    XW, ST, XM, T = 180, 192, 208, 20
    def mid():
        srd(a, 48, P_WS, WS_H, 2048*3072)
        a(f"""
        v_add_u32 v21, s12, v3
        v_lshrrev_b32 v22, 4, v21
        v_mul_u32_u24 v22, 49152, v22
        v_and_b32 v21, 15, v21
        v_lshl_add_u32 v22, v21, 4, v22
        v_lshl_add_u32 v22, v4, 8, v22
        v_add_u32 v23, {2*49152}, v22
        s_mul_i32 s10, s6, 6
        s_mul_i32 s11, s9, 3
        s_add_u32 s10, s10, s11
        s_lshl_b32 s61, s10, 9
        """)
    c13_main(a, 3, VX, VW, RS, FX, FW, ACC, XW, ST, XM, T, 20480, 3, WS_WT3, WT3_BYTES, WS_ST3, mid)
    for mt in range(2):
        a(f"v_mul_f32 v{8+2*mt}, v{RS+mt}, v{RS+mt}")
        a(f"v_mul_f32 v{9+2*mt}, v{RS+mt}, v{RS+mt}")
    a("s_nop 7")
    PK = 24
    for nt in range(3):
        for mt in range(2):
            acc = ACC + (nt*2+mt)*16
            dst = PK + (mt*3+nt)*4
            for r in range(8):
                a(f"v_max_f32 v{acc+r}, 0, v{acc+r}")
            for r in range(0, 8, 2):
                a(f"v_pk_mul_f32 {vr(acc+8+r,2)}, {vr(acc+8+r,2)}, {vr(8+2*mt,2)}")
            for r in range(0, 8, 2):
                a(f"v_pk_mul_f32 {vr(acc+r,2)}, {vr(acc+r,2)}, {vr(acc+8+r,2)}")
            for r in range(4):
                a(f"v_cvt_pk_bf16_f32 v{dst+r}, v{acc+2*r}, v{acc+2*r+1}")
            a(f"buffer_store_dwordx4 {vr(dst,4)}, v{22+mt}, s[48:51], s61 offen offset:{nt*512}{SC}")

def c1(a):
    VX, VW, RS, FX, FW, ACC = 8, 12, 18, 32, 56, 80
    XW, ST, XM, T = 144, 152, 168, 20
    c13_main(a, 2, VX, VW, RS, FX, FW, ACC, XW, ST, XM, T, 16384, 4, WS_WT1, WT1_BYTES, WS_ST1, lambda: g13.g1_epilogue_setup(a))
    if not MEGA:
        g13.g1_epilogue(a)
        stamp_flush(a, 0, 8)
        a("s_endpgm")
        return
    g13.g1_epilogue(a, SC)
    a(f"""
    s_lshl_b32 s12, s37, 1
    s_add_u32 s12, s12, s9
    s_lshl_b32 s12, s12, 7
    s_lshl_b32 s13, s36, 1
    s_add_u32 s13, s13, s8
    s_lshl_b32 s13, s13, 2
    s_add_u32 s12, s12, s13
    s_add_u32 s12, s12, {FL_G1}
    """)
    raise_flag(a)
    stamp_flush(a, 0, 8)

def gen_chain(a):
    entries = (("cha_kernel", 0),) if MEGA else (("cha_kernel", 0), ("chb_kernel", 1))
    def layer_regs(layer):
        a(f"s_mov_b32 s98, {layer}")
        if layer == 0:
            a(f"s_mov_b32 s94, s{P_AX}\ns_mov_b32 s95, s{P_AX+1}\ns_add_u32 s96, s{P_WS}, {WS_XB}\ns_addc_u32 s97, s{P_WS+1}, 0")
        else:
            a(f"s_add_u32 s94, s{P_WS}, {WS_XB}\ns_addc_u32 s95, s{P_WS+1}, 0\ns_mov_b32 s96, s{P_OUT}\ns_mov_b32 s97, s{P_OUT+1}")
    for name, layer in entries:
        kernel_header(a, name)
        a("s_cmp_ge_u32 s2, 256")
        a("s_cbranch_scc1 L_ch_exit")
        load_ptrs(a)
        maps(a)
        a("s_waitcnt lgkmcnt(0)")
        layer_regs(layer)
        a("s_branch L_ch_body")
    a.label("L_ch_exit")
    a("s_endpgm")
    a.label("L_ch_body")
    a("s_cmp_lt_u32 s7, 4")
    a("s_cbranch_scc1 L_ch_compute")
    a("s_and_b32 s9, s7, 1")
    a("s_cmp_ge_u32 s7, 6")
    a("s_cbranch_scc1 L_ch_xload")
    fin = "s_branch L_ch_att" if MEGA else "s_endpgm"
    i, n = w24(a, WS_WT2, WT2_BYTES, 20); loader(a, i, n, 10, D24, True, None, 2)
    i, n = w13(a, 20480, 3, WS_WT3, WT3_BYTES); loader(a, i, n, NCH13, D13, False, None, 3)
    i, n = w24(a, WS_WT4, WT4_BYTES, 48); loader(a, i, n, 24, D24, False, None, 4)
    a("s_cmp_eq_u32 s98, 1")
    a("s_cbranch_scc1 L_ch_exit")
    i, n = w13(a, 16384, 2, WS_WT1, WT1_BYTES); loader(a, i, n, NCH13, D13, False, None, 0)
    a(fin)
    a.label("L_ch_xload")
    i, n = x24(a, WS_O, 20, SC); loader(a, i, n, 10, D24, True, 0, 2)
    i, n = x13(a, WS_XA, 20480); loader(a, i, n, NCH13, D13, False, 0, 3)
    i, n = x24(a, WS_H, 48, SC); loader(a, i, n, 24, D24, False, 1, 4)
    a("s_cmp_eq_u32 s98, 1")
    a("s_cbranch_scc1 L_ch_exit")
    i, n = x13(a, WS_XB, 16384); loader(a, i, n, NCH13, D13, False, 2, 0)
    a(fin)
    a.label("L_ch_compute")
    c24(a, "g2", 10, WS_ST3, 2); publish(a, 0); stamp_flush(a, 2, 8)
    c3(a); publish(a, 1); stamp_flush(a, 3, 8)
    c24(a, "g4", 24, WS_ST1, 4); publish(a, 2); stamp_flush(a, 4, 8)
    c1(a)
    if MEGA:
        a.label("L_ch_att")
        a.gemm = False
        def wait():
            l = a.newlabel("nopoll")
            a("s_barrier")
            a("s_cmp_lg_u32 s7, 7")
            a(f"s_cbranch_scc1 {l}")
            srd(a, 44, P_WS, WS_FLAGS, FLAGS_BYTES)
            a(f"""
            s_mul_i32 s12, s5, 21846
            s_lshr_b32 s12, s12, 16
            s_add_u32 s10, s5, 32
            s_mul_i32 s10, s10, 21846
            s_lshr_b32 s10, s10, 16
            s_add_u32 s11, s5, 64
            s_mul_i32 s11, s11, 21846
            s_lshr_b32 s11, s11, 16
            s_lshl_b32 s12, s12, 7
            s_lshl_b32 s10, s10, 7
            s_lshl_b32 s11, s11, 7
            v_lshlrev_b32 v150, 2, v3
            v_add_u32 v150, {FL_G1}, v150
            v_add_u32 v151, s12, v150
            v_add_u32 v152, s10, v150
            s_mov_b64 exec, s[66:67]
            v_add_u32 v152, s11, v150
            s_mov_b64 exec, -1
            """)
            poll_v(a, [151, 152])
            a.label(l)
            a("s_barrier")
        def done():
            a(f"""
            s_lshl_b32 s12, s6, 2
            s_add_u32 s12, s12, s8
            s_lshl_b32 s12, s12, 8
            s_lshl_b32 s13, s5, 3
            s_add_u32 s12, s12, s13
            s_lshl_b32 s13, s9, 2
            s_add_u32 s12, s12, s13
            s_add_u32 s12, s12, {FL_ATT}
            """)
            raise_flag(a)
            a("s_barrier")
        att8.body(a, "L_m8", SC, SC, wait, done)
        layer_regs(1)
        a("s_branch L_ch_body")
    return [(e[0], 216) for e in entries]
```

```python
from asmlib import *
from layout import *
import struct

def f32(x):
    return "0x%08x" % struct.unpack("<I", struct.pack("<f", x))[0]

QSCALE = 1.4426950408889634 / (20 ** 0.5)
NCH = 20
RING = 8
import os
DIST = int(os.environ.get('D13', 4))
RAMP = int(os.environ.get('R13', DIST))

def tile_map16(a):
    a("""
    s_and_b32 s3, s2, 7
    s_lshr_b32 s4, s2, 3
    s_and_b32 s5, s3, 3
    s_lshl_b32 s5, s5, 2
    s_and_b32 s8, s4, 3
    s_add_u32 s5, s5, s8
    s_lshr_b32 s6, s3, 2
    s_lshl_b32 s6, s6, 3
    s_lshr_b32 s8, s4, 2
    s_add_u32 s6, s6, s8
    v_lshrrev_b32 v1, 6, v0
    v_and_b32 v2, 63, v0
    s_nop 0
    v_readfirstlane_b32 s7, v1
    """)

def loader_loop(a, issue, ninstr, nch, dist, kid, ramp=None):
    ramp = dist if ramp is None else ramp
    nxt = 0
    for c in range(min(ramp, nch)):
        issue(c); nxt += 1
    for c in range(nch):
        a(f"s_waitcnt vmcnt({ninstr * (nxt - 1 - c)})")
        if c == 0: stamp(a, 2)
        if c == nch//2: stamp(a, 4)
        a("s_barrier")
        while nxt < nch and nxt <= c + dist and nxt < c + 1 + max(ramp, 0) + (c + 1):
            issue(nxt); nxt += 1
    stamp(a, 3)
    stamp_flush(a, kid, 8)
    a("s_endpgm")

def x_loader(a, stage_bytes):
    a(f"""
    s_lshl_b32 s10, s5, 2
    s_lshl_b32 s11, s9, 1
    s_add_u32 s10, s10, s11
    s_mul_i32 s10, s10, 40960
    v_lshl_add_u32 v8, v2, 4, s10
    v_add_u32 v9, 40960, v8
    s_lshl_b32 s57, s9, 12
    """)
    def issue(c):
        a(f"s_mov_b32 s58, {c*2048}")
        for t in range(2):
            a(f"s_add_u32 m0, s57, {(c % RING) * stage_bytes + t * 2048}")
            a("s_nop 0")
            for i in range(2):
                a(f"buffer_load_dwordx4 v{8+t}, s[40:43], s58 offen offset:{i*1024} lds")
    return issue

def w_loader(a, stage_bytes, nnt, wt_off, wt_bytes):
    n = 2 * nnt
    srd(a, 52, P_WS, wt_off, wt_bytes)
    a(f"""
    s_mul_i32 s10, s6, {41*n*1024}
    s_mul_i32 s11, s9, {n*1024}
    s_add_u32 s10, s10, s11
    v_lshl_add_u32 v8, v2, 4, s10
    v_add_u32 v9, 4096, v8
    s_add_u32 s57, s11, 8192
    """)
    def issue(c):
        a(f"s_mov_b32 s58, {c*2*n*1024}")
        for g in range((n + 3) // 4):
            a(f"s_add_u32 m0, s57, {(c % RING) * stage_bytes + g * 4096}")
            a("s_nop 0")
            for i in range(min(4, n - 4*g)):
                a(f"buffer_load_dwordx4 v{8+g}, s[52:55], s58 offen offset:{i*1024} lds")
    return issue, n

def compute_setup(a, nnt, VX, VW, XW, ST, stage_bytes, per_set, wt_off, wt_bytes, st_off):
    nset = (RING + per_set - 1) // per_set
    a(f"""
    s_lshr_b32 s8, s7, 1
    s_and_b32 s9, s7, 1
    v_and_b32 v3, 31, v2
    v_lshrrev_b32 v4, 5, v2
    """)
    srd(a, 52, P_WS, wt_off, wt_bytes)
    srd(a, 56, P_WS, st_off, 2048*64)
    a(f"""
    s_mul_i32 s10, s6, {41*2*nnt*1024}
    s_mul_i32 s11, s9, {nnt*1024}
    s_add_u32 s10, s10, s11
    s_add_u32 s10, s10, {40*2*nnt*1024}
    v_lshlrev_b32 v5, 4, v2
    s_lshl_b32 s13, s5, 7
    s_lshl_b32 s14, s8, 6
    s_add_u32 s12, s13, s14
    v_add_u32 v6, s12, v3
    v_lshlrev_b32 v6, 6, v6
    v_lshl_add_u32 v6, v4, 5, v6
    """)
    for mt in range(2):
        for i in range(2):
            a(f"buffer_load_dwordx4 {vr(ST+8*mt+4*i,4)}, v6, s[56:59], 0 offen offset:{mt*2048 + i*16}")
    for nt in range(nnt):
        a(f"buffer_load_dwordx4 {vr(XW+4*nt,4)}, v5, s[52:55], s10 offen offset:{nt*1024}")
    a(f"""
    s_add_u32 s11, s11, 8192
    v_add_u32 v{VW}, s11, v5
    s_lshl_b32 s14, s8, 12
    v_add_u32 v{VX}, s14, v5
    """)
    for s in range(1, nset):
        a(f"v_add_u32 v{VW+s}, {s*per_set*stage_bytes}, v{VW}")
        a(f"v_add_u32 v{VX+s}, {s*per_set*stage_bytes}, v{VX}")

def half_sum(a, v, t):
    a(f"v_mov_b32 v{t}, v{v}")
    a("s_nop 1")
    a(f"v_permlane32_swap_b32 v{v}, v{t}")
    a("s_nop 1")
    a(f"v_add_f32 v{v}, v{v}, v{t}")

def stats_finish(a, ST, RS, XM, T):
    a(f"s_mov_b32 s10, {f32(1.0/640)}")
    for mt in range(2):
        s = ST + 8*mt
        a(f"""
        v_pk_add_f32 {vr(s,2)}, {vr(s,2)}, {vr(s+2,2)}
        v_pk_add_f32 {vr(s+4,2)}, {vr(s+4,2)}, {vr(s+6,2)}
        v_pk_add_f32 {vr(s,2)}, {vr(s,2)}, {vr(s+4,2)}
        """)
        half_sum(a, s, T); half_sum(a, s+1, T)
        x = XM + 4*mt
        a(f"""
        v_mul_f32 v{s}, s10, v{s}
        v_mul_f32 v{s+1}, s10, v{s+1}
        v_fma_f32 v{s+1}, -v{s}, v{s}, v{s+1}
        v_max_f32 v{s+1}, 0, v{s+1}
        v_add_f32 v{s+1}, {f32(1e-5)}, v{s+1}
        v_rsq_f32 v{RS+mt}, v{s+1}
        v_xor_b32 v{s}, 0x80000000, v{s}
        v_and_b32 v{s+2}, 0xffff0000, v{s}
        v_sub_f32 v{s}, v{s}, v{s+2}
        v_lshrrev_b32 v{x+1}, 16, v{s+2}
        v_cvt_pk_bf16_f32 v{s+3}, 0, v{s}
        v_or_b32 v{x}, v{x+1}, v{s+3}
        v_mov_b32 v{x+3}, v{x+1}
        v_mov_b32 v{x+2}, v{x}
        """)

PFS3 = int(os.environ.get('PFS3', 24))
def main_loop(a, nnt, VX, VW, FX, FW, ACC, stage_bytes, per_set, pre, hooks={}):
    NB = 3
    def reads(s):
        c, ks = s // 2, s % 2
        buf = s % NB
        st = c % RING
        sset, sin = st // per_set, st % per_set
        for mt in range(2):
            a(f"ds_read_b128 {vr(FX + (buf*2+mt)*4, 4)}, v{VX + sset} offset:{sin*stage_bytes + mt*2048 + ks*1024}")
        for nt in range(nnt):
            a(f"ds_read_b128 {vr(FW + (buf*nnt+nt)*4, 4)}, v{VW + sset} offset:{sin*stage_bytes + (ks*2*nnt + nt)*1024}")
    nreads = 2 + nnt
    pre()
    a("s_barrier")
    stamp(a, 2)
    reads(0); reads(1)
    NS = 2*NCH
    for s in range(NS):
        buf = s % NB
        a(f"s_waitcnt lgkmcnt({nreads if s + 1 < NS else 0})")
        if s % 2 == 0 and s // 2 + 1 < NCH:
            a("s_barrier")
            if s // 2 + 1 == NCH // 2: stamp(a, 4)
        first = True
        for nt in range(nnt):
            for mt in range(2):
                acc = ACC + (nt*2+mt)*16
                a(f"v_mfma_f32_32x32x16_bf16 {vr(acc,16)}, {vr(FW + (buf*nnt+nt)*4, 4)}, {vr(FX + (buf*2+mt)*4, 4)}, {vr(acc,16)}")
                if first and s + 2 < NS:
                    reads(s + 2)
                first = False
        if s in hooks: hooks[s]()
    stamp(a, 3)

def extra_kstep(a, nnt, XW, XM, ACC, ST, RS, T):
    a(f"s_waitcnt vmcnt({nnt})")
    stats_finish(a, ST, RS, XM, T)
    a("s_waitcnt vmcnt(0)")
    for nt in range(nnt):
        for mt in range(2):
            acc = ACC + (nt*2+mt)*16
            a(f"v_mfma_f32_32x32x16_bf16 {vr(acc,16)}, {vr(XW+4*nt,4)}, {vr(XM+4*mt,4)}, 0")

def g1_epilogue_setup(a, extra=0):
    srd(a, 48, P_WS, WS_QKV + extra, 96*98304)
    a(f"""
    s_lshr_b32 s68, s12, 5
    s_mul_i32 s68, s68, 1536
    s_mul_i32 s10, s6, 6
    s_mul_i32 s11, s9, 3
    s_add_u32 s10, s10, s11
    s_mov_b32 s15, {f32(QSCALE)}
    """)
    for i in range(3):
        a(f"""
        s_add_u32 s11, s10, {i}
        s_mul_i32 s{61+i}, s11, 98304
        s_add_u32 s{61+i}, s{61+i}, s68
        s_cmp_lt_u32 s11, 32
        s_cselect_b32 s{12+i}, s15, 1.0
        s_cmp_lt_u32 s11, 64
        s_movk_i32 s{88+2*i}, 0x3f80
        s_cselect_b32 s{88+2*i}, 0x3f803f80, s{88+2*i}
        s_cselect_b32 s{89+2*i}, 0x3f80, 0
        """)
    LO, HI = "s[64:65]", "s[66:67]"
    a(f"""
    s_mov_b32 s64, -1
    s_mov_b32 s65, 0
    s_mov_b32 s66, 0
    s_mov_b32 s67, -1
    v_lshlrev_b32 v26, 4, v3
    v_xor_b32 v27, 128, v26
    v_add_u32 v27, 1024, v27
    v_mov_b32 v21, s13
    v_mov_b32 v22, s14
    v_mov_b32 v23, v26
    v_add_u32 v24, 98304, v26
    v_mov_b32 v25, v27
    s_mov_b64 exec, {HI}
    v_mov_b32 v21, s12
    v_mov_b32 v22, s13
    v_xor_b32 v23, 64, v26
    v_add_u32 v23, 512, v23
    v_mov_b32 v24, v27
    v_mov_b32 v25, v23
    s_mov_b64 exec, -1
    """)

def g1_epilogue(a, scf=''):
    RS, ACC = 18, 80
    LO, HI = "s[64:65]", "s[66:67]"
    PK = 32
    for mt in range(2):
        for d, sc in ((8, "s12"), (10, "s13"), (12, "s14"), (14, "v21"), (28, "v22")):
            a(f"v_mul_f32 v{d}, {sc}, v{RS+mt}")
            a(f"v_mul_f32 v{d+1}, {sc}, v{RS+mt}")
        if mt == 0:
            a("s_nop 4")
        pk = PK + 16*mt
        def pos(nt, aa, rs, dst):
            acc = ACC + (nt*2+mt)*16 + aa*4
            a(f"v_pk_mul_f32 {vr(acc,2)}, {vr(acc,2)}, {vr(rs,2)}")
            a(f"v_pk_mul_f32 {vr(acc+2,2)}, {vr(acc+2,2)}, {vr(rs,2)}")
            a(f"v_cvt_pk_bf16_f32 v{dst}, v{acc}, v{acc+1}")
            a(f"v_cvt_pk_bf16_f32 v{dst+1}, v{acc+2}, v{acc+3}")
        off = f"offset:{mt*1536}"
        pos(0, 0, 8, pk); pos(0, 1, 8, pk+2)
        a(f"buffer_store_dwordx4 {vr(pk,4)}, v23, s[48:51], s61 offen {off}{scf}")
        pos(1, 0, 12, pk+4); pos(1, 1, 12, pk+6)
        a(f"buffer_store_dwordx4 {vr(pk+4,4)}, v23, s[48:51], s63 offen {off}{scf}")
        pos(0, 2, 14, pk+8); pos(0, 3, 10, pk+10)
        a(f"""
        s_mov_b64 exec, {HI}
        v_mov_b32 v{pk+10}, s88
        v_mov_b32 v{pk+11}, s89
        s_mov_b64 exec, -1
        buffer_store_dwordx4 {vr(pk+8,4)}, v24, s[48:51], s61 offen {off}{scf}
        """)
        pos(1, 2, 10, pk+12); pos(1, 3, 28, pk+14)
        t = 64 + 4*mt
        a(f"""
        s_mov_b64 exec, {LO}
        v_mov_b32 v{t}, v{pk+14}
        v_mov_b32 v{t+1}, v{pk+15}
        v_mov_b32 v{t+2}, s92
        v_mov_b32 v{t+3}, s93
        v_mov_b32 v{pk+14}, s90
        v_mov_b32 v{pk+15}, s91
        buffer_store_dwordx4 {vr(t,4)}, v25, s[48:51], s63 offen {off}{scf}
        s_mov_b64 exec, -1
        buffer_store_dwordx4 {vr(pk+12,4)}, v25, s[48:51], s62 offen {off}{scf}
        """)

def gen_g1(a):
    for name, off in (("g1b_kernel", WS_XB),):
        kernel_header(a, name)
        a("s_cmp_ge_u32 s2, 256")
        a("s_cbranch_scc1 L_g1_exit")
        load_ptrs(a)
        tile_map16(a)
        a("s_waitcnt lgkmcnt(0)")
        srd(a, 40, P_WS, off, 2048*1280)
        a("s_branch L_g1_body")
    a.label("L_g1_exit")
    a("s_endpgm")
    a.label("L_g1_body")
    stamp(a, 0); stamp_rt(a, 1)
    STAGE = 16384
    a("s_cmp_lt_u32 s7, 4")
    a("s_cbranch_scc1 L_g1_compute")
    a("s_sub_u32 s9, s7, 4")
    a("s_cmp_ge_u32 s9, 2")
    a("s_cbranch_scc1 L_g1_wload")
    loader_loop(a, x_loader(a, STAGE), 4, NCH, DIST, 0, RAMP)
    a.label("L_g1_wload")
    a("s_sub_u32 s9, s9, 2")
    iss, n = w_loader(a, STAGE, 2, WS_WT1, WT1_BYTES)
    loader_loop(a, iss, n, NCH, DIST, 0, RAMP)
    a.label("L_g1_compute")
    VX, VW, RS, FX, FW, ACC = 8, 12, 18, 32, 56, 80
    XW, ST, XM, T = 144, 152, 168, 20
    compute_setup(a, 2, VX, VW, XW, ST, STAGE, 4, WS_WT1, WT1_BYTES, WS_ST1)
    g1_epilogue_setup(a)
    main_loop(a, 2, VX, VW, FX, FW, ACC, STAGE, 4, lambda: extra_kstep(a, 2, XW, XM, ACC, ST, RS, T))
    a.label("L_g1_epilogue")
    LO, HI = "s[64:65]", "s[66:67]"
    PK = 32
    for mt in range(2):
        for d, sc in ((8, "s12"), (10, "s13"), (12, "s14"), (14, "v21"), (28, "v22")):
            a(f"v_mul_f32 v{d}, {sc}, v{RS+mt}")
            a(f"v_mul_f32 v{d+1}, {sc}, v{RS+mt}")
        if mt == 0:
            a("s_nop 4")
        pk = PK + 16*mt
        def pos(nt, aa, rs, dst):
            acc = ACC + (nt*2+mt)*16 + aa*4
            a(f"v_pk_mul_f32 {vr(acc,2)}, {vr(acc,2)}, {vr(rs,2)}")
            a(f"v_pk_mul_f32 {vr(acc+2,2)}, {vr(acc+2,2)}, {vr(rs,2)}")
            a(f"v_cvt_pk_bf16_f32 v{dst}, v{acc}, v{acc+1}")
            a(f"v_cvt_pk_bf16_f32 v{dst+1}, v{acc+2}, v{acc+3}")
        off = f"offset:{mt*1536}"
        pos(0, 0, 8, pk); pos(0, 1, 8, pk+2)
        a(f"buffer_store_dwordx4 {vr(pk,4)}, v23, s[48:51], s61 offen {off}")
        pos(1, 0, 12, pk+4); pos(1, 1, 12, pk+6)
        a(f"buffer_store_dwordx4 {vr(pk+4,4)}, v23, s[48:51], s63 offen {off}")
        pos(0, 2, 14, pk+8); pos(0, 3, 10, pk+10)
        a(f"""
        s_mov_b64 exec, {HI}
        v_mov_b32 v{pk+10}, s88
        v_mov_b32 v{pk+11}, s89
        s_mov_b64 exec, -1
        buffer_store_dwordx4 {vr(pk+8,4)}, v24, s[48:51], s61 offen {off}
        """)
        pos(1, 2, 10, pk+12); pos(1, 3, 28, pk+14)
        t = 64 + 4*mt
        a(f"""
        s_mov_b64 exec, {LO}
        v_mov_b32 v{t}, v{pk+14}
        v_mov_b32 v{t+1}, v{pk+15}
        v_mov_b32 v{t+2}, s92
        v_mov_b32 v{t+3}, s93
        v_mov_b32 v{pk+14}, s90
        v_mov_b32 v{pk+15}, s91
        buffer_store_dwordx4 {vr(t,4)}, v25, s[48:51], s63 offen {off}
        s_mov_b64 exec, -1
        buffer_store_dwordx4 {vr(pk+12,4)}, v25, s[48:51], s62 offen {off}
        """)
    stamp_flush(a, 0, 8)
    a("s_endpgm")
    return [("g1b_kernel", 176)]

def gen_g3(a):
    kernel_header(a, "g3_kernel")
    a("s_cmp_ge_u32 s2, 256")
    a("s_cbranch_scc1 L_g3_exit")
    load_ptrs(a)
    tile_map16(a)
    a("s_waitcnt lgkmcnt(0)")
    srd(a, 40, P_WS, WS_XA, 2048*1280)
    stamp(a, 0); stamp_rt(a, 1)
    STAGE = 20480
    a("s_cmp_lt_u32 s7, 4")
    a("s_cbranch_scc1 L_g3_compute")
    a("s_sub_u32 s9, s7, 4")
    a("s_cmp_ge_u32 s9, 2")
    a("s_cbranch_scc1 L_g3_wload")
    loader_loop(a, x_loader(a, STAGE), 4, NCH, DIST, 3, RAMP)
    a.label("L_g3_exit")
    a("s_endpgm")
    a.label("L_g3_wload")
    a("s_sub_u32 s9, s9, 2")
    iss, n = w_loader(a, STAGE, 3, WS_WT3, WT3_BYTES)
    loader_loop(a, iss, n, NCH, DIST, 3, RAMP)
    a.label("L_g3_compute")
    VX, VW, RS, FX, FW, ACC = 8, 12, 18, 24, 48, 84
    XW, ST, XM, T = 180, 192, 208, 20
    compute_setup(a, 3, VX, VW, XW, ST, STAGE, 3, WS_WT3, WT3_BYTES, WS_ST3)
    srd(a, 48, P_WS, WS_H, 2048*3072)
    a(f"""
    v_add_u32 v21, s12, v3
    v_lshrrev_b32 v22, 4, v21
    v_mul_u32_u24 v22, 49152, v22
    v_and_b32 v21, 15, v21
    v_lshl_add_u32 v22, v21, 4, v22
    v_lshl_add_u32 v22, v4, 8, v22
    v_add_u32 v23, {2*49152}, v22
    s_mul_i32 s10, s6, 6
    s_mul_i32 s11, s9, 3
    s_add_u32 s10, s10, s11
    s_lshl_b32 s61, s10, 9
    """)
    def pre3():
        extra_kstep(a, 3, XW, XM, ACC, ST, RS, T)
        a("""
        s_lshl_b32 s12, s4, 2
        s_add_u32 s12, s12, s7
        s_lshr_b32 s13, s3, 2
        """)
        if PF & 2:
            n = l2_prefetch_setup(a, 44, WS_WT4, WT4_BYTES//2, 128, 12, 5, 14, 13)
            assert n == 1
            hooks[PFS3] = lambda: l2_touch(a, 44, 5, 6, 14)
    hooks = {}
    main_loop(a, 3, VX, VW, FX, FW, ACC, STAGE, 3, pre3, hooks)
    for mt in range(2):
        a(f"v_mul_f32 v{8+2*mt}, v{RS+mt}, v{RS+mt}")
        a(f"v_mul_f32 v{9+2*mt}, v{RS+mt}, v{RS+mt}")
    a("s_nop 7")
    PK = 24
    for nt in range(3):
        for mt in range(2):
            acc = ACC + (nt*2+mt)*16
            dst = PK + (mt*3+nt)*4
            for r in range(8):
                a(f"v_max_f32 v{acc+r}, 0, v{acc+r}")
            for r in range(0, 8, 2):
                a(f"v_pk_mul_f32 {vr(acc+8+r,2)}, {vr(acc+8+r,2)}, {vr(8+2*mt,2)}")
            for r in range(0, 8, 2):
                a(f"v_pk_mul_f32 {vr(acc+r,2)}, {vr(acc+r,2)}, {vr(acc+8+r,2)}")
            for r in range(4):
                a(f"v_cvt_pk_bf16_f32 v{dst+r}, v{acc+2*r}, v{acc+2*r+1}")
            a(f"buffer_store_dwordx4 {vr(dst,4)}, v{22+mt}, s[48:51], s61 offen offset:{nt*512}")
    stamp_flush(a, 3, 8)
    a("s_endpgm")
    return [("g3_kernel", 216)]
```

```python
from asmlib import *
from layout import *
import g13, os
from g13 import f32, tile_map16, half_sum

STAGE = 32768
RING = 4
NCH = 10
STATS = 131072
LDS_BYTES = STATS + 4096

def gen_g1a(a):
    kernel_header(a, "g1a_kernel")
    a("s_cmp_ge_u32 s2, 256")
    a("s_cbranch_scc1 L_g1a_exit")
    load_ptrs(a)
    tile_map16(a)
    a("s_waitcnt lgkmcnt(0)")
    stamp(a, 0); stamp_rt(a, 1)
    a("s_cmp_lt_u32 s7, 4")
    a("s_cbranch_scc1 L_g1a_compute")
    VA = 8
    a("s_cmp_ge_u32 s7, 8")
    a("s_cbranch_scc1 L_g1a_stats")
    a("s_sub_u32 s9, s7, 4")
    a("s_cmp_ge_u32 s9, 2")
    a("s_cbranch_scc1 L_g1a_wl")
    srd(a, 52, P_AX, 0, 2048*1280)
    a(f"""
    v_lshrrev_b32 v3, 3, v2
    v_and_b32 v4, 7, v2
    v_lshrrev_b32 v5, 4, v2
    v_xor_b32 v4, v4, v5
    v_mul_u32_u24 v6, 1280, v3
    v_lshl_add_u32 v6, v4, 4, v6
    v_xor_b32 v7, 64, v6
    s_lshl_b32 s10, s5, 7
    s_lshl_b32 s11, s9, 6
    s_add_u32 s10, s10, s11
    s_mul_i32 s10, s10, 1280
    s_mov_b32 s56, 128
    s_lshl_b32 s57, s9, 13
    s_mov_b64 s[62:63], -1
    """)
    for i in range(8):
        a(f"s_add_u32 s11, s10, {8*i*1280}")
        a(f"v_add_u32 v{VA+i}, s11, v{6 + (i & 1)}")
    a("s_branch L_g1a_load")
    a.label("L_g1a_wl")
    srd(a, 52, P_WQKV, 0, 640*3840)
    m = (~((1 << 15) | (1 << 19) | (1 << 39) | (1 << 59))) & ((1 << 64) - 1)
    a(f"""
    s_sub_u32 s12, s9, 2
    v_lshrrev_b32 v5, 4, v2
    v_and_b32 v4, 15, v2
    v_lshlrev_b32 v6, 2, v5
    v_sub_u32 v4, v4, v6
    v_and_b32 v4, 15, v4
    v_mul_u32_u24 v6, 3840, v5
    v_lshl_add_u32 v6, v4, 4, v6
    s_mul_i32 s10, s12, {32*3840}
    s_mul_i32 s11, s6, 240
    s_add_u32 s10, s10, s11
    s_mov_b32 s56, {64*3840}
    s_lshl_b32 s57, s12, 13
    s_add_u32 s57, s57, 16384
    s_mov_b32 s62, 0x{m & 0xffffffff:08x}
    s_mov_b32 s63, 0x{m >> 32:08x}
    """)
    for i in range(8):
        a(f"s_add_u32 s11, s10, {4*i*3840}")
        a(f"v_add_u32 v{VA+i}, s11, v6")
    a.label("L_g1a_load")
    a("s_mov_b32 s58, 0")
    a("s_mov_b64 exec, s[62:63]")
    def issue(c):
        for i in range(8):
            a(f"s_add_u32 m0, s57, {(c % RING) * STAGE + i * 1024}")
            a("s_nop 0")
            a(f"buffer_load_dwordx4 v{VA+i}, s[52:55], s58 offen lds")
        a("s_add_u32 s58, s58, s56")
    g13.loader_loop(a, issue, 8, NCH, 2, 0)
    a.label("L_g1a_stats")
    a("s_sub_u32 s9, s7, 8")
    a("s_cmp_lg_u32 s9, 0")
    a("s_cbranch_scc1 L_g1a_nocpf")
    code_prefetch(a, "g1a_kernel", 56*1024, 64, 80, 81)
    a.label("L_g1a_nocpf")
    TA = int(os.environ.get('TA', 4))
    srd(a, 44, P_AX, 0, 2048*1280)
    a(f"""
    s_mov_b64 s[62:63], 0
    s_cmp_eq_u32 s9, 1
    s_cbranch_scc0 L_g1a_tw
    s_mov_b64 s[62:63], 0xffff
    s_and_b32 s10, s6, 7
    s_lshl_b32 s10, s10, 4
    s_lshl_b32 s11, s5, 7
    s_add_u32 s10, s10, s11
    v_add_u32 v82, s10, v2
    v_mul_u32_u24 v82, 1280, v82
    s_movk_i32 s56, 128
    s_branch L_g1a_tgo
    """)
    a.label("L_g1a_tw")
    a(f"""
    v_mov_b32 v82, 0
    s_mov_b32 s56, 0
    s_cmp_eq_u32 s9, 2
    s_cbranch_scc0 L_g1a_tgo
    s_mov_b32 s62, -1
    s_movk_i32 s63, 0x7fff
    s_or_b32 s63, s63, 0x8000
    """)
    srd(a, 44, P_WQKV, 0, 640*3840)
    a(f"""
    v_mul_u32_u24 v83, 21846, v2
    v_lshrrev_b32 v83, 16, v83
    v_mul_u32_u24 v84, 3, v83
    v_sub_u32 v84, v2, v84
    v_mul_u32_u24 v84, 118, v84
    s_and_b32 s10, s5, 3
    s_lshl_b32 s10, s10, 4
    v_add_u32 v83, s10, v83
    v_mul_u32_u24 v83, 3840, v83
    v_add_u32 v82, v83, v84
    s_mul_i32 s11, s6, 240
    v_add_u32 v82, s11, v82
    v_and_b32 v82, -4, v82
    s_mov_b32 s56, {64*3840}
    """)
    a.label("L_g1a_tgo")
    a("s_lshl_b32 s58, s56, 1")
    def touch():
        l = a.newlabel("nt")
        a(f"""
        s_cmp_eq_u32 s56, 0
        s_cbranch_scc1 {l}
        s_mov_b64 exec, s[62:63]
        buffer_load_dword v85, v82, s[44:47], s58 offen
        s_mov_b64 exec, -1
        s_add_u32 s58, s58, s56
        """)
        a.label(l)
    for c in range(2, min(NCH, 2 + TA)):
        touch()
    VXR, VWR = 16, 18
    XD, WD = 24, 40
    SUM, SQ, CS, U = 56, 58, 60, 68
    a(f"""
    v_and_b32 v3, 31, v2
    v_lshrrev_b32 v4, 5, v2
    s_lshl_b32 s10, s9, 5
    v_add_u32 v5, s10, v3
    v_lshlrev_b32 v5, 7, v5
    v_lshrrev_b32 v6, 1, v3
    v_and_b32 v6, 7, v6
    v_lshlrev_b32 v7, 2, v4
    v_xor_b32 v6, v6, v7
    v_and_b32 v20, 3, v6
    v_and_b32 v6, 4, v6
    v_lshl_add_u32 v5, v6, 4, v5
    """)
    for i in range(4):
        a(f"v_xor_b32 v6, {i}, v20")
        a(f"v_lshl_add_u32 v{72+i}, v6, 4, v5")
        a(f"v_add_u32 v{76+i}, 65536, v{72+i}")
    for r in range(SUM, CS+8):
        a(f"v_mov_b32 v{r}, 0")
    for c in range(NCH):
        a("s_barrier")
        if c == 0: stamp(a, 2)
        if c == NCH//2: stamp(a, 4)
        if TA and c + 2 + TA < NCH: touch()
        st = c % RING
        sset, sin = st // 2, st % 2
        for i in range(4):
            a(f"ds_read_b128 {vr(XD+4*i,4)}, v{72+4*sset+i} offset:{sin*STAGE}")
        for r in range(16):
            if r % 4 == 0: a(f"s_waitcnt lgkmcnt({3 - r//4})")
            u = U + 2*(r & 1)
            a(f"v_lshlrev_b32 v{u}, 16, v{XD+r}")
            a(f"v_and_b32 v{u+1}, 0xffff0000, v{XD+r}")
            a(f"v_add_f32 v{SUM}, v{SUM}, v{u}")
            a(f"v_add_f32 v{SUM+1}, v{SUM+1}, v{u+1}")
            a(f"v_fmac_f32 v{SQ}, v{u}, v{u}")
            a(f"v_fmac_f32 v{SQ+1}, v{u+1}, v{u+1}")
    stamp(a, 3)
    a(f"v_add_f32 v{SUM}, v{SUM}, v{SUM+1}")
    a(f"v_add_f32 v{SUM+1}, v{SQ}, v{SQ+1}")
    half_sum(a, SUM, U); half_sum(a, SUM+1, U)
    a(f"""
    s_lshl_b32 s10, s9, 8
    s_add_u32 s10, s10, {STATS + 2048}
    v_lshl_add_u32 v5, v3, 3, s10
    ds_write_b64 v5, {vr(SUM,2)}
    s_waitcnt lgkmcnt(0)
    s_barrier
    """)
    stamp_flush(a, 0, 8)
    a.label("L_g1a_exit")
    a("s_endpgm")
    a.label("L_g1a_compute")
    VX, VW, RS, FX, FW, ACC = 8, 28, 18, 32, 56, 80
    CSA, ONES = 144, 160
    XW, XM, T = 56, 64, 20
    a(f"""
    s_lshr_b32 s8, s7, 1
    s_and_b32 s9, s7, 1
    v_and_b32 v3, 31, v2
    v_lshrrev_b32 v4, 5, v2
    s_lshl_b32 s13, s5, 7
    s_lshl_b32 s14, s8, 6
    s_add_u32 s12, s13, s14
    v_lshrrev_b32 v5, 1, v3
    v_and_b32 v5, 7, v5
    v_add_u32 v6, s14, v3
    v_lshlrev_b32 v6, 7, v6
    """)
    for ks in range(4):
        a(f"v_add_u32 v7, {2*ks}, v4")
        a(f"v_xor_b32 v7, v7, v5")
        a(f"v_lshl_add_u32 v{VX+ks}, v7, 4, v6")
        a(f"v_add_u32 v{VX+4+ks}, 65536, v{VX+ks}")
    a(f"""
    v_lshrrev_b32 v5, 4, v2
    v_and_b32 v5, 1, v5
    v_and_b32 v6, 3, v2
    v_lshl_add_u32 v5, v5, 2, v6
    v_lshlrev_b32 v5, 2, v5
    v_bfe_u32 v6, v2, 2, 2
    v_lshl_add_u32 v7, v4, 3, v6
    v_lshlrev_b32 v7, 8, v7
    v_add_u32 v7, 16384, v7
    s_mul_i32 s10, s9, 120
    v_lshl_add_u32 v6, v6, 6, s10
    """)
    for nt, tab in enumerate((0x76453120, 0x8E79DBCA)):
        a(f"""
        s_mov_b32 s11, 0x{tab:08x}
        v_bfe_u32 v{VW+nt}, s11, v5, 4
        v_lshl_add_u32 v{VW+nt}, v{VW+nt}, 3, v6
        v_and_b32 v{VW+nt}, 255, v{VW+nt}
        v_add_u32 v{VW+nt}, v{VW+nt}, v7
        v_add_u32 v{VW+2+nt}, 65536, v{VW+nt}
        """)
    a(f"""
    v_add_u32 v17, s14, v3
    v_lshlrev_b32 v17, 3, v17
    v_add_u32 v17, {STATS + 2048}, v17
    s_lshl_b32 s10, s9, 8
    s_add_u32 s10, s10, {STATS}
    v_lshl_add_u32 v16, v3, 2, s10
    s_lshl_b32 s11, s8, 7
    s_add_u32 s10, s10, s11
    v_lshl_add_u32 v5, v4, 4, s10
    v_mov_b32 v{ONES}, 0x3f803f80
    v_mov_b32 v{ONES+1}, 0x3f803f80
    v_mov_b32 v{ONES+2}, 0x3f803f80
    v_mov_b32 v{ONES+3}, 0x3f803f80
    """)
    g13.g1_epilogue_setup(a)
    NB = 3
    def reads(s):
        c, ks = s // 4, s % 4
        buf = s % NB
        st = c % RING
        sset, sin = st // 2, st % 2
        for mt in range(2):
            a(f"ds_read_b128 {vr(FX + (buf*2+mt)*4, 4)}, v{VX + sset*4 + ks} offset:{sin*STAGE + mt*4096}")
        for nt in range(2):
            for i in range(2):
                a(f"ds_read_b64_tr_b16 {vr(FW + (buf*2+nt)*4 + 2*i, 2)}, v{VW + sset*2 + nt} offset:{sin*STAGE + (16*ks+4*i)*256}")
    a("s_cmp_eq_u32 s8, 1")
    a("s_barrier")
    stamp(a, 2)
    reads(0); reads(1)
    NS = 4*NCH
    for s in range(NS):
        buf = s % NB
        a(f"s_waitcnt lgkmcnt({6 if s + 1 < NS else 0})")
        if s % 4 == 2 and s // 4 + 1 < NCH:
            a("s_barrier")
            if s // 4 + 1 == NCH // 2: stamp(a, 4)
        first = True
        for nt in range(2):
            for mt in range(2):
                acc = ACC + (nt*2+mt)*16
                cin = "0" if s == 0 else vr(acc, 16)
                a(f"v_mfma_f32_32x32x16_bf16 {vr(acc,16)}, {vr(FW + (buf*2+nt)*4, 4)}, {vr(FX + (buf*2+mt)*4, 4)}, {cin}")
                if first and s + 2 < NS:
                    reads(s + 2)
                first = False
        l1, l2 = a.newlabel("cs"), a.newlabel("cs")
        cin = "0" if s == 0 else vr(CSA, 16)
        a(f"s_cbranch_scc1 {l1}")
        a(f"v_mfma_f32_32x32x16_bf16 {vr(CSA,16)}, {vr(FW + (buf*2+0)*4, 4)}, {vr(ONES,4)}, {cin}")
        a(f"s_branch {l2}")
        a.label(l1)
        a(f"v_mfma_f32_32x32x16_bf16 {vr(CSA,16)}, {vr(FW + (buf*2+1)*4, 4)}, {vr(ONES,4)}, {cin}")
        a.label(l2)
    stamp(a, 3)
    a("s_nop 15")
    a("s_mov_b32 exec_lo, 1")
    a("s_mov_b32 exec_hi, 1")
    for aa in range(4):
        a(f"ds_write_b128 v5, {vr(CSA+4*aa,4)} offset:{aa*32}")
    a("s_mov_b64 exec, -1")
    a("s_waitcnt lgkmcnt(0)")
    a("s_barrier")
    for nt in range(2):
        a(f"ds_read_b32 v{FX+4*nt}, v16 offset:{nt*128}")
    a(f"ds_read_b64 {vr(FX+8,2)}, v17")
    a(f"ds_read_b64 {vr(FX+10,2)}, v17 offset:256")
    a("s_waitcnt lgkmcnt(2)")
    for nt in range(2):
        c = FX + 4*nt
        x = XW + 4*nt
        a(f"""
        v_and_b32 v{c+1}, 0xffff0000, v{c}
        v_sub_f32 v{c}, v{c}, v{c+1}
        v_cvt_pk_bf16_f32 v{x+1}, v{c}, 0
        v_lshrrev_b32 v{c+2}, 16, v{c+1}
        v_or_b32 v{x}, v{c+1}, v{c+2}
        v_mov_b32 v{x+2}, 0
        v_mov_b32 v{x+3}, 0
        """)
    a(f"""
    s_mov_b64 exec, s[66:67]
    v_mov_b32 v{XW}, 0
    v_mov_b32 v{XW+1}, 0
    v_mov_b32 v{XW+4}, 0
    v_mov_b32 v{XW+5}, 0
    s_mov_b64 exec, -1
    s_mov_b32 s10, {f32(1.0/640)}
    s_waitcnt lgkmcnt(0)
    """)
    for mt in range(2):
        s = FX + 8 + 2*mt
        t = FX + 12
        x = XM + 4*mt
        a(f"""
        v_mul_f32 v{s}, s10, v{s}
        v_mul_f32 v{s+1}, s10, v{s+1}
        v_fma_f32 v{s+1}, -v{s}, v{s}, v{s+1}
        v_max_f32 v{s+1}, 0, v{s+1}
        v_add_f32 v{s+1}, {f32(1e-5)}, v{s+1}
        v_rsq_f32 v{RS+mt}, v{s+1}
        v_xor_b32 v{s}, 0x80000000, v{s}
        v_and_b32 v{t}, 0xffff0000, v{s}
        v_sub_f32 v{s}, v{s}, v{t}
        v_lshrrev_b32 v{x+1}, 16, v{t}
        v_cvt_pk_bf16_f32 v{t+1}, 0, v{s}
        v_or_b32 v{x}, v{x+1}, v{t+1}
        v_mov_b32 v{x+3}, v{x+1}
        v_mov_b32 v{x+2}, v{x}
        """)
    a("s_nop 1")
    for nt in range(2):
        for mt in range(2):
            acc = ACC + (nt*2+mt)*16
            a(f"v_mfma_f32_32x32x16_bf16 {vr(acc,16)}, {vr(XW+4*nt,4)}, {vr(XM+4*mt,4)}, {vr(acc,16)}")
    a("s_nop 7")
    g13.g1_epilogue(a)
    stamp_flush(a, 0, 8)
    a("s_endpgm")
    return [("g1a_kernel", 164)]
```

```python
import sys
sys.path.insert(0, "gen")
from asmlib import *
import g13, g24, att, k0, g1raw, chain, att8, os
A8 = int(os.environ.get('A8', 0))
CHAIN = int(os.environ.get('CHAIN', 1))

def build(extra_launches=0):
    a = Asm()
    launches = [("g1a_kernel", 768, g1raw.LDS_BYTES), ("atta_kernel", 1024, att.LDS_BYTES), ("g2a_kernel", 512, g24.STAGE*g24.NST), ("g3_kernel", 512, 163840), ("g4a_kernel", 512, g24.STAGE*g24.NST),
                ("g1b_kernel", 512, 131072), ("attb_kernel", 1024, att.LDS_BYTES), ("g2b_kernel", 512, g24.STAGE*g24.NST), ("g3_kernel", 512, 163840), ("g4b_kernel", 512, g24.STAGE*g24.NST)]
    if CHAIN:
        launches = [launches[0], launches[1], ("cha_kernel", 512, 163840), launches[6], ("chb_kernel", 512, 163840)]
    if A8:
        launches[3] = ("attc_kernel", 512, att8.LDS_BYTES)
    if CHAIN and chain.MEGA:
        launches = launches[:3] if chain.MEGA == 1 else [launches[0], launches[2]]
    hdr = open("interleave_layers__mha_block__glu_gated_reglu__prompt.s.ref").read().split("\n")
    head = [l for l in hdr if l.startswith(";") and "@launch" not in l and "Override" not in l and "grid=ceil" not in l]
    out = head[:11]
    for k, b, lds in launches:
        out.append(f"; @launch kernel={k} grid=(256,1,1) block=({b},1,1) lds={lds}")
    for _ in range(extra_launches):
        out.append(f"; @launch kernel=nop_kernel grid=(256,1,1) block=(256,1,1) lds=0")
    out.append('.amdgcn_target "amdgcn-amd-amdhsa--gfx950"')
    out.append(".text")
    ks = []
    a.gemm = True
    ks += g1raw.gen_g1a(a)
    if not CHAIN: ks += g13.gen_g1(a)
    a.gemm = False
    if not (CHAIN and chain.MEGA == 2): ks += att.gen_att(a, 0)
    if CHAIN and chain.MEGA: ks = [k for k in ks if k[0] != 'attb_kernel']
    if A8:
        ks = [k for k in ks if k[0] != "attb_kernel"]
        ks += att8.gen_att8(a)
    a.gemm = True
    if CHAIN:
        ks = [k for k in ks if k[0] != "g1b_kernel"]
        ks += chain.gen_chain(a)
    else:
        ks += g24.gen_g2(a)
        ks += g13.gen_g3(a)
        ks += g24.gen_g4(a)
    if extra_launches:
        kernel_header(a, "nop_kernel"); a("s_endpgm"); ks.append(("nop_kernel", 8))
    txt = "\n".join(out) + "\n" + a.text() + '.section .rodata,"a"\n'
    for k, v in ks:
        txt += kernel_desc(k, v, 102)
    return txt

if __name__ == "__main__":
    dst = sys.argv[1] if len(sys.argv) > 1 else "interleave_layers__mha_block__glu_gated_reglu__prompt.s"
    extra = int(sys.argv[2]) if len(sys.argv) > 2 else 0
    if len(sys.argv) > 3 and sys.argv[3] == "stamps":
        import asmlib
        asmlib.STAMPS = True
    open(dst, "w").write(build(extra))
    print("wrote", dst)
```

```python
from asmlib import *
from layout import *
import os

HSTG = 24576
STG = 2 * HSTG
NSTG = 3
FLAG = NSTG * STG
LDS_BYTES = FLAG + 64
PFC = int(os.environ.get('PFC', 2))
PRIO8 = int(os.environ.get('PRIO8', 1))

def body(a, L, sc_load="", sc_store="", wait_hook=None, end_hook=None, layer_flag_zero=None):
    VDMA, VKM0, VKT0, VV0, VKM, VKT, VV = 5, 6, 7, 8, 10, 11, 12
    Q = [16, 24]
    KM, KT = 32, 40
    VF = 44
    P = [60, 68]
    O = [76, 92]
    S = [108, 124]
    T = 140
    a(f"""
    s_and_b32 s3, s2, 7
    s_lshl_b32 s5, s3, 2
    s_bfe_u32 s4, s2, 0x20003
    s_add_u32 s5, s5, s4
    s_lshr_b32 s6, s2, 5
    v_and_b32 v3, 31, v2
    v_lshrrev_b32 v4, 5, v2
    v_lshlrev_b32 v14, 2, v4
    v_xor_b32 v14, v14, v3
    v_lshlrev_b32 v14, 4, v14
    v_lshl_add_u32 v{VKM0}, v4, 9, v14
    v_xor_b32 v14, 8, v3
    v_lshlrev_b32 v14, 4, v14
    v_lshl_add_u32 v14, v4, 3, v14
    v_add_u32 v{VKT0}, 1024, v14
    v_bfe_u32 v15, v2, 4, 1
    v_and_b32 v{T}, 3, v2
    v_lshlrev_b32 v{T+1}, 1, v15
    v_sub_u32 v{T+1}, 3, v{T+1}
    v_min_u32 v{T}, v{T}, v{T+1}
    v_lshl_add_u32 v{T}, v15, 2, v{T}
    v_lshrrev_b32 v{T+1}, 1, v{T}
    v_and_b32 v{T}, 1, v{T}
    v_bfe_u32 v14, v2, 2, 2
    v_lshl_add_u32 v14, v4, 2, v14
    v_lshlrev_b32 v{T+2}, 2, v{T+1}
    v_xor_b32 v14, v14, v{T+2}
    v_lshlrev_b32 v14, 4, v14
    v_lshl_add_u32 v14, v{T+1}, 9, v14
    v_lshl_add_u32 v14, v{T}, 3, v14
    v_add_u32 v{VV0}, 12288, v14
    v_xor_b32 v{VV0+1}, 128, v{VV0}
    s_and_b32 s8, s7, 3
    s_lshr_b32 s9, s7, 2
    s_mul_i32 s59, s9, {HSTG}
    s_bfe_u32 s10, s7, 0x10001
    s_lshl_b32 s10, s10, 5
    s_add_u32 s10, s10, 32
    s_add_u32 s10, s10, s5
    s_mul_i32 s10, s10, 98304
    s_mul_i32 s11, s9, 49152
    s_add_u32 s10, s10, s11
    s_and_b32 s11, s7, 1
    s_mul_i32 s11, s11, 6144
    s_add_u32 s10, s10, s11
    v_lshl_add_u32 v{VDMA}, v2, 4, s10
    v_add_u32 v15, 3072, v{VDMA}
    s_mul_i32 s53, s7, 6144
    s_lshl_b32 s10, s6, 3
    s_lshl_b32 s11, s8, 1
    s_add_u32 s10, s10, s11
    s_lshl_b32 s54, s10, 5
    s_mul_i32 s10, s10, 1536
    s_mul_i32 s11, s5, 98304
    s_add_u32 s55, s10, s11
    s_mov_b32 s64, -1
    s_mov_b32 s65, 0
    s_mov_b32 s66, 0
    s_mov_b32 s67, -1
    s_mov_b32 s56, 0
    v_mov_b32 v{T}, 0
    v_mov_b32 v{T+1}, {FLAG}
    ds_write_b32 v{T+1}, v{T}
    s_waitcnt lgkmcnt(0)
    """)
    stamp(a, 0); stamp_rt(a, 1)
    srd(a, 40, P_WS, WS_QKV, 96*98304)
    srd(a, 48, P_WS, WS_O, 2048*1280)
    if layer_flag_zero: layer_flag_zero(T)
    if wait_hook: wait_hook()
    def dma_i(i, ssoff, sbase):
        a(f"s_add_u32 m0, {sbase}, {3072*(i//3)}")
        a("s_nop 0")
        a(f"buffer_load_dwordx4 v{VDMA if i < 3 else 15}, s[40:43], {ssoff} offen offset:{(i%3)*1024}{sc_load} lds")
    def dma0():
        for i in range(6): dma_i(i, "0", "s53")
    for b in range(2):
        a(f"buffer_load_dwordx4 {vr(Q[b],4)}, v{VKM0}, s[40:43], s55 offen offset:{b*1536}{sc_load}")
        a(f"buffer_load_dwordx2 {vr(Q[b]+4,2)}, v{VKT0}, s[40:43], s55 offen offset:{b*1536}{sc_load}")
    a.label(f"{L}_restart")
    a("s_bitcmp1_b32 s7, 0")
    a(f"s_cbranch_scc1 {L}_late")
    dma0()
    a.label(f"{L}_late")
    for b in range(2):
        for r in range(16):
            a(f"v_mov_b32 v{O[b]+r}, 0")
    for r in range(8):
        a(f"v_mov_b32 v{P[1]+r}, 0")
        a(f"v_mov_b32 v{VF+8+r}, 0")
    a(f"""
    v_add_u32 v{VKM}, s59, v{VKM0}
    v_add_u32 v{VKT}, s59, v{VKT0}
    s_mov_b32 s52, 0
    s_mov_b32 s58, s59
    s_mov_b32 s60, 12288
    s_add_u32 s61, s53, {STG}
    s_waitcnt vmcnt(0)
    """)
    stamp(a, 5)
    a(f"""
    s_barrier
    ds_read_b128 {vr(KM,4)}, v{VKM}
    ds_read_b64 {vr(KT,2)}, v{VKT}
    s_cmp_lg_u32 s56, 0
    s_cbranch_scc1 {L}_have_m
    ds_read_b128 {vr(KM+4,4)}, v{VKM0}
    ds_read_b64 {vr(KT+2,2)}, v{VKT0}
    s_mov_b64 exec, s[66:67]
    v_mov_b32 v{Q[0]+4}, 0
    v_mov_b32 v{Q[0]+5}, 0
    v_mov_b32 v{Q[1]+4}, 0
    v_mov_b32 v{Q[1]+5}, 0
    s_mov_b64 exec, -1
    s_waitcnt lgkmcnt(0)
    s_nop 1
    """)
    for b in range(2):
        a(f"v_mfma_f32_32x32x16_bf16 {vr(S[b],16)}, {vr(KM+4,4)}, {vr(Q[b],4)}, 0")
        a(f"v_mfma_f32_32x32x8_bf16 {vr(S[b],16)}, {vr(KT+2,2)}, {vr(Q[b]+4,2)}, {vr(S[b],16)}")
    a("s_nop 9")
    for b in range(2):
        m = T + 4*b
        a(f"v_max3_f32 v{m}, v{S[b]}, v{S[b]+1}, v{S[b]+2}")
        for r in range(3, 15, 2):
            a(f"v_max3_f32 v{m}, v{m}, v{S[b]+r}, v{S[b]+r+1}")
        a(f"v_max_f32 v{m}, v{m}, v{S[b]+15}")
    a.label(f"{L}_set_m")
    for b in range(2):
        m = T + 4*b
        a(f"""
        v_mov_b32 v{m+1}, v{m}
        s_nop 1
        v_permlane32_swap_b32 v{m}, v{m+1}
        s_nop 1
        v_max_f32 v{m}, v{m}, v{m+1}
        v_xor_b32 v{m}, 0x80000000, v{m}
        v_and_b32 v{m+1}, 0xffff0000, v{m}
        v_sub_f32 v{m}, v{m}, v{m+1}
        v_and_b32 v{m+2}, 0xffff0000, v{m}
        v_sub_f32 v{m}, v{m}, v{m+2}
        v_lshrrev_b32 v{m+1}, 16, v{m+1}
        s_mov_b64 exec, s[66:67]
        v_or_b32 v{Q[b]+4}, v{m+1}, v{m+2}
        v_lshrrev_b32 v{Q[b]+5}, 16, v{m}
        s_mov_b64 exec, -1
        """)
    a(f"""
    s_cmp_lg_u32 s56, 0
    s_cbranch_scc1 {L}_restart
    """)
    a.label(f"{L}_have_m")
    a(f"""
    v_mov_b32 v{S[1]+14}, 0
    v_mov_b32 v{S[1]+15}, 0
    s_waitcnt lgkmcnt(0)
    v_mfma_f32_32x32x16_bf16 {vr(S[0],16)}, {vr(KM,4)}, {vr(Q[0],4)}, 0
    v_mfma_f32_32x32x8_bf16 {vr(S[0],16)}, {vr(KT,2)}, {vr(Q[0]+4,2)}, {vr(S[0],16)}
    s_nop 13
    s_bitcmp0_b32 s7, 0
    s_cbranch_scc1 {L}_early
    """)
    dma0()
    a.label(f"{L}_early")
    stamp(a, 2)
    a.raw(".p2align 6")
    a.label(f"{L}_loop")
    def phase(X, Y, kb, vb, pre=None, mid=None, waits=(None, None)):
        Sx, Sy = S[X], S[Y]
        e = lambda i: a(f"v_exp_f32 v{Sx+i}, v{Sx+i}")
        c = lambda i: a(f"v_cvt_pk_bf16_f32 v{P[X]+i}, v{Sx+2*i}, v{Sx+2*i+1}")
        e(0)
        a(f"v_cvt_pk_bf16_f32 v{P[Y]+7}, v{Sy+14}, v{Sy+15}")
        e(1)
        if pre: pre()
        if waits[0] is not None: a(f"s_waitcnt lgkmcnt({waits[0]})")
        a(f"v_mfma_f32_32x32x16_bf16 {vr(Sy,16)}, {vr(KM+4*kb,4)}, {vr(Q[Y],4)}, 0")
        if mid: mid()
        e(2); c(0); e(3); e(4); c(1)
        a(f"v_mfma_f32_32x32x8_bf16 {vr(Sy,16)}, {vr(KT+2*kb,2)}, {vr(Q[Y]+4,2)}, {vr(Sy,16)}")
        e(5); e(6); c(2); e(7); e(8)
        if waits[1] is not None: a(f"s_waitcnt lgkmcnt({waits[1]})")
        a(f"v_mfma_f32_32x32x16_bf16 {vr(O[Y],16)}, {vr(VF+8*vb,4)}, {vr(P[Y],4)}, {vr(O[Y],16)}")
        c(3); e(9); e(10); c(4); e(11); e(12)
        a(f"v_mfma_f32_32x32x16_bf16 {vr(O[Y],16)}, {vr(VF+8*vb+4,4)}, {vr(P[Y]+4,4)}, {vr(O[Y],16)}")
        c(5); e(13); e(14); c(6); e(15)
    for t in range(8):
        kb, vb = t & 1, t & 1
        def pre():
            if PRIO8 and t % 2 == 0:
                a(f"s_setprio {[2,1,0,3][t//2] if t != 6 else 0}")
            if t == 0:
                a(f"v_add_u32 v{VV}, s58, v{VV0}")
                a(f"v_add_u32 v{VV+1}, s58, v{VV0+1}")
        def mid():
            if t == 3:
                lab = a.newlabel("nobar")
                a(f"""
                s_cmp_lg_u32 s52, 0
                s_cbranch_scc1 {lab}
                s_waitcnt vmcnt(3)
                s_barrier
                """)
                a.label(lab)
            if t == 7:
                a(f"""
                s_add_u32 s58, s58, {STG}
                s_cmp_ge_u32 s58, {NSTG*STG}
                s_cselect_b32 s58, s59, s58
                v_add_u32 v{VKM}, s58, v{VKM0}
                v_add_u32 v{VKT}, s58, v{VKT0}
                s_waitcnt vmcnt(0)
                s_barrier
                s_add_u32 s60, s60, 12288
                s_add_u32 s61, s61, {STG}
                s_cmp_ge_u32 s61, {NSTG*STG}
                s_cselect_b32 s61, s53, s61
                """)
                if PRIO8: a("s_setprio 3")
                if PF & 1:
                    lab2 = a.newlabel("nopf")
                    a(f"""
                    s_cmp_lg_u32 s52, {PFC}
                    s_cbranch_scc1 {lab2}
                    s_lshr_b32 s12, s2, 3
                    s_lshl_b32 s12, s12, 3
                    s_add_u32 s12, s12, s7
                    s_lshr_b32 s13, s3, 2
                    """)
                    l2_prefetch(a, 44, WS_WT2, WT2_BYTES//2, 8, 12, T+4, T+5, 14, 13)
                    l2_prefetch(a, 44, WS_WT3, WT3_BYTES//2, 8, 12, T+4, T+5, 14, 13)
                    if PF & 8:
                        l2_prefetch(a, 44, WS_WT4, WT4_BYTES//2, 8, 12, T+4, T+5, 14, 13)
                    a.label(lab2)
            if t < 6:
                lab = a.newlabel("nodma")
                a(f"s_cmp_eq_u32 s52, 3")
                a(f"s_cbranch_scc1 {lab}")
                dma_i(t, "s60", "s61")
                a.label(lab)
            kt = (t+1) % 8
            a(f"ds_read_b128 {vr(KM+4*(kb^1),4)}, v{VKM} offset:{kt*1536}")
            a(f"ds_read_b64 {vr(KT+2*(kb^1),2)}, v{VKT} offset:{kt*1536}")
            for j in range(2):
                for i in range(2):
                    a(f"ds_read_b64_tr_b16 {vr(VF+8*vb+4*j+2*i,2)}, v{VV+i} offset:{t*1536 + j*256}")
        phase(0, 1, kb, vb ^ 1, pre, mid)
        phase(1, 0, kb ^ 1, vb, None, None, (4, 0))
    a(f"""
    s_add_u32 s52, s52, 1
    s_cmp_lt_u32 s52, 4
    s_cbranch_scc1 {L}_loop
    """)
    stamp(a, 3)
    a(f"""
    s_nop 0
    v_cvt_pk_bf16_f32 v{P[1]+7}, v{S[1]+14}, v{S[1]+15}
    s_setprio 0
    s_nop 1
    v_mfma_f32_32x32x16_bf16 {vr(O[1],16)}, {vr(VF+8,4)}, {vr(P[1],4)}, {vr(O[1],16)}
    v_mfma_f32_32x32x16_bf16 {vr(O[1],16)}, {vr(VF+12,4)}, {vr(P[1]+4,4)}, {vr(O[1],16)}
    s_mul_i32 s10, s8, 6144
    s_add_u32 s10, s10, {STG}
    v_lshl_add_u32 v{T+3}, v2, 4, s10
    v_add_u32 v13, s54, v3
    v_lshrrev_b32 v14, 4, v13
    v_mul_u32_u24 v14, 20480, v14
    v_and_b32 v13, 15, v13
    v_lshl_add_u32 v14, v13, 4, v14
    v_lshl_add_u32 v13, v4, 8, v14
    s_lshl_b32 s10, s5, 9
    s_lshr_b32 s11, s5, 1
    s_lshl_b32 s11, s11, 8
    s_and_b32 s12, s5, 1
    s_lshl_b32 s12, s12, 3
    s_add_u32 s11, s11, s12
    s_add_u32 s11, s11, 16384
    s_nop 4
    """)
    a(f"""
    s_cmp_eq_u32 s9, 0
    s_cbranch_scc1 {L}_lo
    """)
    for k in range(3):
        a(f"ds_write_b128 v{T+3}, {vr(O[0]+4*k,4)} offset:{1024*k}")
    for r in range(12):
        a(f"v_mov_b32 v{O[0]+r}, v{O[1]+r}")
    a(f"""
    v_add_u32 v{T+3}, 3072, v{T+3}
    v_add_u32 v13, 40960, v13
    v_add_u32 v14, 40960, v14
    s_branch {L}_x
    """)
    a.label(f"{L}_lo")
    for k in range(3):
        a(f"ds_write_b128 v{T+3}, {vr(O[1]+4*k,4)} offset:{3072 + 1024*k}")
    a.label(f"{L}_x")
    Oa, Sa, Pa = O[0], S[0], P[0]
    a(f"""
    s_waitcnt lgkmcnt(0)
    s_barrier
    ds_read_b128 {vr(Sa,4)}, v{T+3}
    ds_read_b128 {vr(Sa+4,4)}, v{T+3} offset:1024
    ds_read_b128 {vr(Sa+8,4)}, v{T+3} offset:2048
    s_waitcnt lgkmcnt(0)
    """)
    for r in range(0, 12, 2):
        a(f"v_pk_add_f32 {vr(Oa+r,2)}, {vr(Oa+r,2)}, {vr(Sa+r,2)}")
    a(f"""
    v_mov_b32 v{T}, v{Oa+8}
    v_mov_b32 v{T+1}, v{Oa+8}
    v_mul_f32 v{T+2}, 0, v{Oa}
    s_nop 0
    v_permlane32_swap_b32 v{T}, v{T+1}
    """)
    for r in range(1, 12):
        a(f"v_fma_f32 v{T+2}, 0, v{Oa+r}, v{T+2}")
    a(f"v_rcp_f32 v{T+1}, v{T+1}")
    a(f"v_cmp_u_f32 vcc, v{T+2}, v{T+2}")
    for r in range(12):
        a(f"v_mul_f32 v{Oa+r}, v{Oa+r}, v{T+1}")
    for r in range(6):
        a(f"v_cvt_pk_bf16_f32 v{Pa+r}, v{Oa+2*r}, v{Oa+2*r+1}")
    a(f"""
    buffer_store_dwordx4 {vr(Pa,4)}, v13, s[48:51], s10 offen{sc_store}
    s_mov_b64 exec, s[64:65]
    buffer_store_dwordx2 {vr(Pa+4,2)}, v14, s[48:51], s11 offen{sc_store}
    s_mov_b64 exec, -1
    s_cmp_lg_u32 s56, 0
    s_cbranch_scc1 {L}_done
    v_mov_b32 v{T+1}, {FLAG}
    s_cbranch_vccz {L}_ok
    v_mov_b32 v{T}, 1
    ds_write_b32 v{T+1}, v{T}
    """)
    a.label(f"{L}_ok")
    a(f"""
    s_waitcnt lgkmcnt(0)
    s_barrier
    ds_read_b32 v{T}, v{T+1}
    s_waitcnt lgkmcnt(0)
    v_readfirstlane_b32 s10, v{T}
    s_nop 3
    s_cmp_eq_u32 s10, 0
    s_cbranch_scc1 {L}_done
    s_mov_b32 s56, 1
    s_mov_b64 exec, s[66:67]
    v_mov_b32 v{Q[0]+4}, 0
    v_mov_b32 v{Q[0]+5}, 0
    v_mov_b32 v{Q[1]+4}, 0
    v_mov_b32 v{Q[1]+5}, 0
    s_mov_b64 exec, -1
    v_mov_b32 v{T}, 0xff800000
    v_mov_b32 v{T+4}, 0xff800000
    s_add_u32 s10, s5, 32
    s_mul_i32 s10, s10, 98304
    s_mov_b32 s11, 64
    """)
    a.label(f"{L}_maxloop")
    a(f"""
    buffer_load_dwordx4 {vr(KM,4)}, v{VKM0}, s[40:43], s10 offen{sc_load}
    buffer_load_dwordx2 {vr(KT,2)}, v{VKT0}, s[40:43], s10 offen{sc_load}
    s_waitcnt vmcnt(0)
    """)
    for b in range(2):
        a(f"v_mfma_f32_32x32x16_bf16 {vr(S[b],16)}, {vr(KM,4)}, {vr(Q[b],4)}, 0")
        a(f"v_mfma_f32_32x32x8_bf16 {vr(S[b],16)}, {vr(KT,2)}, {vr(Q[b]+4,2)}, {vr(S[b],16)}")
    a("s_nop 15")
    for b in range(2):
        for r in range(0, 16, 2):
            a(f"v_max3_f32 v{T+4*b}, v{T+4*b}, v{S[b]+r}, v{S[b]+r+1}")
    a(f"""
    s_add_u32 s10, s10, 1536
    s_sub_u32 s11, s11, 1
    s_cmp_lg_u32 s11, 0
    s_cbranch_scc1 {L}_maxloop
    s_branch {L}_set_m
    """)
    a.label(f"{L}_done")
    if end_hook: end_hook()
    stamp_flush(a, 1, 8)

def gen_att8(a):
    kernel_header(a, "attc_kernel")
    a("s_cmp_ge_u32 s2, 256")
    a("s_cbranch_scc1 L_a8_exit")
    load_ptrs(a)
    a("""
    v_lshrrev_b32 v1, 6, v0
    v_and_b32 v2, 63, v0
    s_nop 0
    v_readfirstlane_b32 s7, v1
    """)
    def zero(T):
        srd(a, 44, P_WS, WS_FLAGS, FLAGS_BYTES)
        a(f"""
        s_cmp_ge_u32 s2, 48
        s_cbranch_scc1 L_a8_nofl
        s_cmp_lg_u32 s7, 7
        s_cbranch_scc1 L_a8_nofl
        s_lshl_b32 s10, s2, 8
        s_add_u32 s10, s10, 12288
        v_lshlrev_b32 v14, 2, v2
        buffer_store_dword v{T}, v14, s[44:47], s10 offen
        """)
        a.label("L_a8_nofl")
    body(a, "L_a8", layer_flag_zero=zero)
    a.label("L_a8_exit")
    a("s_endpgm")
    return [("attc_kernel", 148)]
```

```python
from asmlib import *
from layout import *
import g13, os
from g13 import f32, tile_map16, half_sum

STAGE = 32768
RING = 4
NCH = 10
STATS = 131072
LDS_BYTES = STATS + 4096

def gen_g1a(a):
    kernel_header(a, "g1a_kernel")
    a("s_cmp_ge_u32 s2, 256")
    a("s_cbranch_scc1 L_g1a_exit")
    load_ptrs(a)
    tile_map16(a)
    a("s_waitcnt lgkmcnt(0)")
    stamp(a, 0); stamp_rt(a, 1)
    a("s_cmp_lt_u32 s7, 4")
    a("s_cbranch_scc1 L_g1a_compute")
    VA = 8
    a("s_cmp_ge_u32 s7, 8")
    a("s_cbranch_scc1 L_g1a_stats")
    a("s_sub_u32 s9, s7, 4")
    a("s_cmp_ge_u32 s9, 2")
    a("s_cbranch_scc1 L_g1a_wl")
    srd(a, 52, P_AX, 0, 2048*1280)
    a(f"""
    v_lshrrev_b32 v3, 3, v2
    v_and_b32 v4, 7, v2
    v_lshrrev_b32 v5, 4, v2
    v_xor_b32 v4, v4, v5
    v_mul_u32_u24 v6, 1280, v3
    v_lshl_add_u32 v6, v4, 4, v6
    v_xor_b32 v7, 64, v6
    s_lshl_b32 s10, s5, 7
    s_lshl_b32 s11, s9, 6
    s_add_u32 s10, s10, s11
    s_mul_i32 s10, s10, 1280
    s_mov_b32 s56, 128
    s_lshl_b32 s57, s9, 13
    s_mov_b64 s[62:63], -1
    """)
    for i in range(8):
        a(f"s_add_u32 s11, s10, {8*i*1280}")
        a(f"v_add_u32 v{VA+i}, s11, v{6 + (i & 1)}")
    a("s_branch L_g1a_load")
    a.label("L_g1a_wl")
    srd(a, 52, P_WQKV, 0, 640*3840)
    m = (~((1 << 15) | (1 << 19) | (1 << 39) | (1 << 59))) & ((1 << 64) - 1)
    a(f"""
    s_sub_u32 s12, s9, 2
    v_lshrrev_b32 v5, 4, v2
    v_and_b32 v4, 15, v2
    v_lshlrev_b32 v6, 2, v5
    v_sub_u32 v4, v4, v6
    v_and_b32 v4, 15, v4
    v_mul_u32_u24 v6, 3840, v5
    v_lshl_add_u32 v6, v4, 4, v6
    s_mul_i32 s10, s12, {32*3840}
    s_mul_i32 s11, s6, 240
    s_add_u32 s10, s10, s11
    s_mov_b32 s56, {64*3840}
    s_lshl_b32 s57, s12, 13
    s_add_u32 s57, s57, 16384
    s_mov_b32 s62, 0x{m & 0xffffffff:08x}
    s_mov_b32 s63, 0x{m >> 32:08x}
    """)
    for i in range(8):
        a(f"s_add_u32 s11, s10, {4*i*3840}")
        a(f"v_add_u32 v{VA+i}, s11, v6")
    a.label("L_g1a_load")
    a("s_mov_b32 s58, 0")
    a("s_mov_b64 exec, s[62:63]")
    def issue(c):
        for i in range(8):
            a(f"s_add_u32 m0, s57, {(c % RING) * STAGE + i * 1024}")
            a("s_nop 0")
            a(f"buffer_load_dwordx4 v{VA+i}, s[52:55], s58 offen lds")
        a("s_add_u32 s58, s58, s56")
    g13.loader_loop(a, issue, 8, NCH, 2, 0)
    a.label("L_g1a_stats")
    a("s_sub_u32 s9, s7, 8")
    a("s_cmp_lg_u32 s9, 0")
    a("s_cbranch_scc1 L_g1a_nocpf")
    code_prefetch(a, "g1a_kernel", 56*1024, 64, 80, 81)
    a.label("L_g1a_nocpf")
    TA = int(os.environ.get('TA', 4))
    srd(a, 44, P_AX, 0, 2048*1280)
    a(f"""
    s_mov_b64 s[62:63], 0
    s_cmp_eq_u32 s9, 1
    s_cbranch_scc0 L_g1a_tw
    s_mov_b64 s[62:63], 0xffff
    s_and_b32 s10, s6, 7
    s_lshl_b32 s10, s10, 4
    s_lshl_b32 s11, s5, 7
    s_add_u32 s10, s10, s11
    v_add_u32 v82, s10, v2
    v_mul_u32_u24 v82, 1280, v82
    s_movk_i32 s56, 128
    s_branch L_g1a_tgo
    """)
    a.label("L_g1a_tw")
    a(f"""
    v_mov_b32 v82, 0
    s_mov_b32 s56, 0
    s_cmp_eq_u32 s9, 2
    s_cbranch_scc0 L_g1a_tgo
    s_mov_b32 s62, -1
    s_movk_i32 s63, 0x7fff
    s_or_b32 s63, s63, 0x8000
    """)
    srd(a, 44, P_WQKV, 0, 640*3840)
    a(f"""
    v_mul_u32_u24 v83, 21846, v2
    v_lshrrev_b32 v83, 16, v83
    v_mul_u32_u24 v84, 3, v83
    v_sub_u32 v84, v2, v84
    v_mul_u32_u24 v84, 118, v84
    s_and_b32 s10, s5, 3
    s_lshl_b32 s10, s10, 4
    v_add_u32 v83, s10, v83
    v_mul_u32_u24 v83, 3840, v83
    v_add_u32 v82, v83, v84
    s_mul_i32 s11, s6, 240
    v_add_u32 v82, s11, v82
    v_and_b32 v82, -4, v82
    s_mov_b32 s56, {64*3840}
    """)
    a.label("L_g1a_tgo")
    a("s_lshl_b32 s58, s56, 1")
    def touch():
        l = a.newlabel("nt")
        a(f"""
        s_cmp_eq_u32 s56, 0
        s_cbranch_scc1 {l}
        s_mov_b64 exec, s[62:63]
        buffer_load_dword v85, v82, s[44:47], s58 offen
        s_mov_b64 exec, -1
        s_add_u32 s58, s58, s56
        """)
        a.label(l)
    for c in range(2, min(NCH, 2 + TA)):
        touch()
    VXR, VWR = 16, 18
    XD, WD = 24, 40
    SUM, SQ, CS, U = 56, 58, 60, 68
    a(f"""
    v_and_b32 v3, 31, v2
    v_lshrrev_b32 v4, 5, v2
    s_lshl_b32 s10, s9, 5
    v_add_u32 v5, s10, v3
    v_lshlrev_b32 v5, 7, v5
    v_lshrrev_b32 v6, 1, v3
    v_and_b32 v6, 7, v6
    v_lshlrev_b32 v7, 2, v4
    v_xor_b32 v6, v6, v7
    v_and_b32 v20, 3, v6
    v_and_b32 v6, 4, v6
    v_lshl_add_u32 v5, v6, 4, v5
    """)
    for i in range(4):
        a(f"v_xor_b32 v6, {i}, v20")
        a(f"v_lshl_add_u32 v{72+i}, v6, 4, v5")
        a(f"v_add_u32 v{76+i}, 65536, v{72+i}")
    for r in range(SUM, CS+8):
        a(f"v_mov_b32 v{r}, 0")
    for c in range(NCH):
        a("s_barrier")
        if c == 0: stamp(a, 2)
        if c == NCH//2: stamp(a, 4)
        if TA and c + 2 + TA < NCH: touch()
        st = c % RING
        sset, sin = st // 2, st % 2
        for i in range(4):
            a(f"ds_read_b128 {vr(XD+4*i,4)}, v{72+4*sset+i} offset:{sin*STAGE}")
        for r in range(16):
            if r % 4 == 0: a(f"s_waitcnt lgkmcnt({3 - r//4})")
            u = U + 2*(r & 1)
            a(f"v_lshlrev_b32 v{u}, 16, v{XD+r}")
            a(f"v_and_b32 v{u+1}, 0xffff0000, v{XD+r}")
            a(f"v_add_f32 v{SUM}, v{SUM}, v{u}")
            a(f"v_add_f32 v{SUM+1}, v{SUM+1}, v{u+1}")
            a(f"v_fmac_f32 v{SQ}, v{u}, v{u}")
            a(f"v_fmac_f32 v{SQ+1}, v{u+1}, v{u+1}")
    stamp(a, 3)
    a(f"v_add_f32 v{SUM}, v{SUM}, v{SUM+1}")
    a(f"v_add_f32 v{SUM+1}, v{SQ}, v{SQ+1}")
    half_sum(a, SUM, U); half_sum(a, SUM+1, U)
    a(f"""
    s_lshl_b32 s10, s9, 8
    s_add_u32 s10, s10, {STATS + 2048}
    v_lshl_add_u32 v5, v3, 3, s10
    ds_write_b64 v5, {vr(SUM,2)}
    s_waitcnt lgkmcnt(0)
    s_barrier
    """)
    stamp_flush(a, 0, 8)
    a.label("L_g1a_exit")
    a("s_endpgm")
    a.label("L_g1a_compute")
    VX, VW, RS, FX, FW, ACC = 8, 28, 18, 32, 56, 80
    CSA, ONES = 144, 160
    XW, XM, T = 56, 64, 20
    a(f"""
    s_lshr_b32 s8, s7, 1
    s_and_b32 s9, s7, 1
    v_and_b32 v3, 31, v2
    v_lshrrev_b32 v4, 5, v2
    s_lshl_b32 s13, s5, 7
    s_lshl_b32 s14, s8, 6
    s_add_u32 s12, s13, s14
    v_lshrrev_b32 v5, 1, v3
    v_and_b32 v5, 7, v5
    v_add_u32 v6, s14, v3
    v_lshlrev_b32 v6, 7, v6
    """)
    for ks in range(4):
        a(f"v_add_u32 v7, {2*ks}, v4")
        a(f"v_xor_b32 v7, v7, v5")
        a(f"v_lshl_add_u32 v{VX+ks}, v7, 4, v6")
        a(f"v_add_u32 v{VX+4+ks}, 65536, v{VX+ks}")
    a(f"""
    v_lshrrev_b32 v5, 4, v2
    v_and_b32 v5, 1, v5
    v_and_b32 v6, 3, v2
    v_lshl_add_u32 v5, v5, 2, v6
    v_lshlrev_b32 v5, 2, v5
    v_bfe_u32 v6, v2, 2, 2
    v_lshl_add_u32 v7, v4, 3, v6
    v_lshlrev_b32 v7, 8, v7
    v_add_u32 v7, 16384, v7
    s_mul_i32 s10, s9, 120
    v_lshl_add_u32 v6, v6, 6, s10
    """)
    for nt, tab in enumerate((0x76453120, 0x8E79DBCA)):
        a(f"""
        s_mov_b32 s11, 0x{tab:08x}
        v_bfe_u32 v{VW+nt}, s11, v5, 4
        v_lshl_add_u32 v{VW+nt}, v{VW+nt}, 3, v6
        v_and_b32 v{VW+nt}, 255, v{VW+nt}
        v_add_u32 v{VW+nt}, v{VW+nt}, v7
        v_add_u32 v{VW+2+nt}, 65536, v{VW+nt}
        """)
    a(f"""
    v_add_u32 v17, s14, v3
    v_lshlrev_b32 v17, 3, v17
    v_add_u32 v17, {STATS + 2048}, v17
    s_lshl_b32 s10, s9, 8
    s_add_u32 s10, s10, {STATS}
    v_lshl_add_u32 v16, v3, 2, s10
    s_lshl_b32 s11, s8, 7
    s_add_u32 s10, s10, s11
    v_lshl_add_u32 v5, v4, 4, s10
    v_mov_b32 v{ONES}, 0x3f803f80
    v_mov_b32 v{ONES+1}, 0x3f803f80
    v_mov_b32 v{ONES+2}, 0x3f803f80
    v_mov_b32 v{ONES+3}, 0x3f803f80
    """)
    g13.g1_epilogue_setup(a)
    NB = 3
    def reads(s):
        c, ks = s // 4, s % 4
        buf = s % NB
        st = c % RING
        sset, sin = st // 2, st % 2
        for mt in range(2):
            a(f"ds_read_b128 {vr(FX + (buf*2+mt)*4, 4)}, v{VX + sset*4 + ks} offset:{sin*STAGE + mt*4096}")
        for nt in range(2):
            for i in range(2):
                a(f"ds_read_b64_tr_b16 {vr(FW + (buf*2+nt)*4 + 2*i, 2)}, v{VW + sset*2 + nt} offset:{sin*STAGE + (16*ks+4*i)*256}")
    srd(a, 52, P_WS, WS_WT1, WT1_BYTES)
    a(f"""
    s_mul_i32 s69, s6, {41*4096}
    s_lshl_b32 s10, s9, 11
    s_add_u32 s70, s69, s10
    s_lshl_b32 s10, s8, 10
    s_add_u32 s69, s70, s10
    v_lshlrev_b32 v6, 4, v2
    """)
    a("s_barrier")
    stamp(a, 2)
    reads(0); reads(1)
    NS = 4*NCH
    for s in range(NS):
        buf = s % NB
        a(f"s_waitcnt lgkmcnt({6 if s + 1 < NS else 0})")
        if s % 4 == 2 and s // 4 + 1 < NCH:
            a("s_barrier")
            if s // 4 + 1 == NCH // 2: stamp(a, 4)
        first = True
        for nt in range(2):
            for mt in range(2):
                acc = ACC + (nt*2+mt)*16
                cin = "0" if s == 0 else vr(acc, 16)
                a(f"v_mfma_f32_32x32x16_bf16 {vr(acc,16)}, {vr(FW + (buf*2+nt)*4, 4)}, {vr(FX + (buf*2+mt)*4, 4)}, {cin}")
                if first and s + 2 < NS:
                    reads(s + 2)
                first = False
        l1, l2 = a.newlabel("cs"), a.newlabel("cs")
        cin = "0" if s == 0 else vr(CSA, 16)
        a("s_cmp_eq_u32 s8, 1")
        a(f"s_cbranch_scc1 {l1}")
        for nt in range(2):
            a(f"v_mfma_f32_32x32x16_bf16 {vr(CSA,16)}, {vr(FW + (buf*2+nt)*4, 4)}, {vr(ONES,4)}, {cin}")
            a(f"s_cmp_lg_u32 s5, {s % 16}")
            a(f"s_cbranch_scc1 {l2}")
            a(f"s_add_u32 s10, s69, {s*4096}")
            a(f"buffer_store_dwordx4 {vr(FW + (buf*2+nt)*4, 4)}, v6, s[52:55], s10 offen{os.environ.get('W1SC', ' sc1')}")
            if nt == 0:
                a(f"s_branch {l2}")
                a.label(l1)
        a.label(l2)
    stamp(a, 3)
    a("s_nop 15")
    a("s_mov_b32 exec_lo, 1")
    a("s_mov_b32 exec_hi, 1")
    for aa in range(4):
        a(f"ds_write_b128 v5, {vr(CSA+4*aa,4)} offset:{aa*32}")
    a("s_mov_b64 exec, -1")
    a("s_waitcnt lgkmcnt(0)")
    a("s_barrier")
    for nt in range(2):
        a(f"ds_read_b32 v{FX+4*nt}, v16 offset:{nt*128}")
    a(f"ds_read_b64 {vr(FX+8,2)}, v17")
    a(f"ds_read_b64 {vr(FX+10,2)}, v17 offset:256")
    a("s_waitcnt lgkmcnt(2)")
    for nt in range(2):
        c = FX + 4*nt
        x = XW + 4*nt
        a(f"""
        v_and_b32 v{c+1}, 0xffff0000, v{c}
        v_sub_f32 v{c}, v{c}, v{c+1}
        v_cvt_pk_bf16_f32 v{x+1}, v{c}, 0
        v_lshrrev_b32 v{c+2}, 16, v{c+1}
        v_or_b32 v{x}, v{c+1}, v{c+2}
        v_mov_b32 v{x+2}, 0
        v_mov_b32 v{x+3}, 0
        """)
    a(f"""
    s_mov_b64 exec, s[66:67]
    v_mov_b32 v{XW}, 0
    v_mov_b32 v{XW+1}, 0
    v_mov_b32 v{XW+4}, 0
    v_mov_b32 v{XW+5}, 0
    s_mov_b64 exec, -1
    s_mov_b32 s10, {f32(1.0/640)}
    s_waitcnt lgkmcnt(0)
    """)
    for mt in range(2):
        s = FX + 8 + 2*mt
        t = FX + 12
        x = XM + 4*mt
        a(f"""
        v_mul_f32 v{s}, s10, v{s}
        v_mul_f32 v{s+1}, s10, v{s+1}
        v_fma_f32 v{s+1}, -v{s}, v{s}, v{s+1}
        v_max_f32 v{s+1}, 0, v{s+1}
        v_add_f32 v{s+1}, {f32(1e-5)}, v{s+1}
        v_rsq_f32 v{RS+mt}, v{s+1}
        v_xor_b32 v{s}, 0x80000000, v{s}
        v_and_b32 v{t}, 0xffff0000, v{s}
        v_sub_f32 v{s}, v{s}, v{t}
        v_lshrrev_b32 v{x+1}, 16, v{t}
        v_cvt_pk_bf16_f32 v{t+1}, 0, v{s}
        v_or_b32 v{x}, v{x+1}, v{t+1}
        v_mov_b32 v{x+3}, v{x+1}
        v_mov_b32 v{x+2}, v{x}
        """)
    a("s_nop 1")
    for nt in range(2):
        for mt in range(2):
            acc = ACC + (nt*2+mt)*16
            a(f"v_mfma_f32_32x32x16_bf16 {vr(acc,16)}, {vr(XW+4*nt,4)}, {vr(XM+4*mt,4)}, {vr(acc,16)}")
    a(f"""
    s_or_b32 s10, s5, s8
    s_cmp_lg_u32 s10, 0
    s_cbranch_scc1 L_g1a_noxk
    s_add_u32 s10, s70, {40*4096}
    buffer_store_dwordx4 {vr(XW,4)}, v6, s[52:55], s10 offen
    buffer_store_dwordx4 {vr(XW+4,4)}, v6, s[52:55], s10 offen offset:1024
    """)
    a.label("L_g1a_noxk")
    a("s_nop 7")
    g13.g1_epilogue(a, os.environ.get('Q1SC', ''))
    stamp_flush(a, 0, 8)
    a("s_endpgm")
    return [("g1a_kernel", 164)]
```

```python
from asmlib import *
from layout import *

SRC, DST = 36, 68
SP, SP4 = 88, 89
SFLAG, SFLAG2, SQ_, SXK = 62, 63, 90, 91
LD, OUT = 108, 124
import os
PSTF = os.environ.get('PSTF', '')
PVAR = int(os.environ.get('PVAR', 0))

def setup(a, L, VSRC, VDST, VXK, t0):
    R, A, B, C, D, G, L16 = t0, t0+1, t0+2, t0+3, t0+4, t0+5, t0+6
    ST, SB, S1, S2, SSEG = 92, 93, 94, 95, 12
    def divmod_s(src, d, q, r, tmp):
        m = (1 << 20) // d + 1
        a(f"s_mul_i32 s{q}, s{src}, {m}")
        a(f"s_lshr_b32 s{q}, s{q}, 20")
        a(f"s_mul_i32 s{tmp}, s{q}, {d}")
        a(f"s_sub_u32 s{r}, s{src}, s{tmp}")
    a(f"""
    s_mov_b32 s{SFLAG2}, 0
    s_cmp_eq_u32 s{SFLAG}, 0
    s_cbranch_scc1 {L}_done
    s_mov_b32 s{SFLAG}, 0
    s_cmp_ge_u32 s7, 8
    s_cbranch_scc1 {L}_done
    s_cmp_eq_u32 s7, 5
    s_cbranch_scc1 {L}_done
    s_cmp_ge_u32 s2, 192
    s_cbranch_scc1 {L}_hi
    s_add_u32 s{ST}, s2, 120
    s_mov_b32 s{SB}, s7
    s_cmp_lt_u32 s7, 5
    s_cbranch_scc1 {L}_go
    s_lshl_b32 s{S2}, s2, 1
    s_add_u32 s{S2}, s{S2}, s7
    s_sub_u32 s{S2}, s{S2}, 6
    s_branch {L}_beta
    """)
    a.label(f"{L}_hi")
    a(f"""
    s_cmp_ge_u32 s7, 5
    s_cbranch_scc1 {L}_done
    s_sub_u32 s{S2}, s2, 192
    s_mul_i32 s{S2}, s{S2}, 5
    s_add_u32 s{S2}, s{S2}, s7
    s_add_u32 s{S2}, s{S2}, 384
    """)
    a.label(f"{L}_beta")
    a(f"""
    s_cmp_ge_u32 s{S2}, 680
    s_cbranch_scc1 {L}_done
    s_cmp_ge_u32 s{S2}, 200
    s_cbranch_scc1 {L}_bwd
    """)
    divmod_s(S2, 5, ST, SB, S1)
    a(f"""
    s_add_u32 s{ST}, s{ST}, 312
    s_branch {L}_go
    """)
    a.label(f"{L}_bwd")
    a(f"s_sub_u32 s{S2}, s{S2}, 200")
    divmod_s(S2, 6, ST, SB, S1)
    a(f"s_add_u32 s{ST}, s{ST}, 352")
    a.label(f"{L}_go")
    a(f"""
    s_mov_b32 s{SFLAG}, 1
    v_and_b32 v{L16}, 15, v2
    v_lshrrev_b32 v{G}, 4, v2
    s_cmp_ge_u32 s{ST}, 352
    s_cbranch_scc1 {L}_wd
    s_cmp_ge_u32 s{ST}, 312
    s_cbranch_scc1 {L}_wo
    s_mov_b32 s{SFLAG}, 2
    s_cmp_eq_u32 s{SB}, 0
    s_cselect_b32 s{SFLAG2}, 1, 0
    """)
    a.label(f"{L}_wgu")
    a(f"""
    s_cmp_ge_u32 s{ST}, 216
    s_cselect_b32 s{SRC}, s{P_WU}, s{P_WG}
    s_cselect_b32 s{SRC+1}, s{P_WU+1}, s{P_WG+1}
    s_cselect_b32 s14, 256, 0
    s_movk_i32 s{S1}, 120
    s_cselect_b32 s{S1}, 216, s{S1}
    s_sub_u32 s13, s{ST}, s{S1}
    s_mov_b32 s{SRC+2}, {640*3072}
    s_mov_b32 s{SRC+3}, 0x00020000
    """)
    srd(a, DST, P_WS, WS_WT3, WT3_BYTES)
    divmod_s(13, 24, SQ_, SSEG, S1)
    a(f"""
    s_lshl_b32 s{S1}, s{SSEG}, 4
    v_add_u32 v{R}, s{S1}, v{L16}
    v_lshrrev_b32 v{A}, 2, v{R}
    v_mul_u32_u24 v{B}, 43691, v{A}
    v_lshrrev_b32 v{B}, 18, v{B}
    v_mul_u32_u24 v{C}, 6, v{B}
    v_sub_u32 v{C}, v{A}, v{C}
    v_mul_u32_u24 v{B}, {41*6144}, v{B}
    v_lshl_add_u32 v{B}, v{C}, 10, v{B}
    v_and_b32 v{C}, 1, v{R}
    v_lshl_add_u32 v{B}, v{C}, 7, v{B}
    v_bfe_u32 v{C}, v{R}, 1, 1
    v_lshl_add_u32 v{B}, v{C}, 6, v{B}
    v_add_u32 v{VXK}, s14, v{B}
    s_movk_i32 s{SP}, 3072
    s_movk_i32 s{S2}, 6144
    """)
    a.label(f"{L}_c13")
    a(f"""
    s_lshl_b32 s{SP4}, s{SP}, 2
    s_mul_i32 s{SXK}, s{S2}, 40
    v_lshrrev_b32 v{A}, 1, v{G}
    v_mul_lo_u32 v{A}, v{A}, s{S2}
    v_add_u32 v{VDST}, v{A}, v{VXK}
    v_and_b32 v{A}, 1, v{G}
    v_lshl_add_u32 v{VDST}, v{A}, 9, v{VDST}
    s_mul_i32 s{S1}, s{SQ_}, 5
    s_add_u32 s{S1}, s{S1}, s{SB}
    s_mul_i32 s13, s{S1}, s{S2}
    s_lshl_b32 s13, s13, 1
    v_add_u32 v{VDST}, s13, v{VDST}
    s_lshl_b32 s13, s{SP}, 3
    v_mul_lo_u32 v{A}, v{G}, s13
    v_lshl_add_u32 v{A}, v{R}, 3, v{A}
    s_mul_i32 s13, s{S1}, s{SP}
    s_lshl_b32 s13, s13, 5
    v_add_u32 v{VSRC}, s13, v{A}
    s_branch {L}_done
    """)
    def dst24(nks):
        a(f"""
        s_lshl_b32 s{S1}, s{SSEG}, 4
        v_add_u32 v{R}, s{S1}, v{L16}
        v_lshrrev_b32 v{A}, 2, v{R}
        v_mul_u32_u24 v{B}, 52429, v{A}
        v_lshrrev_b32 v{B}, 18, v{B}
        v_mul_u32_u24 v{C}, 5, v{B}
        v_sub_u32 v{C}, v{A}, v{C}
        v_mul_u32_u24 v{B}, {nks*5120}, v{B}
        v_lshl_add_u32 v{B}, v{C}, 10, v{B}
        v_and_b32 v{C}, 3, v{R}
        v_lshl_add_u32 v{B}, v{C}, 6, v{B}
        v_lshl_add_u32 v{VDST}, v{G}, 8, v{B}
        s_movk_i32 s{SP}, 1280
        """)
    a.label(f"{L}_wo")
    srd(a, SRC, P_WO, 0, 640*1280)
    srd(a, DST, P_WS, WS_WT2, WT2_BYTES)
    a(f"s_sub_u32 s13, s{ST}, 312")
    divmod_s(13, 10, SQ_, SSEG, S1)
    dst24(20)
    a(f"""
    s_cmp_eq_u32 s{SB}, 4
    s_cbranch_scc1 {L}_wot
    s_movk_i32 s{SP4}, {8*1280}
    v_lshrrev_b32 v{A}, 1, v{G}
    v_mul_u32_u24 v{A}, {20*1280}, v{A}
    v_and_b32 v{B}, 1, v{G}
    v_mul_u32_u24 v{B}, {4*1280}, v{B}
    v_add_u32 v{A}, v{A}, v{B}
    v_lshl_add_u32 v{A}, v{R}, 3, v{A}
    s_lshl_b32 s{S1}, s{SQ_}, 2
    s_add_u32 s{S1}, s{S1}, s{SB}
    s_mul_i32 s13, s{S1}, {40*1280}
    v_add_u32 v{VSRC}, s13, v{A}
    s_mul_i32 s13, s{S1}, 5120
    v_add_u32 v{VDST}, s13, v{VDST}
    s_branch {L}_done
    """)
    a.label(f"{L}_wot")
    a(f"""
    s_movk_i32 s{SP4}, {20*1280}
    v_mul_u32_u24 v{A}, {40*1280}, v{G}
    v_lshl_add_u32 v{A}, v{R}, 3, v{A}
    s_mul_i32 s13, s{SQ_}, {160*1280}
    s_add_u32 s13, s13, {16*1280}
    v_add_u32 v{VSRC}, s13, v{A}
    s_add_u32 s13, s{SQ_}, 16
    s_mul_i32 s13, s13, 5120
    v_add_u32 v{VDST}, s13, v{VDST}
    s_branch {L}_done
    """)
    a.label(f"{L}_wd")
    srd(a, SRC, P_WD, 0, 1536*1280)
    srd(a, DST, P_WS, WS_WT4, WT4_BYTES)
    a(f"s_sub_u32 s13, s{ST}, 352")
    divmod_s(13, 10, SQ_, SSEG, S1)
    dst24(48)
    a(f"""
    s_movk_i32 s{SP4}, {4*1280}
    v_mul_u32_u24 v{A}, {8*1280}, v{G}
    v_lshl_add_u32 v{A}, v{R}, 3, v{A}
    s_mul_i32 s{S1}, s{SQ_}, 6
    s_add_u32 s{S1}, s{S1}, s{SB}
    s_mul_i32 s13, s{S1}, {32*1280}
    v_add_u32 v{VSRC}, s13, v{A}
    s_mul_i32 s13, s{S1}, 5120
    v_add_u32 v{VDST}, s13, v{VDST}
    """)
    a.label(f"{L}_done")

def issue_loads(a, L, VSRC):
    a(f"""
    s_cmp_eq_u32 s{SFLAG}, 0
    s_cbranch_scc1 {L}_nold
    s_mov_b32 s12, 0
    """)
    for e in range(8):
        if e == 4:
            a(f"s_mov_b32 s12, s{SP4}")
        elif e:
            a(f"s_add_u32 s12, s12, s{SP}")
        if PVAR != 2: a(f"buffer_load_dwordx2 {vr(LD+2*e,2)}, v{VSRC}, s[{SRC}:{SRC+3}], s12 offen")
    a.label(f"{L}_nold")

def stage1(a, L, VDST, CS, PART, tmp):
    a(f"""
    s_cmp_eq_u32 s{SFLAG}, 0
    s_cbranch_scc1 {L}_s1done
    s_mov_b32 s12, 0x05040100
    s_mov_b32 s13, 0x07060302
    s_mov_b32 s14, 0x3f803f80
    s_cmp_eq_u32 s{SFLAG}, 1
    """)
    for c in range(4):
        sel = "s12" if c % 2 == 0 else "s13"
        a(f"v_mov_b32 v{CS+c}, 0")
        for r in range(4):
            lo = LD + 4*r + c//2
            a(f"v_perm_b32 v{OUT+r}, v{lo+2}, v{lo}, {sel}")
        if PVAR != 1: a(f"buffer_store_dwordx4 {vr(OUT,4)}, v{VDST}, s[{DST}:{DST+3}], 0 offen offset:{c*16}{PSTF}")
        lb = a.newlabel("nodot")
        a(f"s_cbranch_scc1 {lb}")
        for r in range(4):
            a(f"v_dot2_f32_bf16 v{CS+c}, v{OUT+r}, s14, v{CS+c}")
        a.label(lb)
        a("s_nop 1")
    a(f"""
    s_cmp_eq_u32 s{SFLAG}, 1
    s_mov_b32 s{SFLAG}, 0
    s_cbranch_scc1 {L}_s1done
    s_nop 0
    """)
    for sw in ("v_permlane16_swap_b32", "v_permlane32_swap_b32"):
        for c in range(4):
            a(f"v_mov_b32 v{OUT+c}, v{CS+c}")
        a("s_nop 1")
        for c in range(4):
            a(f"{sw} v{CS+c}, v{OUT+c}")
        a("s_nop 1")
        for c in range(4):
            a(f"v_add_f32 v{CS+c}, v{CS+c}, v{OUT+c}")
    a(f"""
    s_lshl_b32 s12, s7, 8
    s_add_u32 s12, s12, {PART}
    v_and_b32 v{tmp}, 15, v2
    v_lshl_add_u32 v{tmp}, v{tmp}, 4, s12
    ds_write_b128 v{tmp}, {vr(CS,4)}
    s_waitcnt lgkmcnt(0)
    """)
    a.label(f"{L}_s1done")

def stage2(a, L, VXK, CS, PART, tmp):
    a(f"""
    s_cmp_eq_u32 s{SFLAG2}, 0
    s_cbranch_scc1 {L}_s2done
    s_mov_b32 s{SFLAG2}, 0
    s_lshl_b32 s12, s7, 8
    s_add_u32 s12, s12, {PART}
    v_and_b32 v{tmp}, 15, v2
    v_lshl_add_u32 v{tmp}, v{tmp}, 4, s12
    """)
    for b in range(1, 5):
        a(f"ds_read_b128 {vr(LD+4*(b-1),4)}, v{tmp} offset:{b*256}")
    a("s_waitcnt lgkmcnt(0)")
    for b in range(4):
        for c in range(4):
            a(f"v_add_f32 v{CS+c}, v{CS+c}, v{LD+4*b+c}")
    for c in range(4):
        a(f"""
        v_and_b32 v{OUT}, 0xffff0000, v{CS+c}
        v_sub_f32 v{CS+c}, v{CS+c}, v{OUT}
        v_cvt_pk_bf16_f32 v{LD+2*c+1}, v{CS+c}, 0
        v_lshrrev_b32 v{OUT+1}, 16, v{OUT}
        v_or_b32 v{LD+2*c}, v{OUT}, v{OUT+1}
        """)
    a(f"""
    s_lshr_b32 s12, s{SQ_}, 1
    s_lshl_b32 s12, s12, 9
    s_and_b32 s13, s{SQ_}, 1
    s_lshl_b32 s13, s13, 3
    s_add_u32 s12, s12, s13
    s_add_u32 s12, s12, s{SXK}
    s_mov_b64 exec, 0xffff
    """)
    for c in range(4):
        a(f"buffer_store_dwordx2 {vr(LD+2*c,2)}, v{VXK}, s[{DST}:{DST+3}], s12 offen offset:{16*c}")
    a("s_mov_b64 exec, -1")
    a.label(f"{L}_s2done")
```

```python
from asmlib import *
from layout import *
import prep

HSTG = 24576
STG = 2 * HSTG
NSTG = 3
FLAG = NSTG * STG
PART = FLAG + 64
LDS_BYTES = PART + 4096
import os
WB = 0
PRIO = int(os.environ.get('APRIO', 1))

def gen_att(a, NZ=48):
    kernel_header(a, "atta_kernel")
    a(f"s_mov_b32 s62, {0 if prep.PVAR == 3 else 1}")
    a("s_mov_b32 s96, 0")
    a("s_branch L_att_entry")
    kernel_header(a, "attb_kernel")
    a("s_mov_b32 s62, 0")
    a("s_movk_i32 s96, 12288")
    a.label("L_att_entry")
    a("s_cmp_ge_u32 s2, 256")
    a("s_cbranch_scc1 L_att_exit")
    load_ptrs(a)
    VDMA, VKM0, VKT0, VV0, VKM, VKT, VV = 5, 6, 7, 8, 10, 11, 12
    QM, QT = 16, 20
    KM, KT = 24, 32
    VF = 36
    P = 44
    O = 52
    S = 68
    T = 100
    a(f"""
    s_and_b32 s3, s2, 7
    s_lshl_b32 s5, s3, 2
    s_bfe_u32 s4, s2, 0x20003
    s_add_u32 s5, s5, s4
    s_lshr_b32 s6, s2, 5
    v_lshrrev_b32 v1, 6, v0
    v_and_b32 v2, 63, v0
    v_and_b32 v3, 31, v0
    v_readfirstlane_b32 s7, v1
    v_lshrrev_b32 v4, 5, v2
    v_lshlrev_b32 v14, 2, v4
    v_xor_b32 v14, v14, v3
    v_lshlrev_b32 v14, 4, v14
    v_lshl_add_u32 v{VKM0}, v4, 9, v14
    v_xor_b32 v14, 8, v3
    v_lshlrev_b32 v14, 4, v14
    v_lshl_add_u32 v14, v4, 3, v14
    v_add_u32 v{VKT0}, 1024, v14
    v_bfe_u32 v15, v2, 4, 1
    v_and_b32 v{T}, 3, v2
    v_lshlrev_b32 v{T+1}, 1, v15
    v_sub_u32 v{T+1}, 3, v{T+1}
    v_min_u32 v{T}, v{T}, v{T+1}
    v_lshl_add_u32 v{T}, v15, 2, v{T}
    v_lshrrev_b32 v{T+1}, 1, v{T}
    v_and_b32 v{T}, 1, v{T}
    v_bfe_u32 v14, v2, 2, 2
    v_lshl_add_u32 v14, v4, 2, v14
    v_lshlrev_b32 v{T+2}, 2, v{T+1}
    v_xor_b32 v14, v14, v{T+2}
    v_lshlrev_b32 v14, 4, v14
    v_lshl_add_u32 v14, v{T+1}, 9, v14
    v_lshl_add_u32 v14, v{T}, 3, v14
    v_add_u32 v{VV0}, 12288, v14
    v_xor_b32 v{VV0+1}, 128, v{VV0}
    s_and_b32 s8, s7, 7
    s_lshr_b32 s9, s7, 3
    s_mul_i32 s59, s9, {HSTG}
    s_bfe_u32 s10, s7, 0x10002
    s_lshl_b32 s10, s10, 5
    s_add_u32 s10, s10, 32
    s_add_u32 s10, s10, s5
    s_mul_i32 s10, s10, 98304
    s_mul_i32 s11, s9, 49152
    s_add_u32 s10, s10, s11
    s_and_b32 s11, s7, 3
    s_mul_i32 s11, s11, 3072
    s_add_u32 s10, s10, s11
    v_lshl_add_u32 v{VDMA}, v2, 4, s10
    s_mul_i32 s53, s7, 3072
    s_lshl_b32 s10, s6, 3
    s_add_u32 s10, s10, s8
    s_lshl_b32 s54, s10, 5
    s_mul_i32 s10, s10, 1536
    s_mul_i32 s11, s5, 98304
    s_add_u32 s55, s10, s11
    s_mov_b32 s64, -1
    s_mov_b32 s65, 0
    s_mov_b32 s66, 0
    s_mov_b32 s67, -1
    s_mov_b32 s56, 0
    v_mov_b32 v{T}, 0
    v_mov_b32 v{T+1}, {FLAG}
    ds_write_b32 v{T+1}, v{T}
    s_waitcnt lgkmcnt(0)
    """)
    stamp(a, 0); stamp_rt(a, 1)
    srd(a, 40, P_WS, WS_QKV, 96*98304)
    srd(a, 48, P_WS, WS_O, 2048*1280)
    srd(a, 44, P_WS, WS_FLAGS, FLAGS_BYTES)
    a(f"""
    s_cmp_ge_u32 s2, {NZ}
    s_cbranch_scc1 L_att_nofl
    s_cmp_lg_u32 s7, 15
    s_cbranch_scc1 L_att_nofl
    s_lshl_b32 s10, s2, 8
    s_add_u32 s10, s10, s96
    v_lshlrev_b32 v14, 2, v2
    buffer_store_dword v{T}, v14, s[44:47], s10 offen
    """)
    a.label("L_att_nofl")
    def dma(c):
        a(f"s_mov_b32 s57, {c*12288}")
        a(f"s_add_u32 m0, s53, {(c % NSTG)*STG}")
        a("s_nop 0")
        for i in range(3):
            a(f"buffer_load_dwordx4 v{VDMA}, s[40:43], s57 offen offset:{i*1024} lds")
    a(f"""
    buffer_load_dwordx4 {vr(QM,4)}, v{VKM0}, s[40:43], s55 offen
    buffer_load_dwordx2 {vr(QT,2)}, v{VKT0}, s[40:43], s55 offen
    """)
    a.label("L_att_restart")
    a("s_bitcmp1_b32 s7, 1")
    a("s_cbranch_scc1 L_att_late")
    dma(0)
    a.label("L_att_late")
    prep.setup(a, "L_attp", 0, 22, 23, S)
    for r in range(16):
        a(f"v_mov_b32 v{O+r}, 0")
    for r in range(4):
        a(f"v_mov_b32 v{P+4+r}, 0")
        a(f"v_mov_b32 v{VF+4+r}, 0")
    a(f"v_mov_b32 v{S+16+14}, 0")
    a(f"v_mov_b32 v{S+16+15}, 0")
    a(f"""
    v_add_u32 v{VKM}, s59, v{VKM0}
    v_add_u32 v{VKT}, s59, v{VKT0}
    s_mov_b32 s52, 0
    s_mov_b32 s58, s59
    s_mov_b32 s60, 12288
    s_add_u32 s61, s53, {STG}
    s_waitcnt vmcnt(0)
    """)
    stamp(a, 5)
    a(f"""
    s_barrier
    s_bitcmp0_b32 s7, 1
    s_cbranch_scc1 L_att_early
    """)
    dma(0)
    a.label("L_att_early")
    a(f"""
    s_cmp_lg_u32 s56, 0
    s_cbranch_scc1 L_att_have_m
    ds_read_b128 {vr(KM,4)}, v{VKM0}
    ds_read_b64 {vr(KT,2)}, v{VKT0}
    s_mov_b64 exec, s[66:67]
    v_mov_b32 v{QT}, 0
    v_mov_b32 v{QT+1}, 0
    s_mov_b64 exec, -1
    s_waitcnt lgkmcnt(0)
    s_nop 1
    v_mfma_f32_32x32x16_bf16 {vr(S,16)}, {vr(KM,4)}, {vr(QM,4)}, 0
    v_mfma_f32_32x32x8_bf16 {vr(S,16)}, {vr(KT,2)}, {vr(QT,2)}, {vr(S,16)}
    s_nop 15
    v_max3_f32 v{T}, v{S}, v{S+1}, v{S+2}
    """)
    for r in range(3, 15, 2):
        a(f"v_max3_f32 v{T}, v{T}, v{S+r}, v{S+r+1}")
    a(f"v_max_f32 v{T}, v{T}, v{S+15}")
    a.label("L_att_set_m")
    a(f"""
    v_mov_b32 v{T+1}, v{T}
    s_nop 1
    v_permlane32_swap_b32 v{T}, v{T+1}
    s_nop 1
    v_max_f32 v{T}, v{T}, v{T+1}
    v_xor_b32 v{T}, 0x80000000, v{T}
    v_and_b32 v{T+1}, 0xffff0000, v{T}
    v_sub_f32 v{T}, v{T}, v{T+1}
    v_and_b32 v{T+2}, 0xffff0000, v{T}
    v_sub_f32 v{T}, v{T}, v{T+2}
    v_lshrrev_b32 v{T+1}, 16, v{T+1}
    s_mov_b64 exec, s[66:67]
    v_or_b32 v{QT}, v{T+1}, v{T+2}
    v_lshrrev_b32 v{QT+1}, 16, v{T}
    s_mov_b64 exec, -1
    s_cmp_lg_u32 s56, 0
    s_cbranch_scc1 L_att_restart
    """)
    a.label("L_att_have_m")
    a(f"""
    ds_read_b128 {vr(KM,4)}, v{VKM}
    ds_read_b64 {vr(KT,2)}, v{VKT}
    ds_read_b128 {vr(KM+4,4)}, v{VKM} offset:1536
    ds_read_b64 {vr(KT+2,2)}, v{VKT} offset:1536
    s_waitcnt lgkmcnt(2)
    v_mfma_f32_32x32x16_bf16 {vr(S,16)}, {vr(KM,4)}, {vr(QM,4)}, 0
    v_mfma_f32_32x32x8_bf16 {vr(S,16)}, {vr(KT,2)}, {vr(QT,2)}, {vr(S,16)}
    s_nop 15
    """)
    stamp(a, 2)
    a.raw(".p2align 6")
    a.label("L_att_loop")
    for t in range(8):
        Sc = S + (t & 1)*16
        Sn = S + ((t+1) & 1)*16
        kb_use = (t+1) & 1
        kb_ld = t & 1
        e = lambda i: a(f"v_exp_f32 v{Sc+i}, v{Sc+i}")
        c = lambda i: a(f"v_cvt_pk_bf16_f32 v{P+i}, v{Sc+2*i}, v{Sc+2*i+1}")
        if PRIO and t % 2 == 0 and t != 6:
            a(f"s_setprio {2 - t//2}")
        e(0)
        a(f"v_cvt_pk_bf16_f32 v{P+7}, v{Sn+14}, v{Sn+15}")
        if t == 0:
            a(f"v_add_u32 v{VV}, s58, v{VV0}")
            a(f"v_add_u32 v{VV+1}, s58, v{VV0+1}")
        e(1)
        a("s_waitcnt lgkmcnt(2)")
        a(f"v_mfma_f32_32x32x16_bf16 {vr(O,16)}, {vr(VF+4,4)}, {vr(P+4,4)}, {vr(O,16)}")
        if t == 6:
            lab = a.newlabel("nodma")
            a(f"""
            s_add_u32 s58, s58, {STG}
            s_cmp_ge_u32 s58, {NSTG*STG}
            s_cselect_b32 s58, s59, s58
            v_add_u32 v{VKM}, s58, v{VKM0}
            v_add_u32 v{VKT}, s58, v{VKT0}
            s_cmp_eq_u32 s52, 0
            s_cselect_b32 s12, s62, 0
            s_cmp_eq_u32 s52, 3
            s_cselect_b32 s12, 1, s12
            s_cmp_lg_u32 s12, 0
            s_waitcnt vmcnt(8)
            s_cbranch_scc1 {lab}
            s_waitcnt vmcnt(0)
            """)
            a.label(lab)
            a(f"""
            s_barrier
            s_add_u32 s60, s60, 12288
            s_add_u32 s61, s61, {STG}
            s_cmp_ge_u32 s61, {NSTG*STG}
            s_cselect_b32 s61, s53, s61
            """)
            lab3 = a.newlabel("nos2")
            a(f"s_cmp_lg_u32 s52, 2")
            a(f"s_cbranch_scc1 {lab3}")
            prep.stage2(a, "L_attp", 23, T+4, PART, 1)
            a.label(lab3)
            lab4 = a.newlabel("nos1")
            a(f"s_cmp_lg_u32 s52, 1")
            a(f"s_cbranch_scc1 {lab4}")
            prep.stage1(a, "L_attp", 22, T+4, PART, 1)
            a.label(lab4)
            lab2 = a.newlabel("nopf")
            a(f"""
            s_cmp_lg_u32 s52, 2
            s_cbranch_scc1 {lab2}
            s_lshr_b32 s12, s2, 3
            s_lshl_b32 s12, s12, 4
            s_add_u32 s12, s12, s7
            s_lshr_b32 s13, s3, 2
            """)
            if PF & 1:
                l2_prefetch(a, 44, WS_WT2, WT2_BYTES//2, 9, 12, T+4, T+5, 14, 13)
                l2_prefetch(a, 44, WS_WT3, WT3_BYTES//2, 9, 12, T+4, T+5, 14, 13)
            if PF & 8:
                l2_prefetch(a, 44, WS_WT4, WT4_BYTES//2, 9, 12, T+4, T+5, 14, 13)
            a.label(lab2)
            if PRIO: a("s_setprio 3")
        if t == 0 and WB:
            lab = a.newlabel("nowb")
            a(f"""
            s_cmp_lg_u32 s52, 3
            s_cbranch_scc1 {lab}
            s_cmp_lg_u32 s7, 15
            s_cbranch_scc1 {lab}
            s_cmp_ge_u32 s2, {WB}
            s_cbranch_scc1 {lab}
            buffer_wbl2 sc1
            """)
            a.label(lab)
        if t == 2:
            lab = a.newlabel("nobar")
            a(f"""
            s_cmp_lg_u32 s52, 0
            s_cbranch_scc1 {lab}
            s_waitcnt vmcnt(2)
            s_barrier
            """)
            a.label(lab)
        if t == 3:
            lab = a.newlabel("nold")
            a(f"s_cmp_lg_u32 s52, 0")
            a(f"s_cbranch_scc1 {lab}")
            prep.issue_loads(a, "L_attp", 0)
            a.label(lab)
        if t < 3:
            lab = a.newlabel("nodma")
            a(f"""
            s_cmp_eq_u32 s52, 3
            s_cbranch_scc1 {lab}
            s_mov_b32 m0, s61
            s_nop 0
            buffer_load_dwordx4 v{VDMA}, s[40:43], s60 offen offset:{t*1024} lds
            """)
            a.label(lab)
        for j in range(2):
            for i in range(2):
                a(f"ds_read_b64_tr_b16 {vr(VF+4*j+2*i,2)}, v{VV+i} offset:{t*1536 + j*256}")
        kt = (t+2) % 8
        a(f"ds_read_b128 {vr(KM+4*kb_ld,4)}, v{VKM} offset:{kt*1536}")
        a(f"ds_read_b64 {vr(KT+2*kb_ld,2)}, v{VKT} offset:{kt*1536}")
        e(2); c(0); e(3); e(4); c(1)
        a("s_waitcnt lgkmcnt(6)")
        a(f"v_mfma_f32_32x32x16_bf16 {vr(Sn,16)}, {vr(KM+4*kb_use,4)}, {vr(QM,4)}, 0")
        e(5); e(6); c(2); e(7); e(8); c(3)
        a(f"v_mfma_f32_32x32x8_bf16 {vr(Sn,16)}, {vr(KT+2*kb_use,2)}, {vr(QT,2)}, {vr(Sn,16)}")
        e(9); e(10); c(4); e(11)
        a("s_waitcnt lgkmcnt(4)")
        a(f"v_mfma_f32_32x32x16_bf16 {vr(O,16)}, {vr(VF,4)}, {vr(P,4)}, {vr(O,16)}")
        e(12); c(5); e(13); e(14); c(6); e(15)
    a("""
    s_add_u32 s52, s52, 1
    s_cmp_lt_u32 s52, 4
    s_cbranch_scc1 L_att_loop
    """)
    stamp(a, 3)
    a(f"""
    s_nop 0
    v_cvt_pk_bf16_f32 v{P+7}, v{S+16+14}, v{S+16+15}
    s_waitcnt lgkmcnt(0)
    s_nop 1
    v_mfma_f32_32x32x16_bf16 {vr(O,16)}, {vr(VF+4,4)}, {vr(P+4,4)}, {vr(O,16)}
    s_mul_i32 s10, s8, 3072
    s_add_u32 s10, s10, {STG}
    v_lshl_add_u32 v{T+3}, v2, 4, s10
    v_add_u32 v13, s54, v3
    v_lshrrev_b32 v14, 4, v13
    v_mul_u32_u24 v14, 20480, v14
    v_and_b32 v13, 15, v13
    v_lshl_add_u32 v14, v13, 4, v14
    v_lshl_add_u32 v15, v4, 8, v14
    s_lshl_b32 s10, s5, 9
    s_lshr_b32 s11, s5, 1
    s_lshl_b32 s11, s11, 8
    s_and_b32 s12, s5, 1
    s_lshl_b32 s12, s12, 3
    s_add_u32 s11, s11, s12
    s_add_u32 s11, s11, 16384
    s_nop 4
    s_cmp_eq_u32 s9, 0
    s_cbranch_scc1 L_att_lower
    ds_write_b128 v{T+3}, {vr(O,4)}
    ds_write_b128 v{T+3}, {vr(O+4,4)} offset:1024
    ds_write_b128 v{T+3}, {vr(O+8,4)} offset:2048
    s_waitcnt lgkmcnt(0)
    s_barrier
    s_branch L_att_join
    """)
    a.label("L_att_lower")
    a(f"""
    s_barrier
    ds_read_b128 {vr(S,4)}, v{T+3}
    ds_read_b128 {vr(S+4,4)}, v{T+3} offset:1024
    ds_read_b128 {vr(S+8,4)}, v{T+3} offset:2048
    s_waitcnt lgkmcnt(0)
    """)
    for r in range(0, 12, 2):
        a(f"v_pk_add_f32 {vr(O+r,2)}, {vr(O+r,2)}, {vr(S+r,2)}")
    a(f"""
    v_mov_b32 v{T}, v{O+8}
    v_mov_b32 v{T+1}, v{O+8}
    v_mul_f32 v{T+2}, 0, v{O}
    s_nop 0
    v_permlane32_swap_b32 v{T}, v{T+1}
    """)
    for r in range(1, 12):
        a(f"v_fma_f32 v{T+2}, 0, v{O+r}, v{T+2}")
    a(f"v_rcp_f32 v{T+1}, v{T+1}")
    a(f"v_cmp_u_f32 vcc, v{T+2}, v{T+2}")
    for r in range(12):
        a(f"v_mul_f32 v{O+r}, v{O+r}, v{T+1}")
    for r in range(6):
        a(f"v_cvt_pk_bf16_f32 v{P+r}, v{O+2*r}, v{O+2*r+1}")
    a(f"""
    buffer_store_dwordx4 {vr(P,4)}, v15, s[48:51], s10 offen
    s_mov_b64 exec, s[64:65]
    buffer_store_dwordx2 {vr(P+4,2)}, v14, s[48:51], s11 offen
    s_mov_b64 exec, -1
    s_cbranch_vccz L_att_join
    v_mov_b32 v{T+1}, {FLAG}
    v_mov_b32 v{T}, 1
    ds_write_b32 v{T+1}, v{T}
    """)
    a.label("L_att_join")
    a(f"""
    s_cmp_lg_u32 s56, 0
    s_cbranch_scc1 L_att_done
    v_mov_b32 v{T+1}, {FLAG}
    s_waitcnt lgkmcnt(0)
    s_barrier
    ds_read_b32 v{T}, v{T+1}
    s_waitcnt lgkmcnt(0)
    v_readfirstlane_b32 s10, v{T}
    s_nop 3
    s_cmp_eq_u32 s10, 0
    s_cbranch_scc1 L_att_done
    """)
    a(f"""
    s_mov_b32 s56, 1
    s_mov_b64 exec, s[66:67]
    v_mov_b32 v{QT}, 0
    v_mov_b32 v{QT+1}, 0
    s_mov_b64 exec, -1
    v_mov_b32 v{T}, 0xff800000
    s_add_u32 s10, s5, 32
    s_mul_i32 s10, s10, 98304
    s_mov_b32 s11, 64
    """)
    a.label("L_att_maxloop")
    a(f"""
    buffer_load_dwordx4 {vr(KM,4)}, v{VKM0}, s[40:43], s10 offen
    buffer_load_dwordx2 {vr(KT,2)}, v{VKT0}, s[40:43], s10 offen
    s_waitcnt vmcnt(0)
    v_mfma_f32_32x32x16_bf16 {vr(S,16)}, {vr(KM,4)}, {vr(QM,4)}, 0
    v_mfma_f32_32x32x8_bf16 {vr(S,16)}, {vr(KT,2)}, {vr(QT,2)}, {vr(S,16)}
    s_nop 15
    """)
    for r in range(0, 16, 2):
        a(f"v_max3_f32 v{T}, v{T}, v{S+r}, v{S+r+1}")
    a("""
    s_add_u32 s10, s10, 1536
    s_sub_u32 s11, s11, 1
    s_cmp_lg_u32 s11, 0
    s_cbranch_scc1 L_att_maxloop
    s_branch L_att_set_m
    """)
    a.label("L_att_done")
    stamp_flush(a, 1, 8)
    a.label("L_att_exit")
    a("s_endpgm")
    return [("atta_kernel", 128), ("attb_kernel", 128)]
```

```python
from asmlib import *
from layout import *
import os, prep

HSTG = 24576
STG = 2 * HSTG
NSTG = 3
FLAG = NSTG * STG
PART = FLAG + 64
LDS_BYTES = PART + 2048
PFC = int(os.environ.get('PFC', 2))
PRIO8 = int(os.environ.get('PRIO8', 1))

def body(a, L, sc_load="", sc_store="", wait_hook=None, end_hook=None, layer_flag_zero=None, with_prep=False):
    VDMA, VKM0, VKT0, VV0, VKM, VKT, VV = 5, 6, 7, 8, 10, 11, 12
    Q = [16, 24]
    KM, KT = 32, 40
    VF = 44
    P = [60, 68]
    O = [76, 92]
    S = [108, 124]
    T = 140
    a(f"""
    s_and_b32 s3, s2, 7
    s_lshl_b32 s5, s3, 2
    s_bfe_u32 s4, s2, 0x20003
    s_add_u32 s5, s5, s4
    s_lshr_b32 s6, s2, 5
    v_and_b32 v3, 31, v2
    v_lshrrev_b32 v4, 5, v2
    v_lshlrev_b32 v14, 2, v4
    v_xor_b32 v14, v14, v3
    v_lshlrev_b32 v14, 4, v14
    v_lshl_add_u32 v{VKM0}, v4, 9, v14
    v_xor_b32 v14, 8, v3
    v_lshlrev_b32 v14, 4, v14
    v_lshl_add_u32 v14, v4, 3, v14
    v_add_u32 v{VKT0}, 1024, v14
    v_bfe_u32 v15, v2, 4, 1
    v_and_b32 v{T}, 3, v2
    v_lshlrev_b32 v{T+1}, 1, v15
    v_sub_u32 v{T+1}, 3, v{T+1}
    v_min_u32 v{T}, v{T}, v{T+1}
    v_lshl_add_u32 v{T}, v15, 2, v{T}
    v_lshrrev_b32 v{T+1}, 1, v{T}
    v_and_b32 v{T}, 1, v{T}
    v_bfe_u32 v14, v2, 2, 2
    v_lshl_add_u32 v14, v4, 2, v14
    v_lshlrev_b32 v{T+2}, 2, v{T+1}
    v_xor_b32 v14, v14, v{T+2}
    v_lshlrev_b32 v14, 4, v14
    v_lshl_add_u32 v14, v{T+1}, 9, v14
    v_lshl_add_u32 v14, v{T}, 3, v14
    v_add_u32 v{VV0}, 12288, v14
    v_xor_b32 v{VV0+1}, 128, v{VV0}
    s_and_b32 s8, s7, 3
    s_lshr_b32 s9, s7, 2
    s_mul_i32 s59, s9, {HSTG}
    s_bfe_u32 s10, s7, 0x10001
    s_lshl_b32 s10, s10, 5
    s_add_u32 s10, s10, 32
    s_add_u32 s10, s10, s5
    s_mul_i32 s10, s10, 98304
    s_mul_i32 s11, s9, 49152
    s_add_u32 s10, s10, s11
    s_and_b32 s11, s7, 1
    s_mul_i32 s11, s11, 6144
    s_add_u32 s10, s10, s11
    v_lshl_add_u32 v{VDMA}, v2, 4, s10
    v_add_u32 v15, 3072, v{VDMA}
    s_mul_i32 s53, s7, 6144
    s_lshl_b32 s10, s6, 3
    s_lshl_b32 s11, s8, 1
    s_add_u32 s10, s10, s11
    s_lshl_b32 s54, s10, 5
    s_mul_i32 s10, s10, 1536
    s_mul_i32 s11, s5, 98304
    s_add_u32 s55, s10, s11
    s_mov_b32 s64, -1
    s_mov_b32 s65, 0
    s_mov_b32 s66, 0
    s_mov_b32 s67, -1
    s_mov_b32 s56, 0
    v_mov_b32 v{T}, 0
    v_mov_b32 v{T+1}, {FLAG}
    ds_write_b32 v{T+1}, v{T}
    s_waitcnt lgkmcnt(0)
    """)
    stamp(a, 0); stamp_rt(a, 1)
    srd(a, 40, P_WS, WS_QKV, 96*98304)
    srd(a, 48, P_WS, WS_O, 2048*1280)
    if layer_flag_zero: layer_flag_zero(T)
    if wait_hook: wait_hook()
    def dma_i(i, ssoff, sbase):
        a(f"s_add_u32 m0, {sbase}, {3072*(i//3)}")
        a("s_nop 0")
        a(f"buffer_load_dwordx4 v{VDMA if i < 3 else 15}, s[40:43], {ssoff} offen offset:{(i%3)*1024}{sc_load} lds")
    def dma0():
        for i in range(6): dma_i(i, "0", "s53")
    for b in range(2):
        a(f"buffer_load_dwordx4 {vr(Q[b],4)}, v{VKM0}, s[40:43], s55 offen offset:{b*1536}{sc_load}")
        a(f"buffer_load_dwordx2 {vr(Q[b]+4,2)}, v{VKT0}, s[40:43], s55 offen offset:{b*1536}{sc_load}")
    a.label(f"{L}_restart")
    a("s_bitcmp1_b32 s7, 0")
    a(f"s_cbranch_scc1 {L}_late")
    dma0()
    a.label(f"{L}_late")
    if with_prep:
        prep.setup(a, L + "p", 180, 181, 182, 190)
        a("s_mov_b32 s57, 0")
    for b in range(2):
        for r in range(16):
            a(f"v_mov_b32 v{O[b]+r}, 0")
    for r in range(8):
        a(f"v_mov_b32 v{P[1]+r}, 0")
        a(f"v_mov_b32 v{VF+8+r}, 0")
    a(f"""
    v_add_u32 v{VKM}, s59, v{VKM0}
    v_add_u32 v{VKT}, s59, v{VKT0}
    s_mov_b32 s52, 0
    s_mov_b32 s58, s59
    s_mov_b32 s60, 12288
    s_add_u32 s61, s53, {STG}
    s_waitcnt vmcnt(0)
    """)
    stamp(a, 5)
    a(f"""
    s_barrier
    ds_read_b128 {vr(KM,4)}, v{VKM}
    ds_read_b64 {vr(KT,2)}, v{VKT}
    s_cmp_lg_u32 s56, 0
    s_cbranch_scc1 {L}_have_m
    ds_read_b128 {vr(KM+4,4)}, v{VKM0}
    ds_read_b64 {vr(KT+2,2)}, v{VKT0}
    s_mov_b64 exec, s[66:67]
    v_mov_b32 v{Q[0]+4}, 0
    v_mov_b32 v{Q[0]+5}, 0
    v_mov_b32 v{Q[1]+4}, 0
    v_mov_b32 v{Q[1]+5}, 0
    s_mov_b64 exec, -1
    s_waitcnt lgkmcnt(0)
    s_nop 1
    """)
    for b in range(2):
        a(f"v_mfma_f32_32x32x16_bf16 {vr(S[b],16)}, {vr(KM+4,4)}, {vr(Q[b],4)}, 0")
        a(f"v_mfma_f32_32x32x8_bf16 {vr(S[b],16)}, {vr(KT+2,2)}, {vr(Q[b]+4,2)}, {vr(S[b],16)}")
    a("s_nop 9")
    for b in range(2):
        m = T + 4*b
        a(f"v_max3_f32 v{m}, v{S[b]}, v{S[b]+1}, v{S[b]+2}")
        for r in range(3, 15, 2):
            a(f"v_max3_f32 v{m}, v{m}, v{S[b]+r}, v{S[b]+r+1}")
        a(f"v_max_f32 v{m}, v{m}, v{S[b]+15}")
    a.label(f"{L}_set_m")
    for b in range(2):
        m = T + 4*b
        a(f"""
        v_mov_b32 v{m+1}, v{m}
        s_nop 1
        v_permlane32_swap_b32 v{m}, v{m+1}
        s_nop 1
        v_max_f32 v{m}, v{m}, v{m+1}
        v_xor_b32 v{m}, 0x80000000, v{m}
        v_and_b32 v{m+1}, 0xffff0000, v{m}
        v_sub_f32 v{m}, v{m}, v{m+1}
        v_and_b32 v{m+2}, 0xffff0000, v{m}
        v_sub_f32 v{m}, v{m}, v{m+2}
        v_lshrrev_b32 v{m+1}, 16, v{m+1}
        s_mov_b64 exec, s[66:67]
        v_or_b32 v{Q[b]+4}, v{m+1}, v{m+2}
        v_lshrrev_b32 v{Q[b]+5}, 16, v{m}
        s_mov_b64 exec, -1
        """)
    a(f"""
    s_cmp_lg_u32 s56, 0
    s_cbranch_scc1 {L}_restart
    """)
    a.label(f"{L}_have_m")
    a(f"""
    v_mov_b32 v{S[1]+14}, 0
    v_mov_b32 v{S[1]+15}, 0
    s_waitcnt lgkmcnt(0)
    v_mfma_f32_32x32x16_bf16 {vr(S[0],16)}, {vr(KM,4)}, {vr(Q[0],4)}, 0
    v_mfma_f32_32x32x8_bf16 {vr(S[0],16)}, {vr(KT,2)}, {vr(Q[0]+4,2)}, {vr(S[0],16)}
    s_nop 13
    s_bitcmp0_b32 s7, 0
    s_cbranch_scc1 {L}_early
    """)
    dma0()
    a.label(f"{L}_early")
    stamp(a, 2)
    a.raw(".p2align 6")
    a.label(f"{L}_loop")
    def phase(X, Y, kb, vb, pre=None, mid=None, waits=(None, None)):
        Sx, Sy = S[X], S[Y]
        e = lambda i: a(f"v_exp_f32 v{Sx+i}, v{Sx+i}")
        c = lambda i: a(f"v_cvt_pk_bf16_f32 v{P[X]+i}, v{Sx+2*i}, v{Sx+2*i+1}")
        e(0)
        a(f"v_cvt_pk_bf16_f32 v{P[Y]+7}, v{Sy+14}, v{Sy+15}")
        e(1)
        if pre: pre()
        if waits[0] is not None: a(f"s_waitcnt lgkmcnt({waits[0]})")
        a(f"v_mfma_f32_32x32x16_bf16 {vr(Sy,16)}, {vr(KM+4*kb,4)}, {vr(Q[Y],4)}, 0")
        if mid: mid()
        e(2); c(0); e(3); e(4); c(1)
        a(f"v_mfma_f32_32x32x8_bf16 {vr(Sy,16)}, {vr(KT+2*kb,2)}, {vr(Q[Y]+4,2)}, {vr(Sy,16)}")
        e(5); e(6); c(2); e(7); e(8)
        if waits[1] is not None: a(f"s_waitcnt lgkmcnt({waits[1]})")
        a(f"v_mfma_f32_32x32x16_bf16 {vr(O[Y],16)}, {vr(VF+8*vb,4)}, {vr(P[Y],4)}, {vr(O[Y],16)}")
        c(3); e(9); e(10); c(4); e(11); e(12)
        a(f"v_mfma_f32_32x32x16_bf16 {vr(O[Y],16)}, {vr(VF+8*vb+4,4)}, {vr(P[Y]+4,4)}, {vr(O[Y],16)}")
        c(5); e(13); e(14); c(6); e(15)
    for t in range(8):
        kb, vb = t & 1, t & 1
        def pre():
            if PRIO8 and t % 2 == 0:
                a(f"s_setprio {[2,1,0,3][t//2] if t != 6 else 0}")
            if t == 0:
                a(f"v_add_u32 v{VV}, s58, v{VV0}")
                a(f"v_add_u32 v{VV+1}, s58, v{VV0+1}")
        def mid():
            if t == 3:
                lab = a.newlabel("nobar")
                a(f"""
                s_cmp_lg_u32 s52, 0
                s_cbranch_scc1 {lab}
                s_waitcnt vmcnt(3)
                s_barrier
                """)
                a.label(lab)
            if t == 7:
                a(f"""
                s_add_u32 s58, s58, {STG}
                s_cmp_ge_u32 s58, {NSTG*STG}
                s_cselect_b32 s58, s59, s58
                v_add_u32 v{VKM}, s58, v{VKM0}
                v_add_u32 v{VKT}, s58, v{VKT0}
                """)
                if with_prep:
                    w1, w2 = a.newlabel("w"), a.newlabel("w")
                    a(f"""
                    s_cmp_eq_u32 s57, 8
                    s_waitcnt vmcnt(8)
                    s_cbranch_scc1 {w1}
                    s_cmp_eq_u32 s57, 4
                    s_waitcnt vmcnt(4)
                    s_cbranch_scc1 {w1}
                    s_waitcnt vmcnt(0)
                    """)
                    a.label(w1)
                    a("s_mov_b32 s57, 0")
                else:
                    a("s_waitcnt vmcnt(0)")
                a(f"""
                s_barrier
                s_add_u32 s60, s60, 12288
                s_add_u32 s61, s61, {STG}
                s_cmp_ge_u32 s61, {NSTG*STG}
                s_cselect_b32 s61, s53, s61
                """)
                if PRIO8: a("s_setprio 3")
                if PF & 1:
                    lab2 = a.newlabel("nopf")
                    a(f"""
                    s_cmp_lg_u32 s52, {PFC}
                    s_cbranch_scc1 {lab2}
                    {"s_cmp_eq_u32 s98, 0" if with_prep else "s_nop 0"}
                    {"s_cbranch_scc1 " + lab2 if with_prep else "s_nop 0"}
                    s_lshr_b32 s12, s2, 3
                    s_lshl_b32 s12, s12, 3
                    s_add_u32 s12, s12, s7
                    s_lshr_b32 s13, s3, 2
                    """)
                    l2_prefetch(a, 44, WS_WT2, WT2_BYTES//2, 8, 12, T+4, T+5, 14, 13)
                    l2_prefetch(a, 44, WS_WT3, WT3_BYTES//2, 8, 12, T+4, T+5, 14, 13)
                    if PF & 8:
                        l2_prefetch(a, 44, WS_WT4, WT4_BYTES//2, 8, 12, T+4, T+5, 14, 13)
                    a.label(lab2)
            if t == 6 and with_prep:
                l0, l1, l2 = a.newlabel("pp"), a.newlabel("pp"), a.newlabel("pp")
                a(f"""
                s_or_b32 s12, s62, s63
                s_cmp_eq_u32 s12, 0
                s_cbranch_scc1 {l2}
                s_cmp_lg_u32 s52, 0
                s_cbranch_scc1 {l0}
                s_mov_b32 s57, 8
                """)
                prep.issue_loads(a, L + "p", 180)
                a(f"s_branch {l2}")
                a.label(l0)
                a(f"""
                s_mov_b32 s57, 4
                s_cmp_lg_u32 s52, 1
                s_cbranch_scc1 {l1}
                s_waitcnt vmcnt(6)
                """)
                prep.stage1(a, L + "p", 181, 184, PART, 183)
                a(f"s_branch {l2}")
                a.label(l1)
                prep.stage2(a, L + "p", 182, 184, PART, 183)
                a.label(l2)
            if t < 6:
                lab = a.newlabel("nodma")
                a(f"s_cmp_eq_u32 s52, 3")
                a(f"s_cbranch_scc1 {lab}")
                dma_i(t, "s60", "s61")
                a.label(lab)
            kt = (t+1) % 8
            a(f"ds_read_b128 {vr(KM+4*(kb^1),4)}, v{VKM} offset:{kt*1536}")
            a(f"ds_read_b64 {vr(KT+2*(kb^1),2)}, v{VKT} offset:{kt*1536}")
            for j in range(2):
                for i in range(2):
                    a(f"ds_read_b64_tr_b16 {vr(VF+8*vb+4*j+2*i,2)}, v{VV+i} offset:{t*1536 + j*256}")
        phase(0, 1, kb, vb ^ 1, pre, mid)
        phase(1, 0, kb ^ 1, vb, None, None, (4, 0))
    a(f"""
    s_add_u32 s52, s52, 1
    s_cmp_lt_u32 s52, 4
    s_cbranch_scc1 {L}_loop
    """)
    stamp(a, 3)
    a(f"""
    s_nop 0
    v_cvt_pk_bf16_f32 v{P[1]+7}, v{S[1]+14}, v{S[1]+15}
    s_setprio 0
    s_nop 1
    v_mfma_f32_32x32x16_bf16 {vr(O[1],16)}, {vr(VF+8,4)}, {vr(P[1],4)}, {vr(O[1],16)}
    v_mfma_f32_32x32x16_bf16 {vr(O[1],16)}, {vr(VF+12,4)}, {vr(P[1]+4,4)}, {vr(O[1],16)}
    s_mul_i32 s10, s8, 6144
    s_add_u32 s10, s10, {STG}
    v_lshl_add_u32 v{T+3}, v2, 4, s10
    v_add_u32 v13, s54, v3
    v_lshrrev_b32 v14, 4, v13
    v_mul_u32_u24 v14, 20480, v14
    v_and_b32 v13, 15, v13
    v_lshl_add_u32 v14, v13, 4, v14
    v_lshl_add_u32 v13, v4, 8, v14
    s_lshl_b32 s10, s5, 9
    s_lshr_b32 s11, s5, 1
    s_lshl_b32 s11, s11, 8
    s_and_b32 s12, s5, 1
    s_lshl_b32 s12, s12, 3
    s_add_u32 s11, s11, s12
    s_add_u32 s11, s11, 16384
    s_nop 4
    """)
    a(f"""
    s_cmp_eq_u32 s9, 0
    s_cbranch_scc1 {L}_lo
    """)
    for k in range(3):
        a(f"ds_write_b128 v{T+3}, {vr(O[0]+4*k,4)} offset:{1024*k}")
    for r in range(12):
        a(f"v_mov_b32 v{O[0]+r}, v{O[1]+r}")
    a(f"""
    v_add_u32 v{T+3}, 3072, v{T+3}
    v_add_u32 v13, 40960, v13
    v_add_u32 v14, 40960, v14
    s_branch {L}_x
    """)
    a.label(f"{L}_lo")
    for k in range(3):
        a(f"ds_write_b128 v{T+3}, {vr(O[1]+4*k,4)} offset:{3072 + 1024*k}")
    a.label(f"{L}_x")
    Oa, Sa, Pa = O[0], S[0], P[0]
    a(f"""
    s_waitcnt lgkmcnt(0)
    s_barrier
    ds_read_b128 {vr(Sa,4)}, v{T+3}
    ds_read_b128 {vr(Sa+4,4)}, v{T+3} offset:1024
    ds_read_b128 {vr(Sa+8,4)}, v{T+3} offset:2048
    s_waitcnt lgkmcnt(0)
    """)
    for r in range(0, 12, 2):
        a(f"v_pk_add_f32 {vr(Oa+r,2)}, {vr(Oa+r,2)}, {vr(Sa+r,2)}")
    a(f"""
    v_mov_b32 v{T}, v{Oa+8}
    v_mov_b32 v{T+1}, v{Oa+8}
    v_mul_f32 v{T+2}, 0, v{Oa}
    s_nop 0
    v_permlane32_swap_b32 v{T}, v{T+1}
    """)
    for r in range(1, 12):
        a(f"v_fma_f32 v{T+2}, 0, v{Oa+r}, v{T+2}")
    a(f"v_rcp_f32 v{T+1}, v{T+1}")
    a(f"v_cmp_u_f32 vcc, v{T+2}, v{T+2}")
    for r in range(12):
        a(f"v_mul_f32 v{Oa+r}, v{Oa+r}, v{T+1}")
    for r in range(6):
        a(f"v_cvt_pk_bf16_f32 v{Pa+r}, v{Oa+2*r}, v{Oa+2*r+1}")
    a(f"""
    buffer_store_dwordx4 {vr(Pa,4)}, v13, s[48:51], s10 offen{sc_store}
    s_mov_b64 exec, s[64:65]
    buffer_store_dwordx2 {vr(Pa+4,2)}, v14, s[48:51], s11 offen{sc_store}
    s_mov_b64 exec, -1
    s_cmp_lg_u32 s56, 0
    s_cbranch_scc1 {L}_done
    v_mov_b32 v{T+1}, {FLAG}
    s_cbranch_vccz {L}_ok
    v_mov_b32 v{T}, 1
    ds_write_b32 v{T+1}, v{T}
    """)
    a.label(f"{L}_ok")
    a(f"""
    s_waitcnt lgkmcnt(0)
    s_barrier
    ds_read_b32 v{T}, v{T+1}
    s_waitcnt lgkmcnt(0)
    v_readfirstlane_b32 s10, v{T}
    s_nop 3
    s_cmp_eq_u32 s10, 0
    s_cbranch_scc1 {L}_done
    s_mov_b32 s56, 1
    s_mov_b64 exec, s[66:67]
    v_mov_b32 v{Q[0]+4}, 0
    v_mov_b32 v{Q[0]+5}, 0
    v_mov_b32 v{Q[1]+4}, 0
    v_mov_b32 v{Q[1]+5}, 0
    s_mov_b64 exec, -1
    v_mov_b32 v{T}, 0xff800000
    v_mov_b32 v{T+4}, 0xff800000
    s_add_u32 s10, s5, 32
    s_mul_i32 s10, s10, 98304
    s_mov_b32 s11, 64
    """)
    a.label(f"{L}_maxloop")
    a(f"""
    buffer_load_dwordx4 {vr(KM,4)}, v{VKM0}, s[40:43], s10 offen{sc_load}
    buffer_load_dwordx2 {vr(KT,2)}, v{VKT0}, s[40:43], s10 offen{sc_load}
    s_waitcnt vmcnt(0)
    """)
    for b in range(2):
        a(f"v_mfma_f32_32x32x16_bf16 {vr(S[b],16)}, {vr(KM,4)}, {vr(Q[b],4)}, 0")
        a(f"v_mfma_f32_32x32x8_bf16 {vr(S[b],16)}, {vr(KT,2)}, {vr(Q[b]+4,2)}, {vr(S[b],16)}")
    a("s_nop 15")
    for b in range(2):
        for r in range(0, 16, 2):
            a(f"v_max3_f32 v{T+4*b}, v{T+4*b}, v{S[b]+r}, v{S[b]+r+1}")
    a(f"""
    s_add_u32 s10, s10, 1536
    s_sub_u32 s11, s11, 1
    s_cmp_lg_u32 s11, 0
    s_cbranch_scc1 {L}_maxloop
    s_branch {L}_set_m
    """)
    a.label(f"{L}_done")
    if end_hook: end_hook()
    stamp_flush(a, 1, 8)

def gen_att8(a):
    kernel_header(a, "attc_kernel")
    a("s_cmp_ge_u32 s2, 256")
    a("s_cbranch_scc1 L_a8_exit")
    load_ptrs(a)
    a("""
    v_lshrrev_b32 v1, 6, v0
    v_and_b32 v2, 63, v0
    s_nop 0
    v_readfirstlane_b32 s7, v1
    """)
    def zero(T):
        srd(a, 44, P_WS, WS_FLAGS, FLAGS_BYTES)
        a(f"""
        s_cmp_ge_u32 s2, 48
        s_cbranch_scc1 L_a8_nofl
        s_cmp_lg_u32 s7, 7
        s_cbranch_scc1 L_a8_nofl
        s_lshl_b32 s10, s2, 8
        s_add_u32 s10, s10, 12288
        v_lshlrev_b32 v14, 2, v2
        buffer_store_dword v{T}, v14, s[44:47], s10 offen
        """)
        a.label("L_a8_nofl")
    body(a, "L_a8", layer_flag_zero=zero)
    a.label("L_a8_exit")
    a("s_endpgm")
    return [("attc_kernel", 148)]
```

```python
from asmlib import *
from layout import *
import g13, att8, prep, os
from g13 import f32, half_sum

D13 = int(os.environ.get('D13', 4)); D24 = int(os.environ.get('D24', 4))
SC = " sc1"
MAXPOLL = 200000
SLP = int(os.environ.get('SLP', 2))

def maps(a):
    a("""
    s_and_b32 s3, s2, 7
    s_lshr_b32 s4, s2, 3
    s_and_b32 s5, s3, 3
    s_lshl_b32 s5, s5, 2
    s_and_b32 s8, s4, 3
    s_add_u32 s36, s5, s8
    s_lshr_b32 s6, s3, 2
    s_lshl_b32 s9, s6, 3
    s_lshr_b32 s8, s4, 2
    s_add_u32 s37, s9, s8
    s_lshl_b32 s38, s36, 1
    s_and_b32 s8, s8, 1
    s_add_u32 s38, s38, s8
    s_lshl_b32 s39, s6, 2
    s_lshr_b32 s8, s4, 3
    s_add_u32 s39, s39, s8
    v_lshrrev_b32 v1, 6, v0
    v_and_b32 v2, 63, v0
    s_nop 0
    v_readfirstlane_b32 s7, v1
    """)

def flag_off(a, phase, sdst):
    a(f"s_mul_i32 s{sdst}, s98, {3*16*256}")
    a(f"s_lshl_b32 s8, s36, 8")
    a(f"s_add_u32 s{sdst}, s{sdst}, s8")
    if phase: a(f"s_add_u32 s{sdst}, s{sdst}, {phase*16*256}")

def poll(a, phase):
    l, d = a.newlabel("poll"), a.newlabel("polled")
    srd(a, 44, P_WS, WS_FLAGS, FLAGS_BYTES)
    flag_off(a, phase, 12)
    a(f"""
    v_lshlrev_b32 v10, 2, v2
    s_mov_b32 s13, {MAXPOLL}
    """)
    a.label(l)
    a(f"""
    buffer_load_dword v11, v10, s[44:47], s12 offen sc1
    s_waitcnt vmcnt(0)
    v_cmp_eq_u32 vcc, 1, v11
    s_nop 3
    s_cmp_eq_u64 vcc, -1
    s_cbranch_scc1 {d}
    s_sleep {SLP}
    s_sub_u32 s13, s13, 1
    s_cmp_lg_u32 s13, 0
    s_cbranch_scc1 {l}
    """)
    a.label(d)

def poll_v(a, vaddrs):
    l, d = a.newlabel("poll"), a.newlabel("polled")
    a(f"s_mov_b32 s13, {MAXPOLL}")
    a.label(l)
    for i, v in enumerate(vaddrs):
        a(f"buffer_load_dword v{148+i}, v{v}, s[44:47], 0 offen sc1")
    a("s_waitcnt vmcnt(0)")
    for i in range(1, len(vaddrs)):
        a(f"v_and_b32 v148, v148, v{148+i}")
    a(f"""
    v_cmp_eq_u32 vcc, 1, v148
    s_nop 3
    s_cmp_eq_u64 vcc, -1
    s_cbranch_scc1 {d}
    s_sleep {SLP}
    s_sub_u32 s13, s13, 1
    s_cmp_lg_u32 s13, 0
    s_cbranch_scc1 {l}
    """)
    a.label(d)

def raise_flag(a):
    srd(a, 44, P_WS, WS_FLAGS, FLAGS_BYTES)
    a(f"""
    v_mov_b32 v1, 1
    s_mov_b64 exec, 1
    s_waitcnt vmcnt(0)
    buffer_store_dword v1, off, s[44:47], s12 sc1
    s_mov_b64 exec, -1
    """)

def publish(a, phase):
    srd(a, 44, P_WS, WS_FLAGS, FLAGS_BYTES)
    flag_off(a, phase, 12)
    a(f"""
    s_lshl_b32 s13, s37, 4
    s_add_u32 s12, s12, s13
    s_lshl_b32 s13, s7, 2
    s_add_u32 s12, s12, s13
    v_mov_b32 v1, 1
    s_mov_b64 exec, 1
    s_waitcnt vmcnt(0)
    buffer_store_dword v1, off, s[44:47], s12 sc1
    s_mov_b64 exec, -1
    s_barrier
    """)

WT = int(os.environ.get('WT', 0))
MEGA = int(os.environ.get('MEGA', 2))
def loader(a, issue, n, nch, dist, first, wait_phase, kid, touch=None):
    stamp(a, 0); stamp_rt(a, 1)
    T = 0
    if wait_phase is None:
        if first and MEGA == 2:
            l = a.newlabel("now")
            a("s_cmp_lg_u32 s98, 0")
            a(f"s_cbranch_scc1 {l}")
            srd(a, 44, P_WS, WS_FLAGS, FLAGS_BYTES)
            a(f"v_lshlrev_b32 v10, 2, v2")
            for k in range(4):
                a(f"v_add_u32 v{11+k}, {FL_W + 256*k}, v10")
            poll_v(a, [11, 12, 13, 14])
            a.label(l)
        for c in range(dist): issue(c)
        if touch and WT:
            sidx, total, cbytes, nshare, ssh = touch
            start = dist * cbytes
            lines = (total - start) // 128
            T = (lines + 64*2*nshare - 1) // (64*2*nshare)
            a(f"""
            s_and_b32 s12, s{ssh}, {nshare-1}
            s_lshl_b32 s12, s12, 1
            s_add_u32 s12, s12, s9
            s_lshl_b32 s12, s12, 7
            s_mul_i32 s13, s{sidx}, {total}
            s_add_u32 s12, s12, s13
            s_add_u32 s12, s12, {start}
            s_mov_b32 s44, s52
            s_mov_b32 s45, s53
            s_add_u32 s46, s13, {total}
            s_mov_b32 s47, 0x00020000
            v_mul_u32_u24 v10, {256*nshare}, v2
            """)
            for t in range(T):
                a(f"buffer_load_dword v11, v10, s[44:47], s12 offen")
                a(f"s_add_u32 s12, s12, {64*256*nshare}")
        if not first: a("s_barrier")
    else:
        if not first:
            a("s_barrier")
            poll(a, wait_phase)
        elif MEGA:
            l = a.newlabel("noatt")
            if MEGA == 1:
                a("s_cmp_eq_u32 s98, 0")
                a(f"s_cbranch_scc1 {l}")
            srd(a, 44, P_WS, WS_FLAGS, FLAGS_BYTES)
            a(f"s_lshl_b32 s12, s38, 8")
            a(f"s_lshl_b32 s13, s98, 13")
            a(f"s_add_u32 s12, s12, s13")
            a(f"s_add_u32 s12, s12, {FL_ATT}")
            a(f"v_lshl_add_u32 v10, v2, 2, s12")
            poll_v(a, [10])
            a.label(l)
        stamp(a, 5)
        for c in range(dist): issue(c)
    nxt = dist
    for c in range(nch):
        a(f"s_waitcnt vmcnt({n * (nxt - 1 - c) + (T if c < dist else 0)})")
        if c == 0: stamp(a, 2)
        if c == nch//2: stamp(a, 4)
        a("s_barrier")
        if nxt < nch:
            issue(nxt); nxt += 1
    stamp(a, 3)
    a("s_barrier")
    stamp_flush(a, kid, 8)

ST24, NST24 = 18432, 8
def w24(a, wt_off, wt_bytes, nks):
    srd(a, 52, P_WS, wt_off, wt_bytes)
    a(f"""
    s_mul_i32 s11, s9, 5120
    s_add_u32 s57, s11, 8192
    s_mul_i32 s10, s39, {nks*5120}
    s_add_u32 s10, s10, s11
    v_lshl_add_u32 v8, v2, 4, s10
    v_add_u32 v9, 4096, v8
    """)
    def issue(c):
        a(f"s_mov_b32 s58, {c*10240}")
        a(f"s_add_u32 m0, s57, {(c % NST24) * ST24}")
        a("s_nop 0")
        for i in range(4):
            a(f"buffer_load_dwordx4 v8, s[52:55], s58 offen offset:{i*1024} lds")
        a(f"s_add_u32 m0, s57, {(c % NST24) * ST24 + 4096}")
        a("s_nop 0")
        a(f"buffer_load_dwordx4 v9, s[52:55], s58 offen lds")
    return issue, 5
def x24(a, xoff, nks, sc):
    srd(a, 52, P_WS, xoff, 128*nks*1024)
    a(f"""
    s_lshl_b32 s57, s9, 12
    s_lshl_b32 s10, s38, 2
    s_lshl_b32 s11, s9, 1
    s_add_u32 s10, s10, s11
    s_mul_i32 s10, s10, {nks*1024}
    v_lshl_add_u32 v8, v2, 4, s10
    v_add_u32 v9, {nks*1024}, v8
    """)
    def issue(c):
        a(f"s_mov_b32 s58, {c*2048}")
        for t in range(2):
            a(f"s_add_u32 m0, s57, {(c % NST24) * ST24 + t * 2048}")
            a("s_nop 0")
            for i in range(2):
                a(f"buffer_load_dwordx4 v{8+t}, s[52:55], s58 offen offset:{i*1024}{sc} lds")
    return issue, 4

def c24(a, tag, nch, st_off, kid):
    L = f"L_ch_{tag}"
    VXA, VWA, VO, VS, VR = 4, 6, 8, 9, 3
    RES, FX, FW, ACC = 10, 20, 32, 92
    stamp(a, 0); stamp_rt(a, 1)
    if tag == "g2":
        a("s_mov_b32 s40, s94\ns_mov_b32 s41, s95\ns_mov_b32 s42, 2621440\ns_mov_b32 s43, 0x00020000")
        srd(a, 48, P_WS, WS_XA, 2048*1280)
    else:
        srd(a, 40, P_WS, WS_XA, 2048*1280)
        a("s_mov_b32 s48, s96\ns_mov_b32 s49, s97\ns_mov_b32 s50, 2621440\ns_mov_b32 s51, 0x00020000")
    srd(a, 56, P_WS, st_off, 2048*64)
    a(f"""
    s_lshl_b32 s10, s38, 6
    s_lshl_b32 s11, s7, 4
    s_add_u32 s10, s10, s11
    v_and_b32 v4, 15, v2
    v_add_u32 v4, s10, v4
    v_and_b32 v{VS}, 63, v4
    v_lshlrev_b32 v{VS}, 3, v{VS}
    v_lshrrev_b32 v1, 4, v2
    s_lshr_b32 s10, s10, 5
    s_mul_i32 s10, s10, 40960
    s_mul_i32 s11, s39, 5120
    s_add_u32 s10, s10, s11
    v_and_b32 v5, 31, v4
    v_lshl_add_u32 v5, v5, 4, s10
    v_lshrrev_b32 v6, 1, v1
    v_lshl_add_u32 v5, v6, 9, v5
    v_and_b32 v6, 1, v1
    v_lshl_add_u32 v{VR}, v6, 3, v5
    v_lshl_add_u32 v112, v6, 10, v5
    s_movk_i32 s62, 0x1000
    v_mul_u32_u24 v4, 1280, v4
    s_mul_i32 s11, s39, 160
    v_add_u32 v4, s11, v4
    v_lshl_add_u32 v{VO}, v1, 3, v4
    v_lshl_add_u32 v113, v6, 5, v4
    v_lshrrev_b32 v6, 1, v1
    v_lshl_add_u32 v113, v6, 4, v113
    """)
    def frag_res(sc):
        for j in range(4):
            a(f"buffer_load_dwordx2 {vr(RES+2*j,2)}, v{VR}, s[40:43], 0 offen offset:{1024*j}{sc}")
        a(f"buffer_load_dwordx2 {vr(RES+8,2)}, v{VR}, s[40:43], s62 offen{sc}")
    if tag == "g2":
        a("s_cmp_eq_u32 s98, 0")
        a(f"s_cbranch_scc1 {L}_rres")
        frag_res(SC)
        a(f"s_branch {L}_resdone")
        a.label(f"{L}_rres")
        for j in range(5):
            a(f"buffer_load_dwordx2 {vr(RES+2*j,2)}, v{VO}, s[40:43], 0 offen offset:{32*j}")
        a.label(f"{L}_resdone")
    else:
        frag_res(SC)
    a(f"""
    s_lshl_b32 s10, s7, 11
    v_lshl_add_u32 v{VXA}, v2, 4, s10
    v_add_u32 v{VXA+1}, {4*ST24}, v{VXA}
    v_lshlrev_b32 v{VWA}, 4, v2
    v_add_u32 v{VWA}, 8192, v{VWA}
    v_add_u32 v{VWA+1}, {4*ST24}, v{VWA}
    s_lshl_b32 s61, s38, 3
    s_add_u32 s61, s61, s39
    s_lshl_b32 s61, s61, 9
    """)
    NB = 3
    def reads(s):
        c, ks = s // 2, s % 2
        buf = s % NB
        st = c % NST24
        sset, sin = st // 4, st % 4
        a(f"ds_read_b128 {vr(FX+buf*4,4)}, v{VXA+sset} offset:{sin*ST24 + ks*1024}")
        for j in range(5):
            a(f"ds_read_b128 {vr(FW+(buf*5+j)*4,4)}, v{VWA+sset} offset:{sin*ST24 + ks*5120 + 1024*j}")
    a("s_barrier")
    stamp(a, 2)
    reads(0); reads(1)
    NS = 2*nch
    for s_ in range(NS):
        buf = s_ % NB
        a(f"s_waitcnt lgkmcnt({6 if s_ + 1 < NS else 0})")
        if s_ % 2 == 0 and s_ // 2 + 1 < nch:
            a("s_barrier")
            if s_ // 2 + 1 == nch // 2: stamp(a, 4)
        if s_ == NS - 1:
            a("s_barrier")
        for j in range(5):
            cin = "0" if s_ == 0 else vr(ACC+4*j, 4)
            a(f"v_mfma_f32_16x16x32_bf16 {vr(ACC+4*j,4)}, {vr(FW+(buf*5+j)*4,4)}, {vr(FX+buf*4,4)}, {cin}")
            if j == 0 and s_ + 2 < NS:
                reads(s_ + 2)
    stamp(a, 3)
    a("s_waitcnt vmcnt(0)")
    a("s_nop 7")
    for j in range(5):
        t = FX + 4*(j & 1)
        a(f"""
        v_lshlrev_b32 v{t}, 16, v{RES+2*j}
        v_and_b32 v{t+1}, 0xffff0000, v{RES+2*j}
        v_lshlrev_b32 v{t+2}, 16, v{RES+2*j+1}
        v_and_b32 v{t+3}, 0xffff0000, v{RES+2*j+1}
        v_pk_add_f32 {vr(t,2)}, {vr(t,2)}, {vr(ACC+4*j,2)}
        v_pk_add_f32 {vr(t+2,2)}, {vr(t+2,2)}, {vr(ACC+4*j+2,2)}
        v_cvt_pk_bf16_f32 v{RES+2*j}, v{t}, v{t+1}
        v_cvt_pk_bf16_f32 v{RES+2*j+1}, v{t+2}, v{t+3}
        """)
    a("s_nop 0")
    for j0 in (0, 2):
        for d in range(2):
            a(f"v_permlane16_swap_b32 v{RES+2*j0+d}, v{RES+2*j0+2+d}")
    if tag == "g4":
        a("s_cmp_eq_u32 s98, 0")
        a(f"s_cbranch_scc1 {L}_frag")
        for j0 in (0, 2):
            a(f"buffer_store_dwordx4 {vr(RES+2*j0,4)}, v113, s[48:51], 0 offen offset:{32*j0}")
        a(f"buffer_store_dwordx2 {vr(RES+8,2)}, v{VO}, s[48:51], 0 offen offset:128")
        stamp_flush(a, kid, 8)
        a("s_endpgm")
        a.label(f"{L}_frag")
    else:
        a("s_nop 0")
    for j0 in (0, 2):
        a(f"buffer_store_dwordx4 {vr(RES+2*j0,4)}, v112, s[48:51], 0 offen offset:{1024*j0}{SC}")
    a(f"buffer_store_dwordx2 {vr(RES+8,2)}, v{VR}, s[48:51], s62 offen{SC}")
    a("v_mov_b32 v4, 0\nv_mov_b32 v5, 0\ns_mov_b32 s60, 0x3f803f80")
    for r in range(10):
        a(f"v_dot2_f32_bf16 v4, v{RES+r}, s60, v4")
        a(f"v_dot2_f32_bf16 v5, v{RES+r}, v{RES+r}, v5")
    a("s_nop 2")
    for sw in ("v_permlane16_swap_b32", "v_permlane32_swap_b32"):
        a(f"""
        v_mov_b32 v6, v4
        v_mov_b32 v7, v5
        s_nop 1
        {sw} v4, v6
        {sw} v5, v7
        s_nop 1
        v_add_f32 v4, v4, v6
        v_add_f32 v5, v5, v7
        """)
    a(f"""
    s_mov_b64 exec, 0xffff
    buffer_store_dwordx2 v[4:5], v{VS}, s[56:59], s61 offen{SC}
    s_mov_b64 exec, -1
    """)

RING = 8; NCH13 = 20
def x13(a, xoff, stage):
    srd(a, 52, P_WS, xoff, 2048*1280)
    a(f"""
    s_lshl_b32 s10, s36, 2
    s_lshl_b32 s11, s9, 1
    s_add_u32 s10, s10, s11
    s_mul_i32 s10, s10, 40960
    v_lshl_add_u32 v8, v2, 4, s10
    v_add_u32 v9, 40960, v8
    s_lshl_b32 s57, s9, 12
    """)
    def issue(c):
        a(f"s_mov_b32 s58, {c*2048}")
        for t in range(2):
            a(f"s_add_u32 m0, s57, {(c % RING) * stage + t * 2048}")
            a("s_nop 0")
            for i in range(2):
                a(f"buffer_load_dwordx4 v{8+t}, s[52:55], s58 offen offset:{i*1024}{SC} lds")
    return issue, 4
def w13(a, stage, nnt, wt_off, wt_bytes):
    n = 2 * nnt
    srd(a, 52, P_WS, wt_off, wt_bytes)
    a(f"""
    s_mul_i32 s10, s37, {41*n*1024}
    s_mul_i32 s11, s9, {n*1024}
    s_add_u32 s10, s10, s11
    v_lshl_add_u32 v8, v2, 4, s10
    v_add_u32 v9, 4096, v8
    s_add_u32 s57, s11, 8192
    """)
    def issue(c):
        a(f"s_mov_b32 s58, {c*2*n*1024}")
        for g in range((n + 3) // 4):
            a(f"s_add_u32 m0, s57, {(c % RING) * stage + g * 4096}")
            a("s_nop 0")
            for i in range(min(4, n - 4*g)):
                a(f"buffer_load_dwordx4 v{8+g}, s[52:55], s58 offen offset:{i*1024} lds")
    return issue, n

def c13_main(a, nnt, VX, VW, RS, FX, FW, ACC, XW, ST, XM, T, stage, per_set, wt_off, wt_bytes, st_off, mid_setup):
    nset = (RING + per_set - 1) // per_set
    stamp(a, 0); stamp_rt(a, 1)
    a(f"""
    s_mov_b32 s5, s36
    s_mov_b32 s6, s37
    s_lshr_b32 s8, s7, 1
    s_and_b32 s9, s7, 1
    v_and_b32 v3, 31, v2
    v_lshrrev_b32 v4, 5, v2
    """)
    srd(a, 52, P_WS, wt_off, wt_bytes)
    srd(a, 56, P_WS, st_off, 2048*64)
    a(f"""
    s_mul_i32 s10, s6, {41*2*nnt*1024}
    s_mul_i32 s11, s9, {nnt*1024}
    s_add_u32 s10, s10, s11
    s_add_u32 s10, s10, {40*2*nnt*1024}
    v_lshlrev_b32 v5, 4, v2
    s_lshl_b32 s13, s5, 7
    s_lshl_b32 s14, s8, 6
    s_add_u32 s12, s13, s14
    s_lshl_b32 s13, s12, 6
    v_lshl_add_u32 v6, v3, 3, s13
    v_lshl_add_u32 v6, v4, 11, v6
    """)
    for nt in range(nnt):
        a(f"buffer_load_dwordx4 {vr(XW+4*nt,4)}, v5, s[52:55], s10 offen offset:{nt*1024}")
    a(f"""
    s_add_u32 s11, s11, 8192
    v_add_u32 v{VW}, s11, v5
    s_lshl_b32 s14, s8, 12
    v_add_u32 v{VX}, s14, v5
    """)
    for s in range(1, nset):
        a(f"v_add_u32 v{VW+s}, {s*per_set*stage}, v{VW}")
        a(f"v_add_u32 v{VX+s}, {s*per_set*stage}, v{VX}")
    mid_setup()
    NB = 3
    def reads(s):
        c, ks = s // 2, s % 2
        buf = s % NB
        st = c % RING
        sset, sin = st // per_set, st % per_set
        for mt in range(2):
            a(f"ds_read_b128 {vr(FX + (buf*2+mt)*4, 4)}, v{VX + sset} offset:{sin*stage + mt*2048 + ks*1024}")
        for nt in range(nnt):
            a(f"ds_read_b128 {vr(FW + (buf*nnt+nt)*4, 4)}, v{VW + sset} offset:{sin*stage + (ks*2*nnt + nt)*1024}")
    nreads = 2 + nnt
    a("s_barrier")
    stamp(a, 2)
    reads(0); reads(1)
    for mt in range(2):
        for i in range(4):
            a(f"buffer_load_dwordx2 {vr(ST+8*mt+2*i,2)}, v6, s[56:59], 0 offen offset:{mt*256 + i*512}{SC}")
    NS = 2*NCH13
    for s in range(NS):
        buf = s % NB
        a(f"s_waitcnt lgkmcnt({nreads if s + 1 < NS else 0})")
        if s % 2 == 0 and s // 2 + 1 < NCH13:
            a("s_barrier")
            if s // 2 + 1 == NCH13 // 2: stamp(a, 4)
        if s == NS - 1:
            a("s_barrier")
        first = True
        for nt in range(nnt):
            for mt in range(2):
                acc = ACC + (nt*2+mt)*16
                cin = "0" if s == 0 else vr(acc, 16)
                a(f"v_mfma_f32_32x32x16_bf16 {vr(acc,16)}, {vr(FW + (buf*nnt+nt)*4, 4)}, {vr(FX + (buf*2+mt)*4, 4)}, {cin}")
                if first and s + 2 < NS:
                    reads(s + 2)
                first = False
        if s == 20:
            a("s_waitcnt vmcnt(0)")
            g13.stats_finish(a, ST, RS, XM, T)
            a("s_nop 1")
            for nt in range(nnt):
                for mt in range(2):
                    acc = ACC + (nt*2+mt)*16
                    a(f"v_mfma_f32_32x32x16_bf16 {vr(acc,16)}, {vr(XW+4*nt,4)}, {vr(XM+4*mt,4)}, {vr(acc,16)}")
    stamp(a, 3)

def c3(a):
    VX, VW, RS, FX, FW, ACC = 8, 12, 18, 24, 48, 84
    XW, ST, XM, T = 180, 192, 208, 20
    def mid():
        srd(a, 48, P_WS, WS_H, 2048*3072)
        a(f"""
        v_add_u32 v21, s12, v3
        v_lshrrev_b32 v22, 4, v21
        v_mul_u32_u24 v22, 49152, v22
        v_and_b32 v21, 15, v21
        v_lshl_add_u32 v22, v21, 4, v22
        v_lshl_add_u32 v22, v4, 8, v22
        v_add_u32 v23, {2*49152}, v22
        s_mul_i32 s10, s6, 6
        s_mul_i32 s11, s9, 3
        s_add_u32 s10, s10, s11
        s_lshl_b32 s61, s10, 9
        """)
    c13_main(a, 3, VX, VW, RS, FX, FW, ACC, XW, ST, XM, T, 20480, 3, WS_WT3, WT3_BYTES, WS_ST3, mid)
    for mt in range(2):
        a(f"v_mul_f32 v{8+2*mt}, v{RS+mt}, v{RS+mt}")
        a(f"v_mul_f32 v{9+2*mt}, v{RS+mt}, v{RS+mt}")
    a("s_nop 7")
    PK = 24
    for nt in range(3):
        for mt in range(2):
            acc = ACC + (nt*2+mt)*16
            dst = PK + (mt*3+nt)*4
            for r in range(8):
                a(f"v_max_f32 v{acc+r}, 0, v{acc+r}")
            for r in range(0, 8, 2):
                a(f"v_pk_mul_f32 {vr(acc+8+r,2)}, {vr(acc+8+r,2)}, {vr(8+2*mt,2)}")
            for r in range(0, 8, 2):
                a(f"v_pk_mul_f32 {vr(acc+r,2)}, {vr(acc+r,2)}, {vr(acc+8+r,2)}")
            for r in range(4):
                a(f"v_cvt_pk_bf16_f32 v{dst+r}, v{acc+2*r}, v{acc+2*r+1}")
            a(f"buffer_store_dwordx4 {vr(dst,4)}, v{22+mt}, s[48:51], s61 offen offset:{nt*512}{SC}")

def c1(a):
    VX, VW, RS, FX, FW, ACC = 8, 12, 18, 32, 56, 80
    XW, ST, XM, T = 144, 152, 168, 20
    c13_main(a, 2, VX, VW, RS, FX, FW, ACC, XW, ST, XM, T, 16384, 4, WS_WT1, WT1_BYTES, WS_ST1, lambda: g13.g1_epilogue_setup(a))
    if not MEGA:
        g13.g1_epilogue(a)
        stamp_flush(a, 0, 8)
        a("s_endpgm")
        return
    g13.g1_epilogue(a, SC)
    a(f"""
    s_lshl_b32 s12, s37, 1
    s_add_u32 s12, s12, s9
    s_lshl_b32 s12, s12, 7
    s_lshl_b32 s13, s36, 1
    s_add_u32 s13, s13, s8
    s_lshl_b32 s13, s13, 2
    s_add_u32 s12, s12, s13
    s_add_u32 s12, s12, {FL_G1}
    """)
    raise_flag(a)
    stamp_flush(a, 0, 8)

def gen_chain(a):
    entries = (("cha_kernel", 0),) if MEGA else (("cha_kernel", 0), ("chb_kernel", 1))
    def layer_regs(layer):
        a(f"s_mov_b32 s98, {layer}")
        if layer == 0:
            a(f"s_mov_b32 s94, s{P_AX}\ns_mov_b32 s95, s{P_AX+1}\ns_add_u32 s96, s{P_WS}, {WS_XB}\ns_addc_u32 s97, s{P_WS+1}, 0")
        else:
            a(f"s_add_u32 s94, s{P_WS}, {WS_XB}\ns_addc_u32 s95, s{P_WS+1}, 0\ns_mov_b32 s96, s{P_OUT}\ns_mov_b32 s97, s{P_OUT+1}")
    for name, layer in entries:
        kernel_header(a, name)
        a("s_cmp_ge_u32 s2, 256")
        a("s_cbranch_scc1 L_ch_exit")
        load_ptrs(a)
        maps(a)
        a("s_waitcnt lgkmcnt(0)")
        layer_regs(layer)
        if MEGA == 2:
            a("s_mov_b32 s62, 1")
            a("s_branch L_ch_att0")
        else:
            a("s_branch L_ch_body")
    a.label("L_ch_exit")
    a("s_endpgm")
    a.label("L_ch_body")
    a("s_cmp_lt_u32 s7, 4")
    a("s_cbranch_scc1 L_ch_compute")
    a("s_and_b32 s9, s7, 1")
    a("s_cmp_ge_u32 s7, 6")
    a("s_cbranch_scc1 L_ch_xload")
    fin = "s_branch L_ch_att" if MEGA else "s_endpgm"
    i, n = w24(a, WS_WT2, WT2_BYTES, 20); loader(a, i, n, 10, D24, True, None, 2)
    i, n = w13(a, 20480, 3, WS_WT3, WT3_BYTES); loader(a, i, n, NCH13, D13, False, None, 3)
    i, n = w24(a, WS_WT4, WT4_BYTES, 48); loader(a, i, n, 24, D24, False, None, 4)
    a("s_cmp_eq_u32 s98, 1")
    a("s_cbranch_scc1 L_ch_exit")
    i, n = w13(a, 16384, 2, WS_WT1, WT1_BYTES); loader(a, i, n, NCH13, D13, False, None, 0)
    a(fin)
    a.label("L_ch_xload")
    i, n = x24(a, WS_O, 20, SC); loader(a, i, n, 10, D24, True, 0, 2)
    i, n = x13(a, WS_XA, 20480); loader(a, i, n, NCH13, D13, False, 0, 3)
    i, n = x24(a, WS_H, 48, SC); loader(a, i, n, 24, D24, False, 1, 4)
    a("s_cmp_eq_u32 s98, 1")
    a("s_cbranch_scc1 L_ch_exit")
    i, n = x13(a, WS_XB, 16384); loader(a, i, n, NCH13, D13, False, 2, 0)
    a(fin)
    a.label("L_ch_compute")
    c24(a, "g2", 10, WS_ST3, 2); publish(a, 0); stamp_flush(a, 2, 8)
    c3(a); publish(a, 1); stamp_flush(a, 3, 8)
    c24(a, "g4", 24, WS_ST1, 4); publish(a, 2); stamp_flush(a, 4, 8)
    c1(a)
    if MEGA:
        a.label("L_ch_att")
        layer_regs(1)
        a("s_mov_b32 s62, 0")
        a.label("L_ch_att0")
        a.gemm = False
        def wait():
            l = a.newlabel("nopoll")
            l0 = a.newlabel("nowait")
            a("s_cmp_eq_u32 s98, 0")
            a(f"s_cbranch_scc1 {l0}")
            a("s_barrier")
            a("s_cmp_lg_u32 s7, 7")
            a(f"s_cbranch_scc1 {l}")
            srd(a, 44, P_WS, WS_FLAGS, FLAGS_BYTES)
            a(f"""
            s_mul_i32 s12, s5, 21846
            s_lshr_b32 s12, s12, 16
            s_add_u32 s10, s5, 32
            s_mul_i32 s10, s10, 21846
            s_lshr_b32 s10, s10, 16
            s_add_u32 s11, s5, 64
            s_mul_i32 s11, s11, 21846
            s_lshr_b32 s11, s11, 16
            s_lshl_b32 s12, s12, 7
            s_lshl_b32 s10, s10, 7
            s_lshl_b32 s11, s11, 7
            v_lshlrev_b32 v150, 2, v3
            v_add_u32 v150, {FL_G1}, v150
            v_add_u32 v151, s12, v150
            v_add_u32 v152, s10, v150
            s_mov_b64 exec, s[66:67]
            v_add_u32 v152, s11, v150
            s_mov_b64 exec, -1
            """)
            poll_v(a, [151, 152])
            a.label(l)
            a("s_barrier")
            a.label(l0)
        def done():
            a(f"""
            s_lshl_b32 s12, s6, 2
            s_add_u32 s12, s12, s8
            s_lshl_b32 s12, s12, 8
            s_lshl_b32 s13, s5, 3
            s_add_u32 s12, s12, s13
            s_lshl_b32 s13, s9, 2
            s_add_u32 s12, s12, s13
            s_add_u32 s12, s12, {FL_ATT}
            s_lshl_b32 s13, s98, 13
            s_add_u32 s12, s12, s13
            """)
            raise_flag(a)
            a("s_barrier")
            if MEGA == 2:
                l = a.newlabel("nowf")
                a(f"""
                s_or_b32 s12, s98, s7
                s_cmp_lg_u32 s12, 0
                s_cbranch_scc1 {l}
                s_lshl_b32 s12, s2, 2
                s_add_u32 s12, s12, {FL_W}
                """)
                raise_flag(a)
                a.label(l)
        if MEGA == 2: prep.configure8()
        att8.body(a, "L_m8", SC, SC, wait, done, None, MEGA == 2)
        a("s_branch L_ch_body")
    return [(e[0], 216) for e in entries]
```

```python
from asmlib import *
from layout import *
import g13, os
from g13 import f32, tile_map16, half_sum

STAGE = 32768
RING = 4
NCH = 10
STATS = 131072
LDS_BYTES = STATS + 4096

def gen_g1a(a):
    kernel_header(a, "g1a_kernel")
    a("s_cmp_ge_u32 s2, 256")
    a("s_cbranch_scc1 L_g1a_exit")
    load_ptrs(a)
    tile_map16(a)
    a("s_waitcnt lgkmcnt(0)")
    stamp(a, 0); stamp_rt(a, 1)
    a("s_cmp_lt_u32 s7, 4")
    a("s_cbranch_scc1 L_g1a_compute")
    VA = 8
    a("s_cmp_ge_u32 s7, 8")
    a("s_cbranch_scc1 L_g1a_stats")
    a("s_sub_u32 s9, s7, 4")
    a("s_cmp_ge_u32 s9, 2")
    a("s_cbranch_scc1 L_g1a_wl")
    srd(a, 52, P_AX, 0, 2048*1280)
    a(f"""
    v_lshrrev_b32 v3, 3, v2
    v_and_b32 v4, 7, v2
    v_lshrrev_b32 v5, 4, v2
    v_xor_b32 v4, v4, v5
    v_mul_u32_u24 v6, 1280, v3
    v_lshl_add_u32 v6, v4, 4, v6
    v_xor_b32 v7, 64, v6
    s_lshl_b32 s10, s5, 7
    s_lshl_b32 s11, s9, 6
    s_add_u32 s10, s10, s11
    s_mul_i32 s10, s10, 1280
    s_mov_b32 s56, 128
    s_lshl_b32 s57, s9, 13
    s_mov_b64 s[62:63], -1
    """)
    for i in range(8):
        a(f"s_add_u32 s11, s10, {8*i*1280}")
        a(f"v_add_u32 v{VA+i}, s11, v{6 + (i & 1)}")
    a("s_branch L_g1a_load")
    a.label("L_g1a_wl")
    srd(a, 52, P_WQKV, 0, 640*3840)
    m = (~((1 << 15) | (1 << 19) | (1 << 39) | (1 << 59))) & ((1 << 64) - 1)
    a(f"""
    s_sub_u32 s12, s9, 2
    v_lshrrev_b32 v5, 4, v2
    v_and_b32 v4, 15, v2
    v_lshlrev_b32 v6, 2, v5
    v_sub_u32 v4, v4, v6
    v_and_b32 v4, 15, v4
    v_mul_u32_u24 v6, 3840, v5
    v_lshl_add_u32 v6, v4, 4, v6
    s_mul_i32 s10, s12, {32*3840}
    s_mul_i32 s11, s6, 240
    s_add_u32 s10, s10, s11
    s_mov_b32 s56, {64*3840}
    s_lshl_b32 s57, s12, 13
    s_add_u32 s57, s57, 16384
    s_mov_b32 s62, 0x{m & 0xffffffff:08x}
    s_mov_b32 s63, 0x{m >> 32:08x}
    """)
    for i in range(8):
        a(f"s_add_u32 s11, s10, {4*i*3840}")
        a(f"v_add_u32 v{VA+i}, s11, v6")
    a.label("L_g1a_load")
    a("s_mov_b32 s58, 0")
    a("s_mov_b64 exec, s[62:63]")
    def issue(c):
        for i in range(8):
            a(f"s_add_u32 m0, s57, {(c % RING) * STAGE + i * 1024}")
            a("s_nop 0")
            a(f"buffer_load_dwordx4 v{VA+i}, s[52:55], s58 offen lds")
        a("s_add_u32 s58, s58, s56")
    g13.loader_loop(a, issue, 8, NCH, 2, 0)
    a.label("L_g1a_stats")
    a("s_sub_u32 s9, s7, 8")
    a("s_cmp_lg_u32 s9, 0")
    a("s_cbranch_scc1 L_g1a_nocpf")
    code_prefetch(a, "g1a_kernel", 56*1024, 64, 80, 81)
    a.label("L_g1a_nocpf")
    srd(a, 44, P_WS, WS_FLAGS, FLAGS_BYTES)
    a(f"""
    s_cmp_lg_u32 s9, 3
    s_cbranch_scc1 L_g1a_nofl
    s_lshl_b32 s10, s2, 8
    v_lshlrev_b32 v82, 2, v2
    v_mov_b32 v83, 0
    buffer_store_dword v83, v82, s[44:47], s10 offen
    """)
    a.label("L_g1a_nofl")
    TA = int(os.environ.get('TA', 4))
    srd(a, 44, P_AX, 0, 2048*1280)
    a(f"""
    s_mov_b64 s[62:63], 0
    s_cmp_eq_u32 s9, 1
    s_cbranch_scc0 L_g1a_tw
    s_mov_b64 s[62:63], 0xffff
    s_and_b32 s10, s6, 7
    s_lshl_b32 s10, s10, 4
    s_lshl_b32 s11, s5, 7
    s_add_u32 s10, s10, s11
    v_add_u32 v82, s10, v2
    v_mul_u32_u24 v82, 1280, v82
    s_movk_i32 s56, 128
    s_branch L_g1a_tgo
    """)
    a.label("L_g1a_tw")
    a(f"""
    v_mov_b32 v82, 0
    s_mov_b32 s56, 0
    s_cmp_eq_u32 s9, 2
    s_cbranch_scc0 L_g1a_tgo
    s_mov_b32 s62, -1
    s_movk_i32 s63, 0x7fff
    s_or_b32 s63, s63, 0x8000
    """)
    srd(a, 44, P_WQKV, 0, 640*3840)
    a(f"""
    v_mul_u32_u24 v83, 21846, v2
    v_lshrrev_b32 v83, 16, v83
    v_mul_u32_u24 v84, 3, v83
    v_sub_u32 v84, v2, v84
    v_mul_u32_u24 v84, 118, v84
    s_and_b32 s10, s5, 3
    s_lshl_b32 s10, s10, 4
    v_add_u32 v83, s10, v83
    v_mul_u32_u24 v83, 3840, v83
    v_add_u32 v82, v83, v84
    s_mul_i32 s11, s6, 240
    v_add_u32 v82, s11, v82
    v_and_b32 v82, -4, v82
    s_mov_b32 s56, {64*3840}
    """)
    a.label("L_g1a_tgo")
    a("s_lshl_b32 s58, s56, 1")
    def touch():
        l = a.newlabel("nt")
        a(f"""
        s_cmp_eq_u32 s56, 0
        s_cbranch_scc1 {l}
        s_mov_b64 exec, s[62:63]
        buffer_load_dword v85, v82, s[44:47], s58 offen
        s_mov_b64 exec, -1
        s_add_u32 s58, s58, s56
        """)
        a.label(l)
    for c in range(2, min(NCH, 2 + TA)):
        touch()
    VXR, VWR = 16, 18
    XD, WD = 24, 40
    SUM, SQ, CS, U = 56, 58, 60, 68
    a(f"""
    v_and_b32 v3, 31, v2
    v_lshrrev_b32 v4, 5, v2
    s_lshl_b32 s10, s9, 5
    v_add_u32 v5, s10, v3
    v_lshlrev_b32 v5, 7, v5
    v_lshrrev_b32 v6, 1, v3
    v_and_b32 v6, 7, v6
    v_lshlrev_b32 v7, 2, v4
    v_xor_b32 v6, v6, v7
    v_and_b32 v20, 3, v6
    v_and_b32 v6, 4, v6
    v_lshl_add_u32 v5, v6, 4, v5
    """)
    for i in range(4):
        a(f"v_xor_b32 v6, {i}, v20")
        a(f"v_lshl_add_u32 v{72+i}, v6, 4, v5")
        a(f"v_add_u32 v{76+i}, 65536, v{72+i}")
    for r in range(SUM, CS+8):
        a(f"v_mov_b32 v{r}, 0")
    for c in range(NCH):
        a("s_barrier")
        if c == 0: stamp(a, 2)
        if c == NCH//2: stamp(a, 4)
        if TA and c + 2 + TA < NCH: touch()
        st = c % RING
        sset, sin = st // 2, st % 2
        for i in range(4):
            a(f"ds_read_b128 {vr(XD+4*i,4)}, v{72+4*sset+i} offset:{sin*STAGE}")
        for r in range(16):
            if r % 4 == 0: a(f"s_waitcnt lgkmcnt({3 - r//4})")
            u = U + 2*(r & 1)
            a(f"v_lshlrev_b32 v{u}, 16, v{XD+r}")
            a(f"v_and_b32 v{u+1}, 0xffff0000, v{XD+r}")
            a(f"v_add_f32 v{SUM}, v{SUM}, v{u}")
            a(f"v_add_f32 v{SUM+1}, v{SUM+1}, v{u+1}")
            a(f"v_fmac_f32 v{SQ}, v{u}, v{u}")
            a(f"v_fmac_f32 v{SQ+1}, v{u+1}, v{u+1}")
    stamp(a, 3)
    a(f"v_add_f32 v{SUM}, v{SUM}, v{SUM+1}")
    a(f"v_add_f32 v{SUM+1}, v{SQ}, v{SQ+1}")
    half_sum(a, SUM, U); half_sum(a, SUM+1, U)
    a(f"""
    s_lshl_b32 s10, s9, 8
    s_add_u32 s10, s10, {STATS + 2048}
    v_lshl_add_u32 v5, v3, 3, s10
    ds_write_b64 v5, {vr(SUM,2)}
    s_waitcnt lgkmcnt(0)
    s_barrier
    """)
    stamp_flush(a, 0, 8)
    a.label("L_g1a_exit")
    a("s_endpgm")
    a.label("L_g1a_compute")
    VX, VW, RS, FX, FW, ACC = 8, 28, 18, 32, 56, 80
    CSA, ONES = 144, 160
    XW, XM, T = 56, 64, 20
    a(f"""
    s_lshr_b32 s8, s7, 1
    s_and_b32 s9, s7, 1
    v_and_b32 v3, 31, v2
    v_lshrrev_b32 v4, 5, v2
    s_lshl_b32 s13, s5, 7
    s_lshl_b32 s14, s8, 6
    s_add_u32 s12, s13, s14
    v_lshrrev_b32 v5, 1, v3
    v_and_b32 v5, 7, v5
    v_add_u32 v6, s14, v3
    v_lshlrev_b32 v6, 7, v6
    """)
    for ks in range(4):
        a(f"v_add_u32 v7, {2*ks}, v4")
        a(f"v_xor_b32 v7, v7, v5")
        a(f"v_lshl_add_u32 v{VX+ks}, v7, 4, v6")
        a(f"v_add_u32 v{VX+4+ks}, 65536, v{VX+ks}")
    a(f"""
    v_lshrrev_b32 v5, 4, v2
    v_and_b32 v5, 1, v5
    v_and_b32 v6, 3, v2
    v_lshl_add_u32 v5, v5, 2, v6
    v_lshlrev_b32 v5, 2, v5
    v_bfe_u32 v6, v2, 2, 2
    v_lshl_add_u32 v7, v4, 3, v6
    v_lshlrev_b32 v7, 8, v7
    v_add_u32 v7, 16384, v7
    s_mul_i32 s10, s9, 120
    v_lshl_add_u32 v6, v6, 6, s10
    """)
    for nt, tab in enumerate((0x76453120, 0x8E79DBCA)):
        a(f"""
        s_mov_b32 s11, 0x{tab:08x}
        v_bfe_u32 v{VW+nt}, s11, v5, 4
        v_lshl_add_u32 v{VW+nt}, v{VW+nt}, 3, v6
        v_and_b32 v{VW+nt}, 255, v{VW+nt}
        v_add_u32 v{VW+nt}, v{VW+nt}, v7
        v_add_u32 v{VW+2+nt}, 65536, v{VW+nt}
        """)
    a(f"""
    v_add_u32 v17, s14, v3
    v_lshlrev_b32 v17, 3, v17
    v_add_u32 v17, {STATS + 2048}, v17
    s_lshl_b32 s10, s9, 8
    s_add_u32 s10, s10, {STATS}
    v_lshl_add_u32 v16, v3, 2, s10
    s_lshl_b32 s11, s8, 7
    s_add_u32 s10, s10, s11
    v_lshl_add_u32 v5, v4, 4, s10
    v_mov_b32 v{ONES}, 0x3f803f80
    v_mov_b32 v{ONES+1}, 0x3f803f80
    v_mov_b32 v{ONES+2}, 0x3f803f80
    v_mov_b32 v{ONES+3}, 0x3f803f80
    """)
    g13.g1_epilogue_setup(a)
    NB = 3
    def reads(s):
        c, ks = s // 4, s % 4
        buf = s % NB
        st = c % RING
        sset, sin = st // 2, st % 2
        for mt in range(2):
            a(f"ds_read_b128 {vr(FX + (buf*2+mt)*4, 4)}, v{VX + sset*4 + ks} offset:{sin*STAGE + mt*4096}")
        for nt in range(2):
            for i in range(2):
                a(f"ds_read_b64_tr_b16 {vr(FW + (buf*2+nt)*4 + 2*i, 2)}, v{VW + sset*2 + nt} offset:{sin*STAGE + (16*ks+4*i)*256}")
    srd(a, 52, P_WS, WS_WT1, WT1_BYTES)
    a(f"""
    s_mul_i32 s69, s6, {41*4096}
    s_lshl_b32 s10, s9, 11
    s_add_u32 s70, s69, s10
    s_lshl_b32 s10, s8, 10
    s_add_u32 s69, s70, s10
    v_lshlrev_b32 v6, 4, v2
    """)
    a("s_barrier")
    stamp(a, 2)
    reads(0); reads(1)
    NS = 4*NCH
    for s in range(NS):
        buf = s % NB
        a(f"s_waitcnt lgkmcnt({6 if s + 1 < NS else 0})")
        if s % 4 == 2 and s // 4 + 1 < NCH:
            a("s_barrier")
            if s // 4 + 1 == NCH // 2: stamp(a, 4)
        first = True
        for nt in range(2):
            for mt in range(2):
                acc = ACC + (nt*2+mt)*16
                cin = "0" if s == 0 else vr(acc, 16)
                a(f"v_mfma_f32_32x32x16_bf16 {vr(acc,16)}, {vr(FW + (buf*2+nt)*4, 4)}, {vr(FX + (buf*2+mt)*4, 4)}, {cin}")
                if first and s + 2 < NS:
                    reads(s + 2)
                first = False
        l1, l2 = a.newlabel("cs"), a.newlabel("cs")
        cin = "0" if s == 0 else vr(CSA, 16)
        a("s_cmp_eq_u32 s8, 1")
        a(f"s_cbranch_scc1 {l1}")
        for nt in range(2):
            a(f"v_mfma_f32_32x32x16_bf16 {vr(CSA,16)}, {vr(FW + (buf*2+nt)*4, 4)}, {vr(ONES,4)}, {cin}")
            a(f"s_cmp_lg_u32 s5, {s % 16}")
            a(f"s_cbranch_scc1 {l2}")
            a(f"s_add_u32 s10, s69, {s*4096}")
            a(f"buffer_store_dwordx4 {vr(FW + (buf*2+nt)*4, 4)}, v6, s[52:55], s10 offen{os.environ.get('W1SC', ' sc1')}")
            if nt == 0:
                a(f"s_branch {l2}")
                a.label(l1)
        a.label(l2)
    stamp(a, 3)
    a("s_nop 15")
    a("s_mov_b32 exec_lo, 1")
    a("s_mov_b32 exec_hi, 1")
    for aa in range(4):
        a(f"ds_write_b128 v5, {vr(CSA+4*aa,4)} offset:{aa*32}")
    a("s_mov_b64 exec, -1")
    a("s_waitcnt lgkmcnt(0)")
    a("s_barrier")
    for nt in range(2):
        a(f"ds_read_b32 v{FX+4*nt}, v16 offset:{nt*128}")
    a(f"ds_read_b64 {vr(FX+8,2)}, v17")
    a(f"ds_read_b64 {vr(FX+10,2)}, v17 offset:256")
    a("s_waitcnt lgkmcnt(2)")
    for nt in range(2):
        c = FX + 4*nt
        x = XW + 4*nt
        a(f"""
        v_and_b32 v{c+1}, 0xffff0000, v{c}
        v_sub_f32 v{c}, v{c}, v{c+1}
        v_cvt_pk_bf16_f32 v{x+1}, v{c}, 0
        v_lshrrev_b32 v{c+2}, 16, v{c+1}
        v_or_b32 v{x}, v{c+1}, v{c+2}
        v_mov_b32 v{x+2}, 0
        v_mov_b32 v{x+3}, 0
        """)
    a(f"""
    s_mov_b64 exec, s[66:67]
    v_mov_b32 v{XW}, 0
    v_mov_b32 v{XW+1}, 0
    v_mov_b32 v{XW+4}, 0
    v_mov_b32 v{XW+5}, 0
    s_mov_b64 exec, -1
    s_mov_b32 s10, {f32(1.0/640)}
    s_waitcnt lgkmcnt(0)
    """)
    for mt in range(2):
        s = FX + 8 + 2*mt
        t = FX + 12
        x = XM + 4*mt
        a(f"""
        v_mul_f32 v{s}, s10, v{s}
        v_mul_f32 v{s+1}, s10, v{s+1}
        v_fma_f32 v{s+1}, -v{s}, v{s}, v{s+1}
        v_max_f32 v{s+1}, 0, v{s+1}
        v_add_f32 v{s+1}, {f32(1e-5)}, v{s+1}
        v_rsq_f32 v{RS+mt}, v{s+1}
        v_xor_b32 v{s}, 0x80000000, v{s}
        v_and_b32 v{t}, 0xffff0000, v{s}
        v_sub_f32 v{s}, v{s}, v{t}
        v_lshrrev_b32 v{x+1}, 16, v{t}
        v_cvt_pk_bf16_f32 v{t+1}, 0, v{s}
        v_or_b32 v{x}, v{x+1}, v{t+1}
        v_mov_b32 v{x+3}, v{x+1}
        v_mov_b32 v{x+2}, v{x}
        """)
    a("s_nop 1")
    for nt in range(2):
        for mt in range(2):
            acc = ACC + (nt*2+mt)*16
            a(f"v_mfma_f32_32x32x16_bf16 {vr(acc,16)}, {vr(XW+4*nt,4)}, {vr(XM+4*mt,4)}, {vr(acc,16)}")
    a(f"""
    s_or_b32 s10, s5, s8
    s_cmp_lg_u32 s10, 0
    s_cbranch_scc1 L_g1a_noxk
    s_add_u32 s10, s70, {40*4096}
    buffer_store_dwordx4 {vr(XW,4)}, v6, s[52:55], s10 offen
    buffer_store_dwordx4 {vr(XW+4,4)}, v6, s[52:55], s10 offen offset:1024
    """)
    a.label("L_g1a_noxk")
    a("s_nop 7")
    g13.g1_epilogue(a, os.environ.get('Q1SC', ''))
    stamp_flush(a, 0, 8)
    a("s_endpgm")
    return [("g1a_kernel", 164)]
```

```python
from asmlib import *
from layout import *

SRC, DST = 36, 68
SP, SP4 = 88, 89
SFLAG, SFLAG2, SQ_, SXK = 62, 63, 90, 91
LD, OUT = 108, 124
TMPS = (92, 93, 94, 95)
def configure8():
    global SRC, DST, SP, SP4, SQ_, SXK, LD, OUT, TMPS, PSTF
    SRC, DST, SP, SP4, SQ_, SXK = 88, 68, 92, 93, 99, 100
    LD, OUT = 160, 176
    TMPS = (10, 11, 15, 101)
    PSTF = " sc1"
import os
PSTF = os.environ.get('PSTF', '')
PVAR = int(os.environ.get('PVAR', 0))

def setup(a, L, VSRC, VDST, VXK, t0):
    R, A, B, C, D, G, L16 = t0, t0+1, t0+2, t0+3, t0+4, t0+5, t0+6
    ST, SB, S1, S2, SSEG = TMPS + (12,)
    def divmod_s(src, d, q, r, tmp):
        m = (1 << 20) // d + 1
        a(f"s_mul_i32 s{q}, s{src}, {m}")
        a(f"s_lshr_b32 s{q}, s{q}, 20")
        a(f"s_mul_i32 s{tmp}, s{q}, {d}")
        a(f"s_sub_u32 s{r}, s{src}, s{tmp}")
    a(f"""
    s_mov_b32 s{SFLAG2}, 0
    s_cmp_eq_u32 s{SFLAG}, 0
    s_cbranch_scc1 {L}_done
    s_mov_b32 s{SFLAG}, 0
    s_cmp_ge_u32 s7, 8
    s_cbranch_scc1 {L}_done
    s_cmp_eq_u32 s7, 5
    s_cbranch_scc1 {L}_done
    s_cmp_ge_u32 s2, 192
    s_cbranch_scc1 {L}_hi
    s_add_u32 s{ST}, s2, 120
    s_mov_b32 s{SB}, s7
    s_cmp_lt_u32 s7, 5
    s_cbranch_scc1 {L}_go
    s_lshl_b32 s{S2}, s2, 1
    s_add_u32 s{S2}, s{S2}, s7
    s_sub_u32 s{S2}, s{S2}, 6
    s_branch {L}_beta
    """)
    a.label(f"{L}_hi")
    a(f"""
    s_cmp_ge_u32 s7, 5
    s_cbranch_scc1 {L}_done
    s_sub_u32 s{S2}, s2, 192
    s_mul_i32 s{S2}, s{S2}, 5
    s_add_u32 s{S2}, s{S2}, s7
    s_add_u32 s{S2}, s{S2}, 384
    """)
    a.label(f"{L}_beta")
    a(f"""
    s_cmp_ge_u32 s{S2}, 680
    s_cbranch_scc1 {L}_done
    s_cmp_ge_u32 s{S2}, 200
    s_cbranch_scc1 {L}_bwd
    """)
    divmod_s(S2, 5, ST, SB, S1)
    a(f"""
    s_add_u32 s{ST}, s{ST}, 312
    s_branch {L}_go
    """)
    a.label(f"{L}_bwd")
    a(f"s_sub_u32 s{S2}, s{S2}, 200")
    divmod_s(S2, 6, ST, SB, S1)
    a(f"s_add_u32 s{ST}, s{ST}, 352")
    a.label(f"{L}_go")
    a(f"""
    s_mov_b32 s{SFLAG}, 1
    v_and_b32 v{L16}, 15, v2
    v_lshrrev_b32 v{G}, 4, v2
    s_cmp_ge_u32 s{ST}, 352
    s_cbranch_scc1 {L}_wd
    s_cmp_ge_u32 s{ST}, 312
    s_cbranch_scc1 {L}_wo
    s_mov_b32 s{SFLAG}, 2
    s_cmp_eq_u32 s{SB}, 0
    s_cselect_b32 s{SFLAG2}, 1, 0
    """)
    a.label(f"{L}_wgu")
    a(f"""
    s_cmp_ge_u32 s{ST}, 216
    s_cselect_b32 s{SRC}, s{P_WU}, s{P_WG}
    s_cselect_b32 s{SRC+1}, s{P_WU+1}, s{P_WG+1}
    s_cselect_b32 s14, 256, 0
    s_movk_i32 s{S1}, 120
    s_cselect_b32 s{S1}, 216, s{S1}
    s_sub_u32 s13, s{ST}, s{S1}
    s_mov_b32 s{SRC+2}, {640*3072}
    s_mov_b32 s{SRC+3}, 0x00020000
    """)
    srd(a, DST, P_WS, WS_WT3, WT3_BYTES)
    divmod_s(13, 24, SQ_, SSEG, S1)
    a(f"""
    s_lshl_b32 s{S1}, s{SSEG}, 4
    v_add_u32 v{R}, s{S1}, v{L16}
    v_lshrrev_b32 v{A}, 2, v{R}
    v_mul_u32_u24 v{B}, 43691, v{A}
    v_lshrrev_b32 v{B}, 18, v{B}
    v_mul_u32_u24 v{C}, 6, v{B}
    v_sub_u32 v{C}, v{A}, v{C}
    v_mul_u32_u24 v{B}, {41*6144}, v{B}
    v_lshl_add_u32 v{B}, v{C}, 10, v{B}
    v_and_b32 v{C}, 1, v{R}
    v_lshl_add_u32 v{B}, v{C}, 7, v{B}
    v_bfe_u32 v{C}, v{R}, 1, 1
    v_lshl_add_u32 v{B}, v{C}, 6, v{B}
    v_add_u32 v{VXK}, s14, v{B}
    s_movk_i32 s{SP}, 3072
    s_movk_i32 s{S2}, 6144
    """)
    a.label(f"{L}_c13")
    a(f"""
    s_lshl_b32 s{SP4}, s{SP}, 2
    s_mul_i32 s{SXK}, s{S2}, 40
    v_lshrrev_b32 v{A}, 1, v{G}
    v_mul_lo_u32 v{A}, v{A}, s{S2}
    v_add_u32 v{VDST}, v{A}, v{VXK}
    v_and_b32 v{A}, 1, v{G}
    v_lshl_add_u32 v{VDST}, v{A}, 9, v{VDST}
    s_mul_i32 s{S1}, s{SQ_}, 5
    s_add_u32 s{S1}, s{S1}, s{SB}
    s_mul_i32 s13, s{S1}, s{S2}
    s_lshl_b32 s13, s13, 1
    v_add_u32 v{VDST}, s13, v{VDST}
    s_lshl_b32 s13, s{SP}, 3
    v_mul_lo_u32 v{A}, v{G}, s13
    v_lshl_add_u32 v{A}, v{R}, 3, v{A}
    s_mul_i32 s13, s{S1}, s{SP}
    s_lshl_b32 s13, s13, 5
    v_add_u32 v{VSRC}, s13, v{A}
    s_branch {L}_done
    """)
    def dst24(nks):
        a(f"""
        s_lshl_b32 s{S1}, s{SSEG}, 4
        v_add_u32 v{R}, s{S1}, v{L16}
        v_lshrrev_b32 v{A}, 2, v{R}
        v_mul_u32_u24 v{B}, 52429, v{A}
        v_lshrrev_b32 v{B}, 18, v{B}
        v_mul_u32_u24 v{C}, 5, v{B}
        v_sub_u32 v{C}, v{A}, v{C}
        v_mul_u32_u24 v{B}, {nks*5120}, v{B}
        v_lshl_add_u32 v{B}, v{C}, 10, v{B}
        v_and_b32 v{C}, 3, v{R}
        v_lshl_add_u32 v{B}, v{C}, 6, v{B}
        v_lshl_add_u32 v{VDST}, v{G}, 8, v{B}
        s_movk_i32 s{SP}, 1280
        """)
    a.label(f"{L}_wo")
    srd(a, SRC, P_WO, 0, 640*1280)
    srd(a, DST, P_WS, WS_WT2, WT2_BYTES)
    a(f"s_sub_u32 s13, s{ST}, 312")
    divmod_s(13, 10, SQ_, SSEG, S1)
    dst24(20)
    a(f"""
    s_cmp_eq_u32 s{SB}, 4
    s_cbranch_scc1 {L}_wot
    s_movk_i32 s{SP4}, {8*1280}
    v_lshrrev_b32 v{A}, 1, v{G}
    v_mul_u32_u24 v{A}, {20*1280}, v{A}
    v_and_b32 v{B}, 1, v{G}
    v_mul_u32_u24 v{B}, {4*1280}, v{B}
    v_add_u32 v{A}, v{A}, v{B}
    v_lshl_add_u32 v{A}, v{R}, 3, v{A}
    s_lshl_b32 s{S1}, s{SQ_}, 2
    s_add_u32 s{S1}, s{S1}, s{SB}
    s_mul_i32 s13, s{S1}, {40*1280}
    v_add_u32 v{VSRC}, s13, v{A}
    s_mul_i32 s13, s{S1}, 5120
    v_add_u32 v{VDST}, s13, v{VDST}
    s_branch {L}_done
    """)
    a.label(f"{L}_wot")
    a(f"""
    s_movk_i32 s{SP4}, {20*1280}
    v_mul_u32_u24 v{A}, {40*1280}, v{G}
    v_lshl_add_u32 v{A}, v{R}, 3, v{A}
    s_mul_i32 s13, s{SQ_}, {160*1280}
    s_add_u32 s13, s13, {16*1280}
    v_add_u32 v{VSRC}, s13, v{A}
    s_add_u32 s13, s{SQ_}, 16
    s_mul_i32 s13, s13, 5120
    v_add_u32 v{VDST}, s13, v{VDST}
    s_branch {L}_done
    """)
    a.label(f"{L}_wd")
    srd(a, SRC, P_WD, 0, 1536*1280)
    srd(a, DST, P_WS, WS_WT4, WT4_BYTES)
    a(f"s_sub_u32 s13, s{ST}, 352")
    divmod_s(13, 10, SQ_, SSEG, S1)
    dst24(48)
    a(f"""
    s_movk_i32 s{SP4}, {4*1280}
    v_mul_u32_u24 v{A}, {8*1280}, v{G}
    v_lshl_add_u32 v{A}, v{R}, 3, v{A}
    s_mul_i32 s{S1}, s{SQ_}, 6
    s_add_u32 s{S1}, s{S1}, s{SB}
    s_mul_i32 s13, s{S1}, {32*1280}
    v_add_u32 v{VSRC}, s13, v{A}
    s_mul_i32 s13, s{S1}, 5120
    v_add_u32 v{VDST}, s13, v{VDST}
    """)
    a.label(f"{L}_done")

def issue_loads(a, L, VSRC):
    a(f"""
    s_cmp_eq_u32 s{SFLAG}, 0
    s_cbranch_scc1 {L}_nold
    s_mov_b32 s12, 0
    """)
    for e in range(8):
        if e == 4:
            a(f"s_mov_b32 s12, s{SP4}")
        elif e:
            a(f"s_add_u32 s12, s12, s{SP}")
        if PVAR != 2: a(f"buffer_load_dwordx2 {vr(LD+2*e,2)}, v{VSRC}, s[{SRC}:{SRC+3}], s12 offen")
    a.label(f"{L}_nold")

def stage1(a, L, VDST, CS, PART, tmp):
    a(f"""
    s_cmp_eq_u32 s{SFLAG}, 0
    s_cbranch_scc1 {L}_s1done
    s_mov_b32 s12, 0x05040100
    s_mov_b32 s13, 0x07060302
    s_mov_b32 s14, 0x3f803f80
    s_cmp_eq_u32 s{SFLAG}, 1
    """)
    for c in range(4):
        sel = "s12" if c % 2 == 0 else "s13"
        a(f"v_mov_b32 v{CS+c}, 0")
        for r in range(4):
            lo = LD + 4*r + c//2
            a(f"v_perm_b32 v{OUT+r}, v{lo+2}, v{lo}, {sel}")
        if PVAR != 1: a(f"buffer_store_dwordx4 {vr(OUT,4)}, v{VDST}, s[{DST}:{DST+3}], 0 offen offset:{c*16}{PSTF}")
        lb = a.newlabel("nodot")
        a(f"s_cbranch_scc1 {lb}")
        for r in range(4):
            a(f"v_dot2_f32_bf16 v{CS+c}, v{OUT+r}, s14, v{CS+c}")
        a.label(lb)
        a("s_nop 1")
    a(f"""
    s_cmp_eq_u32 s{SFLAG}, 1
    s_mov_b32 s{SFLAG}, 0
    s_cbranch_scc1 {L}_s1done
    s_nop 0
    """)
    for sw in ("v_permlane16_swap_b32", "v_permlane32_swap_b32"):
        for c in range(4):
            a(f"v_mov_b32 v{OUT+c}, v{CS+c}")
        a("s_nop 1")
        for c in range(4):
            a(f"{sw} v{CS+c}, v{OUT+c}")
        a("s_nop 1")
        for c in range(4):
            a(f"v_add_f32 v{CS+c}, v{CS+c}, v{OUT+c}")
    a(f"""
    s_lshl_b32 s12, s7, 8
    s_add_u32 s12, s12, {PART}
    v_and_b32 v{tmp}, 15, v2
    v_lshl_add_u32 v{tmp}, v{tmp}, 4, s12
    ds_write_b128 v{tmp}, {vr(CS,4)}
    s_waitcnt lgkmcnt(0)
    """)
    a.label(f"{L}_s1done")

def stage2(a, L, VXK, CS, PART, tmp):
    a(f"""
    s_cmp_eq_u32 s{SFLAG2}, 0
    s_cbranch_scc1 {L}_s2done
    s_mov_b32 s{SFLAG2}, 0
    s_lshl_b32 s12, s7, 8
    s_add_u32 s12, s12, {PART}
    v_and_b32 v{tmp}, 15, v2
    v_lshl_add_u32 v{tmp}, v{tmp}, 4, s12
    """)
    for b in range(1, 5):
        a(f"ds_read_b128 {vr(LD+4*(b-1),4)}, v{tmp} offset:{b*256}")
    a("s_waitcnt lgkmcnt(0)")
    for b in range(4):
        for c in range(4):
            a(f"v_add_f32 v{CS+c}, v{CS+c}, v{LD+4*b+c}")
    for c in range(4):
        a(f"""
        v_and_b32 v{OUT}, 0xffff0000, v{CS+c}
        v_sub_f32 v{CS+c}, v{CS+c}, v{OUT}
        v_cvt_pk_bf16_f32 v{LD+2*c+1}, v{CS+c}, 0
        v_lshrrev_b32 v{OUT+1}, 16, v{OUT}
        v_or_b32 v{LD+2*c}, v{OUT}, v{OUT+1}
        """)
    a(f"""
    s_lshr_b32 s12, s{SQ_}, 1
    s_lshl_b32 s12, s12, 9
    s_and_b32 s13, s{SQ_}, 1
    s_lshl_b32 s13, s13, 3
    s_add_u32 s12, s12, s13
    s_add_u32 s12, s12, s{SXK}
    s_mov_b64 exec, 0xffff
    """)
    for c in range(4):
        a(f"buffer_store_dwordx2 {vr(LD+2*c,2)}, v{VXK}, s[{DST}:{DST+3}], s12 offen offset:{16*c}{PSTF}")
    a("s_mov_b64 exec, -1")
    a.label(f"{L}_s2done")
```

```python
import os
NOLOAD = int(os.environ.get('NOLOAD', 0))
NOCOMP = int(os.environ.get('NOCOMP', 0))
NOMFMA = int(os.environ.get('NOMFMA', 0))
class Asm:
    def __init__(self):
        self.lines = []
        self.uid = 0
        self.gemm = False
    def __call__(self, s):
        for l in s.strip("\n").split("\n"):
            l = l.strip()
            if NOLOAD and self.gemm and l.endswith(" lds"): continue
            if NOCOMP and self.gemm and (l.startswith("v_mfma") or l.startswith("ds_read")): continue
            if NOMFMA and self.gemm and l.startswith("v_mfma"): continue
            if STF and l.startswith("buffer_store") and "s[68:71]" not in l: l += " " + STF
            self.lines.append("    " + l)
    def label(self, l):
        self.lines.append(l + ":")
    def raw(self, s):
        self.lines.append(s)
    def newlabel(self, base):
        self.uid += 1
        return f"L_{base}_{self.uid}"
    def text(self):
        return "\n".join(self.lines) + "\n"

def vr(b, n=1):
    return f"v{b}" if n == 1 else f"v[{b}:{b+n-1}]"
def sr(b, n=1):
    return f"s{b}" if n == 1 else f"s[{b}:{b+n-1}]"

def kernel_header(a, name):
    a.raw(f".globl {name}")
    a.raw(".p2align 8")
    a.raw(f".type {name},@function")
    a.label(name)

def kernel_desc(name, vgpr, sgpr=96, accum=None):
    if accum is None:
        accum = (vgpr + 3) // 4 * 4
    return f""".p2align 6
.amdhsa_kernel {name}
  .amdhsa_next_free_vgpr {vgpr}
  .amdhsa_next_free_sgpr {sgpr}
  .amdhsa_accum_offset {accum}
  .amdhsa_group_segment_fixed_size 0
  .amdhsa_kernarg_size 80
  .amdhsa_user_sgpr_count 2
  .amdhsa_user_sgpr_kernarg_segment_ptr 1
  .amdhsa_system_sgpr_workgroup_id_x 1
.end_amdhsa_kernel
"""

P_AX, P_WQKV, P_WO, P_BX, P_WG, P_WU, P_WD, P_OUT, P_DBG, P_WS = 16, 18, 20, 22, 24, 26, 28, 30, 32, 34

def load_ptrs(a):
    a("s_load_dwordx16 s[16:31], s[0:1], 0")
    a("s_load_dwordx4 s[32:35], s[0:1], 64")

def srd(a, d, ptr, off, nbytes):
    if off:
        a(f"s_add_u32 s{d}, s{ptr}, {off}")
        a(f"s_addc_u32 s{d+1}, s{ptr+1}, 0")
    else:
        a(f"s_mov_b32 s{d}, s{ptr}")
        a(f"s_mov_b32 s{d+1}, s{ptr+1}")
    a(f"s_mov_b32 s{d+2}, {nbytes}")
    a(f"s_mov_b32 s{d+3}, 0x00020000")

STAMPS = False
from layout import WS_STAMP
def stamp(a, k):
    if STAMPS:
        a(f"s_memtime s[{72+2*k}:{73+2*k}]")
def stamp_rt(a, k):
    if STAMPS:
        a(f"s_memrealtime s[{72+2*k}:{73+2*k}]")
def stamp_flush(a, kid, n, wave_sgpr="s7"):
    if not STAMPS: return
    a("s_waitcnt vmcnt(0) lgkmcnt(0)")
    stamp(a, n-2)
    stamp_rt(a, n-1)
    a("s_mov_b64 exec, -1")
    srd(a, 68, P_WS, WS_STAMP, 0x1000000)
    a(f"s_add_u32 s10, s2, {kid*256}")
    a(f"s_lshl_b32 s10, s10, 4")
    a(f"s_add_u32 s10, s10, {wave_sgpr}")
    a(f"s_lshl_b32 s10, s10, 6")
    a("s_waitcnt lgkmcnt(0)")
    for k in range(n):
        a(f"v_mov_b32 v1, s{72+2*k}")
        a(f"buffer_store_dword v1, off, s[68:71], s10 offset:{4*k}")

PF = int(os.environ.get('PF', 1))
def l2_prefetch_setup(a, srd_reg, ws_off, half_bytes, nslice, slice_sgpr, vtmp, stmp, xcd_half_sgpr):
    per = (half_bytes + nslice - 1) // nslice
    per = (per + 127) // 128 * 128
    srd(a, srd_reg, P_WS, ws_off, 2*half_bytes)
    a(f"s_mul_i32 s{stmp}, s{xcd_half_sgpr}, {half_bytes}")
    a(f"s_mul_i32 s{stmp+1}, s{slice_sgpr}, {per}")
    a(f"s_add_u32 s{stmp}, s{stmp}, s{stmp+1}")
    a(f"s_add_u32 s{srd_reg+2}, s{stmp}, {per}")
    a(f"s_min_u32 s{srd_reg+2}, s{srd_reg+2}, {2*half_bytes}")
    a(f"v_lshlrev_b32 v{vtmp}, 7, v2")
    return (per + 8191) // 8192
def l2_touch(a, srd_reg, vtmp, vdst, stmp):
    a(f"buffer_load_dword v{vdst}, v{vtmp}, s[{srd_reg}:{srd_reg+3}], s{stmp} offen")
    a(f"s_add_u32 s{stmp}, s{stmp}, 8192")
def l2_prefetch(a, srd_reg, ws_off, half_bytes, nslice_log2, slice_sgpr, vtmp, vdst, stmp, xcd_half_sgpr):
    n = l2_prefetch_setup(a, srd_reg, ws_off, half_bytes, 1 << nslice_log2, slice_sgpr, vtmp, stmp, xcd_half_sgpr)
    for i in range(n):
        l2_touch(a, srd_reg, vtmp, vdst, stmp)

CPF = 0
STF = os.environ.get('STF', '')
def code_prefetch(a, start_label, nbytes, sp, vtmp, vdst):
    if not CPF: return
    l = a.newlabel("pc")
    a(f"s_getpc_b64 s[{sp}:{sp+1}]")
    a.label(l)
    a(f"s_sub_u32 s{sp}, s{sp}, {l}-{start_label}")
    a(f"s_subb_u32 s{sp+1}, s{sp+1}, 0")
    a(f"v_lshlrev_b32 v{vtmp}, 7, v2")
    for i in range((nbytes + 8191) // 8192):
        if i: a(f"v_add_u32 v{vtmp}, 8192, v{vtmp}")
        a(f"global_load_dword v{vdst}, v{vtmp}, s[{sp}:{sp+1}]")

LOFF = 0x4000000
def srd_l(a, d, off, nbytes):
    srd(a, d, P_WS, off, nbytes)
    a(f"s_lshl_b32 s{d+3}, s98, 26")
    a(f"s_add_u32 s{d}, s{d}, s{d+3}")
    a(f"s_addc_u32 s{d+1}, s{d+1}, 0")
    a(f"s_mov_b32 s{d+3}, 0x00020000")
```

```python
from asmlib import *
from layout import *
import os, prep

HSTG = 24576
STG = 2 * HSTG
NSTG = 3
FLAG = NSTG * STG
PART = FLAG + 64
LDS_BYTES = PART + 2048
PFC = int(os.environ.get('PFC', 2))
PRIO8 = int(os.environ.get('PRIO8', 1))

def body(a, L, sc_load="", sc_store="", wait_hook=None, end_hook=None, layer_flag_zero=None, with_prep=False, wready_hook=None, late_hook=None):
    VDMA, VKM0, VKT0, VV0, VKM, VKT, VV = 5, 6, 7, 8, 10, 11, 12
    Q = [16, 24]
    KM, KT = 32, 40
    VF = 44
    P = [60, 68]
    O = [76, 92]
    S = [108, 124]
    T = 140
    a(f"""
    s_and_b32 s3, s2, 7
    s_lshl_b32 s5, s3, 2
    s_bfe_u32 s4, s2, 0x20003
    s_add_u32 s5, s5, s4
    s_lshr_b32 s6, s2, 5
    v_and_b32 v3, 31, v2
    v_lshrrev_b32 v4, 5, v2
    v_lshlrev_b32 v14, 2, v4
    v_xor_b32 v14, v14, v3
    v_lshlrev_b32 v14, 4, v14
    v_lshl_add_u32 v{VKM0}, v4, 9, v14
    v_xor_b32 v14, 8, v3
    v_lshlrev_b32 v14, 4, v14
    v_lshl_add_u32 v14, v4, 3, v14
    v_add_u32 v{VKT0}, 1024, v14
    v_bfe_u32 v15, v2, 4, 1
    v_and_b32 v{T}, 3, v2
    v_lshlrev_b32 v{T+1}, 1, v15
    v_sub_u32 v{T+1}, 3, v{T+1}
    v_min_u32 v{T}, v{T}, v{T+1}
    v_lshl_add_u32 v{T}, v15, 2, v{T}
    v_lshrrev_b32 v{T+1}, 1, v{T}
    v_and_b32 v{T}, 1, v{T}
    v_bfe_u32 v14, v2, 2, 2
    v_lshl_add_u32 v14, v4, 2, v14
    v_lshlrev_b32 v{T+2}, 2, v{T+1}
    v_xor_b32 v14, v14, v{T+2}
    v_lshlrev_b32 v14, 4, v14
    v_lshl_add_u32 v14, v{T+1}, 9, v14
    v_lshl_add_u32 v14, v{T}, 3, v14
    v_add_u32 v{VV0}, 12288, v14
    v_xor_b32 v{VV0+1}, 128, v{VV0}
    s_and_b32 s8, s7, 3
    s_lshr_b32 s9, s7, 2
    s_mul_i32 s59, s9, {HSTG}
    s_bfe_u32 s10, s7, 0x10001
    s_lshl_b32 s10, s10, 5
    s_add_u32 s10, s10, 32
    s_add_u32 s10, s10, s5
    s_mul_i32 s10, s10, 98304
    s_mul_i32 s11, s9, 49152
    s_add_u32 s10, s10, s11
    s_and_b32 s11, s7, 1
    s_mul_i32 s11, s11, 6144
    s_add_u32 s10, s10, s11
    v_lshl_add_u32 v{VDMA}, v2, 4, s10
    v_add_u32 v15, 3072, v{VDMA}
    s_mul_i32 s53, s7, 6144
    s_lshl_b32 s10, s6, 3
    s_lshl_b32 s11, s8, 1
    s_add_u32 s10, s10, s11
    s_lshl_b32 s54, s10, 5
    s_mul_i32 s10, s10, 1536
    s_mul_i32 s11, s5, 98304
    s_add_u32 s55, s10, s11
    s_mov_b32 s64, -1
    s_mov_b32 s65, 0
    s_mov_b32 s66, 0
    s_mov_b32 s67, -1
    s_mov_b32 s56, 0
    v_mov_b32 v{T}, 0
    v_mov_b32 v{T+1}, {FLAG}
    ds_write_b32 v{T+1}, v{T}
    s_waitcnt lgkmcnt(0)
    """)
    stamp(a, 0); stamp_rt(a, 1)
    if wait_hook:
        srd_l(a, 40, WS_QKV, 96*98304)
        srd_l(a, 48, WS_O, 2048*1280)
    else:
        srd(a, 40, P_WS, WS_QKV, 96*98304)
        srd(a, 48, P_WS, WS_O, 2048*1280)
    if layer_flag_zero: layer_flag_zero(T)
    if wait_hook: wait_hook()
    def dma_i(i, ssoff, sbase):
        a(f"s_add_u32 m0, {sbase}, {3072*(i//3)}")
        a("s_nop 0")
        a(f"buffer_load_dwordx4 v{VDMA if i < 3 else 15}, s[40:43], {ssoff} offen offset:{(i%3)*1024}{sc_load} lds")
    def dma0():
        for i in range(6): dma_i(i, "0", "s53")
    for b in range(2):
        a(f"buffer_load_dwordx4 {vr(Q[b],4)}, v{VKM0}, s[40:43], s55 offen offset:{b*1536}{sc_load}")
        a(f"buffer_load_dwordx2 {vr(Q[b]+4,2)}, v{VKT0}, s[40:43], s55 offen offset:{b*1536}{sc_load}")
    a.label(f"{L}_restart")
    a("s_bitcmp1_b32 s7, 0")
    a(f"s_cbranch_scc1 {L}_late")
    dma0()
    a.label(f"{L}_late")
    if with_prep:
        srd(a, 88, P_WS, WS_WT2, 0)
        srd(a, 68, P_WS, WS_WT2, 0)
        a("v_mov_b32 v180, 0\nv_mov_b32 v181, 0\nv_mov_b32 v182, 0\ns_mov_b32 s92, 0\ns_mov_b32 s93, 0\ns_mov_b32 s99, 0\ns_mov_b32 s100, 0")
        prep.setup(a, L + "p", 180, 181, 182, 190)
        a("s_mov_b32 s57, 0")
    for b in range(2):
        for r in range(16):
            a(f"v_mov_b32 v{O[b]+r}, 0")
    for r in range(8):
        a(f"v_mov_b32 v{P[1]+r}, 0")
        a(f"v_mov_b32 v{VF+8+r}, 0")
    a(f"""
    v_add_u32 v{VKM}, s59, v{VKM0}
    v_add_u32 v{VKT}, s59, v{VKT0}
    s_mov_b32 s52, 0
    s_mov_b32 s58, s59
    s_mov_b32 s60, 12288
    s_add_u32 s61, s53, {STG}
    s_waitcnt vmcnt(0)
    """)
    stamp(a, 5)
    a(f"""
    s_barrier
    ds_read_b128 {vr(KM,4)}, v{VKM}
    ds_read_b64 {vr(KT,2)}, v{VKT}
    s_cmp_lg_u32 s56, 0
    s_cbranch_scc1 {L}_have_m
    ds_read_b128 {vr(KM+4,4)}, v{VKM0}
    ds_read_b64 {vr(KT+2,2)}, v{VKT0}
    s_mov_b64 exec, s[66:67]
    v_mov_b32 v{Q[0]+4}, 0
    v_mov_b32 v{Q[0]+5}, 0
    v_mov_b32 v{Q[1]+4}, 0
    v_mov_b32 v{Q[1]+5}, 0
    s_mov_b64 exec, -1
    s_waitcnt lgkmcnt(0)
    s_nop 1
    """)
    for b in range(2):
        a(f"v_mfma_f32_32x32x16_bf16 {vr(S[b],16)}, {vr(KM+4,4)}, {vr(Q[b],4)}, 0")
        a(f"v_mfma_f32_32x32x8_bf16 {vr(S[b],16)}, {vr(KT+2,2)}, {vr(Q[b]+4,2)}, {vr(S[b],16)}")
    a("s_nop 9")
    for b in range(2):
        m = T + 4*b
        a(f"v_max3_f32 v{m}, v{S[b]}, v{S[b]+1}, v{S[b]+2}")
        for r in range(3, 15, 2):
            a(f"v_max3_f32 v{m}, v{m}, v{S[b]+r}, v{S[b]+r+1}")
        a(f"v_max_f32 v{m}, v{m}, v{S[b]+15}")
    a.label(f"{L}_set_m")
    for b in range(2):
        m = T + 4*b
        a(f"""
        v_mov_b32 v{m+1}, v{m}
        s_nop 1
        v_permlane32_swap_b32 v{m}, v{m+1}
        s_nop 1
        v_max_f32 v{m}, v{m}, v{m+1}
        v_xor_b32 v{m}, 0x80000000, v{m}
        v_and_b32 v{m+1}, 0xffff0000, v{m}
        v_sub_f32 v{m}, v{m}, v{m+1}
        v_and_b32 v{m+2}, 0xffff0000, v{m}
        v_sub_f32 v{m}, v{m}, v{m+2}
        v_lshrrev_b32 v{m+1}, 16, v{m+1}
        s_mov_b64 exec, s[66:67]
        v_or_b32 v{Q[b]+4}, v{m+1}, v{m+2}
        v_lshrrev_b32 v{Q[b]+5}, 16, v{m}
        s_mov_b64 exec, -1
        """)
    a(f"""
    s_cmp_lg_u32 s56, 0
    s_cbranch_scc1 {L}_restart
    """)
    a.label(f"{L}_have_m")
    a(f"""
    v_mov_b32 v{S[1]+14}, 0
    v_mov_b32 v{S[1]+15}, 0
    s_waitcnt lgkmcnt(0)
    v_mfma_f32_32x32x16_bf16 {vr(S[0],16)}, {vr(KM,4)}, {vr(Q[0],4)}, 0
    v_mfma_f32_32x32x8_bf16 {vr(S[0],16)}, {vr(KT,2)}, {vr(Q[0]+4,2)}, {vr(S[0],16)}
    s_nop 13
    s_bitcmp0_b32 s7, 0
    s_cbranch_scc1 {L}_early
    """)
    dma0()
    a.label(f"{L}_early")
    stamp(a, 2)
    a.raw(".p2align 6")
    a.label(f"{L}_loop")
    def phase(X, Y, kb, vb, pre=None, mid=None, waits=(None, None)):
        Sx, Sy = S[X], S[Y]
        e = lambda i: a(f"v_exp_f32 v{Sx+i}, v{Sx+i}")
        c = lambda i: a(f"v_cvt_pk_bf16_f32 v{P[X]+i}, v{Sx+2*i}, v{Sx+2*i+1}")
        e(0)
        a(f"v_cvt_pk_bf16_f32 v{P[Y]+7}, v{Sy+14}, v{Sy+15}")
        e(1)
        if pre: pre()
        if waits[0] is not None: a(f"s_waitcnt lgkmcnt({waits[0]})")
        a(f"v_mfma_f32_32x32x16_bf16 {vr(Sy,16)}, {vr(KM+4*kb,4)}, {vr(Q[Y],4)}, 0")
        if mid: mid()
        e(2); c(0); e(3); e(4); c(1)
        a(f"v_mfma_f32_32x32x8_bf16 {vr(Sy,16)}, {vr(KT+2*kb,2)}, {vr(Q[Y]+4,2)}, {vr(Sy,16)}")
        e(5); e(6); c(2); e(7); e(8)
        if waits[1] is not None: a(f"s_waitcnt lgkmcnt({waits[1]})")
        a(f"v_mfma_f32_32x32x16_bf16 {vr(O[Y],16)}, {vr(VF+8*vb,4)}, {vr(P[Y],4)}, {vr(O[Y],16)}")
        c(3); e(9); e(10); c(4); e(11); e(12)
        a(f"v_mfma_f32_32x32x16_bf16 {vr(O[Y],16)}, {vr(VF+8*vb+4,4)}, {vr(P[Y]+4,4)}, {vr(O[Y],16)}")
        c(5); e(13); e(14); c(6); e(15)
    for t in range(8):
        kb, vb = t & 1, t & 1
        def pre():
            if PRIO8 and t % 2 == 0:
                a(f"s_setprio {[2,1,0,3][t//2] if t != 6 else 0}")
            if t == 0:
                a(f"v_add_u32 v{VV}, s58, v{VV0}")
                a(f"v_add_u32 v{VV+1}, s58, v{VV0+1}")
        def mid():
            if t == 3:
                lab = a.newlabel("nobar")
                a(f"""
                s_cmp_lg_u32 s52, 0
                s_cbranch_scc1 {lab}
                s_waitcnt vmcnt(3)
                s_barrier
                """)
                a.label(lab)
            if t == 7:
                a(f"""
                s_add_u32 s58, s58, {STG}
                s_cmp_ge_u32 s58, {NSTG*STG}
                s_cselect_b32 s58, s59, s58
                v_add_u32 v{VKM}, s58, v{VKM0}
                v_add_u32 v{VKT}, s58, v{VKT0}
                """)
                if with_prep:
                    w1, w2 = a.newlabel("w"), a.newlabel("w")
                    a(f"""
                    s_cmp_eq_u32 s57, 8
                    s_waitcnt vmcnt(8)
                    s_cbranch_scc1 {w1}
                    s_cmp_eq_u32 s57, 4
                    s_waitcnt vmcnt(4)
                    s_cbranch_scc1 {w1}
                    s_waitcnt vmcnt(0)
                    """)
                    a.label(w1)
                    a("s_mov_b32 s57, 0")
                else:
                    a("s_waitcnt vmcnt(0)")
                a(f"""
                s_barrier
                s_add_u32 s60, s60, 12288
                s_add_u32 s61, s61, {STG}
                s_cmp_ge_u32 s61, {NSTG*STG}
                s_cselect_b32 s61, s53, s61
                """)
                if PRIO8: a("s_setprio 3")
                if wready_hook: wready_hook()
                if PF & 1:
                    lab2 = a.newlabel("nopf")
                    a(f"""
                    s_cmp_lg_u32 s52, {PFC}
                    s_cbranch_scc1 {lab2}
                    {"s_cmp_eq_u32 s98, 0" if with_prep else "s_nop 0"}
                    {"s_cbranch_scc1 " + lab2 if with_prep else "s_nop 0"}
                    s_lshr_b32 s12, s2, 3
                    s_lshl_b32 s12, s12, 3
                    s_add_u32 s12, s12, s7
                    s_lshr_b32 s13, s3, 2
                    """)
                    l2_prefetch(a, 44, WS_WT2, WT2_BYTES//2, 8, 12, T+4, T+5, 14, 13)
                    l2_prefetch(a, 44, WS_WT3, WT3_BYTES//2, 8, 12, T+4, T+5, 14, 13)
                    if PF & 8:
                        l2_prefetch(a, 44, WS_WT4, WT4_BYTES//2, 8, 12, T+4, T+5, 14, 13)
                    a.label(lab2)
            if t == 6 and with_prep:
                l0, l2 = a.newlabel("pp"), a.newlabel("pp")
                a(f"""
                s_cmp_eq_u32 s62, 0
                s_cbranch_scc1 {l2}
                s_cmp_lg_u32 s52, 0
                s_cbranch_scc1 {l0}
                s_mov_b32 s57, 8
                """)
                prep.issue_loads(a, L + "p", 180)
                a(f"s_branch {l2}")
                a.label(l0)
                a(f"""
                s_mov_b32 s57, 4
                s_waitcnt vmcnt(6)
                """)
                prep.stage1(a, L + "p", 181, 184, PART, 183)
                a.label(l2)
            if t == 0 and with_prep:
                l2 = a.newlabel("pp")
                a(f"s_cmp_lg_u32 s52, 2")
                a(f"s_cbranch_scc1 {l2}")
                prep.stage2(a, L + "p", 182, 184, PART, 183)
                a.label(l2)
            if t == 4 and with_prep and late_hook:
                late_hook(T)
            if t < 6:
                lab = a.newlabel("nodma")
                a(f"s_cmp_eq_u32 s52, 3")
                a(f"s_cbranch_scc1 {lab}")
                dma_i(t, "s60", "s61")
                a.label(lab)
            kt = (t+1) % 8
            a(f"ds_read_b128 {vr(KM+4*(kb^1),4)}, v{VKM} offset:{kt*1536}")
            a(f"ds_read_b64 {vr(KT+2*(kb^1),2)}, v{VKT} offset:{kt*1536}")
            for j in range(2):
                for i in range(2):
                    a(f"ds_read_b64_tr_b16 {vr(VF+8*vb+4*j+2*i,2)}, v{VV+i} offset:{t*1536 + j*256}")
        phase(0, 1, kb, vb ^ 1, pre, mid)
        phase(1, 0, kb ^ 1, vb, None, None, (4, 0))
    a(f"""
    s_add_u32 s52, s52, 1
    s_cmp_lt_u32 s52, 4
    s_cbranch_scc1 {L}_loop
    """)
    stamp(a, 3)
    a(f"""
    s_nop 0
    v_cvt_pk_bf16_f32 v{P[1]+7}, v{S[1]+14}, v{S[1]+15}
    s_setprio 0
    s_nop 1
    v_mfma_f32_32x32x16_bf16 {vr(O[1],16)}, {vr(VF+8,4)}, {vr(P[1],4)}, {vr(O[1],16)}
    v_mfma_f32_32x32x16_bf16 {vr(O[1],16)}, {vr(VF+12,4)}, {vr(P[1]+4,4)}, {vr(O[1],16)}
    s_mul_i32 s10, s8, 6144
    s_add_u32 s10, s10, {STG}
    v_lshl_add_u32 v{T+3}, v2, 4, s10
    v_add_u32 v13, s54, v3
    v_lshrrev_b32 v14, 4, v13
    v_mul_u32_u24 v14, 20480, v14
    v_and_b32 v13, 15, v13
    v_lshl_add_u32 v14, v13, 4, v14
    v_lshl_add_u32 v13, v4, 8, v14
    s_lshl_b32 s10, s5, 9
    s_lshr_b32 s11, s5, 1
    s_lshl_b32 s11, s11, 8
    s_and_b32 s12, s5, 1
    s_lshl_b32 s12, s12, 3
    s_add_u32 s11, s11, s12
    s_add_u32 s11, s11, 16384
    s_nop 4
    """)
    a(f"""
    s_cmp_eq_u32 s9, 0
    s_cbranch_scc1 {L}_lo
    """)
    for k in range(3):
        a(f"ds_write_b128 v{T+3}, {vr(O[0]+4*k,4)} offset:{1024*k}")
    for r in range(12):
        a(f"v_mov_b32 v{O[0]+r}, v{O[1]+r}")
    a(f"""
    v_add_u32 v{T+3}, 3072, v{T+3}
    v_add_u32 v13, 40960, v13
    v_add_u32 v14, 40960, v14
    s_branch {L}_x
    """)
    a.label(f"{L}_lo")
    for k in range(3):
        a(f"ds_write_b128 v{T+3}, {vr(O[1]+4*k,4)} offset:{3072 + 1024*k}")
    a.label(f"{L}_x")
    Oa, Sa, Pa = O[0], S[0], P[0]
    a(f"""
    s_waitcnt lgkmcnt(0)
    s_barrier
    ds_read_b128 {vr(Sa,4)}, v{T+3}
    ds_read_b128 {vr(Sa+4,4)}, v{T+3} offset:1024
    ds_read_b128 {vr(Sa+8,4)}, v{T+3} offset:2048
    s_waitcnt lgkmcnt(0)
    """)
    for r in range(0, 12, 2):
        a(f"v_pk_add_f32 {vr(Oa+r,2)}, {vr(Oa+r,2)}, {vr(Sa+r,2)}")
    a(f"""
    v_mov_b32 v{T}, v{Oa+8}
    v_mov_b32 v{T+1}, v{Oa+8}
    v_mul_f32 v{T+2}, 0, v{Oa}
    s_nop 0
    v_permlane32_swap_b32 v{T}, v{T+1}
    """)
    for r in range(1, 12):
        a(f"v_fma_f32 v{T+2}, 0, v{Oa+r}, v{T+2}")
    a(f"v_rcp_f32 v{T+1}, v{T+1}")
    a(f"v_cmp_u_f32 vcc, v{T+2}, v{T+2}")
    for r in range(12):
        a(f"v_mul_f32 v{Oa+r}, v{Oa+r}, v{T+1}")
    for r in range(6):
        a(f"v_cvt_pk_bf16_f32 v{Pa+r}, v{Oa+2*r}, v{Oa+2*r+1}")
    a(f"""
    buffer_store_dwordx4 {vr(Pa,4)}, v13, s[48:51], s10 offen{sc_store}
    s_mov_b64 exec, s[64:65]
    buffer_store_dwordx2 {vr(Pa+4,2)}, v14, s[48:51], s11 offen{sc_store}
    s_mov_b64 exec, -1
    s_cmp_lg_u32 s56, 0
    s_cbranch_scc1 {L}_done
    v_mov_b32 v{T+1}, {FLAG}
    s_cbranch_vccz {L}_ok
    v_mov_b32 v{T}, 1
    ds_write_b32 v{T+1}, v{T}
    """)
    a.label(f"{L}_ok")
    a(f"""
    s_waitcnt lgkmcnt(0)
    s_barrier
    ds_read_b32 v{T}, v{T+1}
    s_waitcnt lgkmcnt(0)
    v_readfirstlane_b32 s10, v{T}
    s_nop 3
    s_cmp_eq_u32 s10, 0
    s_cbranch_scc1 {L}_done
    s_mov_b32 s56, 1
    s_mov_b64 exec, s[66:67]
    v_mov_b32 v{Q[0]+4}, 0
    v_mov_b32 v{Q[0]+5}, 0
    v_mov_b32 v{Q[1]+4}, 0
    v_mov_b32 v{Q[1]+5}, 0
    s_mov_b64 exec, -1
    v_mov_b32 v{T}, 0xff800000
    v_mov_b32 v{T+4}, 0xff800000
    s_add_u32 s10, s5, 32
    s_mul_i32 s10, s10, 98304
    s_mov_b32 s11, 64
    """)
    a.label(f"{L}_maxloop")
    a(f"""
    buffer_load_dwordx4 {vr(KM,4)}, v{VKM0}, s[40:43], s10 offen{sc_load}
    buffer_load_dwordx2 {vr(KT,2)}, v{VKT0}, s[40:43], s10 offen{sc_load}
    s_waitcnt vmcnt(0)
    """)
    for b in range(2):
        a(f"v_mfma_f32_32x32x16_bf16 {vr(S[b],16)}, {vr(KM,4)}, {vr(Q[b],4)}, 0")
        a(f"v_mfma_f32_32x32x8_bf16 {vr(S[b],16)}, {vr(KT,2)}, {vr(Q[b]+4,2)}, {vr(S[b],16)}")
    a("s_nop 15")
    for b in range(2):
        for r in range(0, 16, 2):
            a(f"v_max3_f32 v{T+4*b}, v{T+4*b}, v{S[b]+r}, v{S[b]+r+1}")
    a(f"""
    s_add_u32 s10, s10, 1536
    s_sub_u32 s11, s11, 1
    s_cmp_lg_u32 s11, 0
    s_cbranch_scc1 {L}_maxloop
    s_branch {L}_set_m
    """)
    a.label(f"{L}_done")
    if end_hook: end_hook()
    stamp_flush(a, 1, 8)

def gen_att8(a):
    kernel_header(a, "attc_kernel")
    a("s_cmp_ge_u32 s2, 256")
    a("s_cbranch_scc1 L_a8_exit")
    load_ptrs(a)
    a("""
    v_lshrrev_b32 v1, 6, v0
    v_and_b32 v2, 63, v0
    s_nop 0
    v_readfirstlane_b32 s7, v1
    """)
    def zero(T):
        srd(a, 44, P_WS, WS_FLAGS, FLAGS_BYTES)
        a(f"""
        s_cmp_ge_u32 s2, 48
        s_cbranch_scc1 L_a8_nofl
        s_cmp_lg_u32 s7, 7
        s_cbranch_scc1 L_a8_nofl
        s_lshl_b32 s10, s2, 8
        s_add_u32 s10, s10, 12288
        v_lshlrev_b32 v14, 2, v2
        buffer_store_dword v{T}, v14, s[44:47], s10 offen
        """)
        a.label("L_a8_nofl")
    body(a, "L_a8", layer_flag_zero=zero)
    a.label("L_a8_exit")
    a("s_endpgm")
    return [("attc_kernel", 148)]
```

```python
from asmlib import *
from layout import *
import g13, att8, prep, os
from g13 import f32, half_sum

D13 = int(os.environ.get('D13', 4)); D24 = int(os.environ.get('D24', 4))
SC = " sc1"
MAXPOLL = 200000
SLP = int(os.environ.get('SLP', 2))

def maps(a):
    a("""
    s_and_b32 s3, s2, 7
    s_lshr_b32 s4, s2, 3
    s_and_b32 s5, s3, 3
    s_lshl_b32 s5, s5, 2
    s_and_b32 s8, s4, 3
    s_add_u32 s36, s5, s8
    s_lshr_b32 s6, s3, 2
    s_lshl_b32 s9, s6, 3
    s_lshr_b32 s8, s4, 2
    s_add_u32 s37, s9, s8
    s_lshl_b32 s38, s36, 1
    s_and_b32 s8, s8, 1
    s_add_u32 s38, s38, s8
    s_lshl_b32 s39, s6, 2
    s_lshr_b32 s8, s4, 3
    s_add_u32 s39, s39, s8
    v_lshrrev_b32 v1, 6, v0
    v_and_b32 v2, 63, v0
    s_nop 0
    v_readfirstlane_b32 s7, v1
    """)

def flag_off(a, phase, sdst):
    a(f"s_mul_i32 s{sdst}, s98, {3*16*256}")
    a(f"s_lshl_b32 s8, s36, 8")
    a(f"s_add_u32 s{sdst}, s{sdst}, s8")
    if phase: a(f"s_add_u32 s{sdst}, s{sdst}, {phase*16*256}")

def poll(a, phase):
    l, d = a.newlabel("poll"), a.newlabel("polled")
    srd(a, 44, P_WS, WS_FLAGS, FLAGS_BYTES)
    flag_off(a, phase, 12)
    a(f"""
    v_lshlrev_b32 v10, 2, v2
    s_mov_b32 s13, {MAXPOLL}
    """)
    a.label(l)
    a(f"""
    buffer_load_dword v11, v10, s[44:47], s12 offen sc1
    s_waitcnt vmcnt(0)
    v_cmp_eq_u32 vcc, 1, v11
    s_nop 3
    s_cmp_eq_u64 vcc, -1
    s_cbranch_scc1 {d}
    s_sleep {SLP}
    s_sub_u32 s13, s13, 1
    s_cmp_lg_u32 s13, 0
    s_cbranch_scc1 {l}
    """)
    a.label(d)

def poll_v(a, vaddrs):
    l, d = a.newlabel("poll"), a.newlabel("polled")
    a(f"s_mov_b32 s13, {MAXPOLL}")
    a.label(l)
    for i, v in enumerate(vaddrs):
        a(f"buffer_load_dword v{148+i}, v{v}, s[44:47], 0 offen sc1")
    a("s_waitcnt vmcnt(0)")
    for i in range(1, len(vaddrs)):
        a(f"v_and_b32 v148, v148, v{148+i}")
    a(f"""
    v_cmp_eq_u32 vcc, 1, v148
    s_nop 3
    s_cmp_eq_u64 vcc, -1
    s_cbranch_scc1 {d}
    s_sleep {SLP}
    s_sub_u32 s13, s13, 1
    s_cmp_lg_u32 s13, 0
    s_cbranch_scc1 {l}
    """)
    a.label(d)

def raise_flag(a):
    srd(a, 44, P_WS, WS_FLAGS, FLAGS_BYTES)
    a(f"""
    v_mov_b32 v1, 1
    s_mov_b64 exec, 1
    s_waitcnt vmcnt(0)
    buffer_store_dword v1, off, s[44:47], s12 sc1
    s_mov_b64 exec, -1
    """)

def publish(a, phase):
    srd(a, 44, P_WS, WS_FLAGS, FLAGS_BYTES)
    flag_off(a, phase, 12)
    a(f"""
    s_lshl_b32 s13, s37, 4
    s_add_u32 s12, s12, s13
    s_lshl_b32 s13, s7, 2
    s_add_u32 s12, s12, s13
    v_mov_b32 v1, 1
    s_mov_b64 exec, 1
    s_waitcnt vmcnt(0)
    buffer_store_dword v1, off, s[44:47], s12 sc1
    s_mov_b64 exec, -1
    s_barrier
    """)

WT = int(os.environ.get('WT', 0))
MEGA = int(os.environ.get('MEGA', 1))
P34 = int(os.environ.get('P34', 0))
LATE = int(os.environ.get('LATE', 1))
def loader(a, issue, n, nch, dist, first, wait_phase, kid, touch=None):
    stamp(a, 0); stamp_rt(a, 1)
    T = 0
    if wait_phase is None:
        if first and MEGA == 2:
            l = a.newlabel("now")
            a("s_cmp_lg_u32 s98, 0")
            a(f"s_cbranch_scc1 {l}")
            srd(a, 44, P_WS, WS_FLAGS, FLAGS_BYTES)
            a(f"v_lshlrev_b32 v10, 2, v2")
            for k in range(4):
                a(f"v_add_u32 v{11+k}, {FL_W + 256*k}, v10")
            poll_v(a, [11, 12, 13, 14])
            a.label(l)
        for c in range(dist): issue(c)
        if touch and WT:
            sidx, total, cbytes, nshare, ssh = touch
            start = dist * cbytes
            lines = (total - start) // 128
            T = (lines + 64*2*nshare - 1) // (64*2*nshare)
            a(f"""
            s_and_b32 s12, s{ssh}, {nshare-1}
            s_lshl_b32 s12, s12, 1
            s_add_u32 s12, s12, s9
            s_lshl_b32 s12, s12, 7
            s_mul_i32 s13, s{sidx}, {total}
            s_add_u32 s12, s12, s13
            s_add_u32 s12, s12, {start}
            s_mov_b32 s44, s52
            s_mov_b32 s45, s53
            s_add_u32 s46, s13, {total}
            s_mov_b32 s47, 0x00020000
            v_mul_u32_u24 v10, {256*nshare}, v2
            """)
            for t in range(T):
                a(f"buffer_load_dword v11, v10, s[44:47], s12 offen")
                a(f"s_add_u32 s12, s12, {64*256*nshare}")
        if not first: a("s_barrier")
    else:
        if not first:
            a("s_barrier")
            poll(a, wait_phase)
        elif MEGA:
            l = a.newlabel("noatt")
            if MEGA == 1:
                a("s_cmp_eq_u32 s98, 0")
                a(f"s_cbranch_scc1 {l}")
            srd(a, 44, P_WS, WS_FLAGS, FLAGS_BYTES)
            a(f"s_lshl_b32 s12, s38, 8")
            a(f"s_lshl_b32 s13, s98, 13")
            a(f"s_add_u32 s12, s12, s13")
            a(f"s_add_u32 s12, s12, {FL_ATT}")
            a(f"v_lshl_add_u32 v10, v2, 2, s12")
            poll_v(a, [10])
            a.label(l)
        stamp(a, 5)
        for c in range(dist): issue(c)
    nxt = dist
    for c in range(nch):
        a(f"s_waitcnt vmcnt({n * (nxt - 1 - c) + (T if c < dist else 0)})")
        if c == 0: stamp(a, 2)
        if c == nch//2: stamp(a, 4)
        a("s_barrier")
        if nxt < nch:
            issue(nxt); nxt += 1
    stamp(a, 3)
    a("s_barrier")
    stamp_flush(a, kid, 8)

ST24, NST24 = 18432, 8
def w24(a, wt_off, wt_bytes, nks):
    srd(a, 52, P_WS, wt_off, wt_bytes)
    a(f"""
    s_mul_i32 s11, s9, 5120
    s_add_u32 s57, s11, 8192
    s_mul_i32 s10, s39, {nks*5120}
    s_add_u32 s10, s10, s11
    v_lshl_add_u32 v8, v2, 4, s10
    v_add_u32 v9, 4096, v8
    """)
    def issue(c):
        a(f"s_mov_b32 s58, {c*10240}")
        a(f"s_add_u32 m0, s57, {(c % NST24) * ST24}")
        a("s_nop 0")
        for i in range(4):
            a(f"buffer_load_dwordx4 v8, s[52:55], s58 offen offset:{i*1024} lds")
        a(f"s_add_u32 m0, s57, {(c % NST24) * ST24 + 4096}")
        a("s_nop 0")
        a(f"buffer_load_dwordx4 v9, s[52:55], s58 offen lds")
    return issue, 5
def x24(a, xoff, nks, sc):
    srd_l(a, 52, xoff, 128*nks*1024)
    a(f"""
    s_lshl_b32 s57, s9, 12
    s_lshl_b32 s10, s38, 2
    s_lshl_b32 s11, s9, 1
    s_add_u32 s10, s10, s11
    s_mul_i32 s10, s10, {nks*1024}
    v_lshl_add_u32 v8, v2, 4, s10
    v_add_u32 v9, {nks*1024}, v8
    """)
    def issue(c):
        a(f"s_mov_b32 s58, {c*2048}")
        for t in range(2):
            a(f"s_add_u32 m0, s57, {(c % NST24) * ST24 + t * 2048}")
            a("s_nop 0")
            for i in range(2):
                a(f"buffer_load_dwordx4 v{8+t}, s[52:55], s58 offen offset:{i*1024}{sc} lds")
    return issue, 4

def c24(a, tag, nch, st_off, kid):
    L = f"L_ch_{tag}"
    VXA, VWA, VO, VS, VR = 4, 6, 8, 9, 3
    RES, FX, FW, ACC = 10, 20, 32, 92
    stamp(a, 0); stamp_rt(a, 1)
    if tag == "g2":
        a("s_mov_b32 s40, s94\ns_mov_b32 s41, s95\ns_mov_b32 s42, 2621440\ns_mov_b32 s43, 0x00020000")
        srd_l(a, 48, WS_XA, 2048*1280)
    else:
        srd_l(a, 40, WS_XA, 2048*1280)
        a("s_mov_b32 s48, s96\ns_mov_b32 s49, s97\ns_mov_b32 s50, 2621440\ns_mov_b32 s51, 0x00020000")
    srd_l(a, 56, st_off, 2048*64)
    a(f"""
    s_lshl_b32 s10, s38, 6
    s_lshl_b32 s11, s7, 4
    s_add_u32 s10, s10, s11
    v_and_b32 v4, 15, v2
    v_add_u32 v4, s10, v4
    v_and_b32 v{VS}, 63, v4
    v_lshlrev_b32 v{VS}, 3, v{VS}
    v_lshrrev_b32 v1, 4, v2
    s_lshr_b32 s10, s10, 5
    s_mul_i32 s10, s10, 40960
    s_mul_i32 s11, s39, 5120
    s_add_u32 s10, s10, s11
    v_and_b32 v5, 31, v4
    v_lshl_add_u32 v5, v5, 4, s10
    v_lshrrev_b32 v6, 1, v1
    v_lshl_add_u32 v5, v6, 9, v5
    v_and_b32 v6, 1, v1
    v_lshl_add_u32 v{VR}, v6, 3, v5
    v_lshl_add_u32 v112, v6, 10, v5
    s_movk_i32 s62, 0x1000
    v_mul_u32_u24 v4, 1280, v4
    s_mul_i32 s11, s39, 160
    v_add_u32 v4, s11, v4
    v_lshl_add_u32 v{VO}, v1, 3, v4
    v_lshl_add_u32 v113, v6, 5, v4
    v_lshrrev_b32 v6, 1, v1
    v_lshl_add_u32 v113, v6, 4, v113
    """)
    def frag_res(sc):
        for j in range(4):
            a(f"buffer_load_dwordx2 {vr(RES+2*j,2)}, v{VR}, s[40:43], 0 offen offset:{1024*j}{sc}")
        a(f"buffer_load_dwordx2 {vr(RES+8,2)}, v{VR}, s[40:43], s62 offen{sc}")
    if tag == "g2":
        a("s_cmp_eq_u32 s98, 0")
        a(f"s_cbranch_scc1 {L}_rres")
        frag_res(SC)
        a(f"s_branch {L}_resdone")
        a.label(f"{L}_rres")
        for j in range(5):
            a(f"buffer_load_dwordx2 {vr(RES+2*j,2)}, v{VO}, s[40:43], 0 offen offset:{32*j}")
        a.label(f"{L}_resdone")
    else:
        frag_res(SC)
    a(f"""
    s_lshl_b32 s10, s7, 11
    v_lshl_add_u32 v{VXA}, v2, 4, s10
    v_add_u32 v{VXA+1}, {4*ST24}, v{VXA}
    v_lshlrev_b32 v{VWA}, 4, v2
    v_add_u32 v{VWA}, 8192, v{VWA}
    v_add_u32 v{VWA+1}, {4*ST24}, v{VWA}
    s_lshl_b32 s61, s38, 3
    s_add_u32 s61, s61, s39
    s_lshl_b32 s61, s61, 9
    """)
    NB = 3
    def reads(s):
        c, ks = s // 2, s % 2
        buf = s % NB
        st = c % NST24
        sset, sin = st // 4, st % 4
        a(f"ds_read_b128 {vr(FX+buf*4,4)}, v{VXA+sset} offset:{sin*ST24 + ks*1024}")
        for j in range(5):
            a(f"ds_read_b128 {vr(FW+(buf*5+j)*4,4)}, v{VWA+sset} offset:{sin*ST24 + ks*5120 + 1024*j}")
    a("s_barrier")
    stamp(a, 2)
    reads(0); reads(1)
    NS = 2*nch
    for s_ in range(NS):
        buf = s_ % NB
        a(f"s_waitcnt lgkmcnt({6 if s_ + 1 < NS else 0})")
        if s_ % 2 == 0 and s_ // 2 + 1 < nch:
            a("s_barrier")
            if s_ // 2 + 1 == nch // 2: stamp(a, 4)
        if s_ == NS - 1:
            a("s_barrier")
        for j in range(5):
            cin = "0" if s_ == 0 else vr(ACC+4*j, 4)
            a(f"v_mfma_f32_16x16x32_bf16 {vr(ACC+4*j,4)}, {vr(FW+(buf*5+j)*4,4)}, {vr(FX+buf*4,4)}, {cin}")
            if j == 0 and s_ + 2 < NS:
                reads(s_ + 2)
    stamp(a, 3)
    a("s_waitcnt vmcnt(0)")
    a("s_nop 7")
    for j in range(5):
        t = FX + 4*(j & 1)
        a(f"""
        v_lshlrev_b32 v{t}, 16, v{RES+2*j}
        v_and_b32 v{t+1}, 0xffff0000, v{RES+2*j}
        v_lshlrev_b32 v{t+2}, 16, v{RES+2*j+1}
        v_and_b32 v{t+3}, 0xffff0000, v{RES+2*j+1}
        v_pk_add_f32 {vr(t,2)}, {vr(t,2)}, {vr(ACC+4*j,2)}
        v_pk_add_f32 {vr(t+2,2)}, {vr(t+2,2)}, {vr(ACC+4*j+2,2)}
        v_cvt_pk_bf16_f32 v{RES+2*j}, v{t}, v{t+1}
        v_cvt_pk_bf16_f32 v{RES+2*j+1}, v{t+2}, v{t+3}
        """)
    a("s_nop 0")
    for j0 in (0, 2):
        for d in range(2):
            a(f"v_permlane16_swap_b32 v{RES+2*j0+d}, v{RES+2*j0+2+d}")
    if tag == "g4":
        a("s_cmp_eq_u32 s98, 0")
        a(f"s_cbranch_scc1 {L}_frag")
        for j0 in (0, 2):
            a(f"buffer_store_dwordx4 {vr(RES+2*j0,4)}, v113, s[48:51], 0 offen offset:{32*j0}")
        a(f"buffer_store_dwordx2 {vr(RES+8,2)}, v{VO}, s[48:51], 0 offen offset:128")
        stamp_flush(a, kid, 8)
        a("s_endpgm")
        a.label(f"{L}_frag")
    else:
        a("s_nop 0")
    for j0 in (0, 2):
        a(f"buffer_store_dwordx4 {vr(RES+2*j0,4)}, v112, s[48:51], 0 offen offset:{1024*j0}{SC}")
    a(f"buffer_store_dwordx2 {vr(RES+8,2)}, v{VR}, s[48:51], s62 offen{SC}")
    a("v_mov_b32 v4, 0\nv_mov_b32 v5, 0\ns_mov_b32 s60, 0x3f803f80")
    for r in range(10):
        a(f"v_dot2_f32_bf16 v4, v{RES+r}, s60, v4")
        a(f"v_dot2_f32_bf16 v5, v{RES+r}, v{RES+r}, v5")
    a("s_nop 2")
    for sw in ("v_permlane16_swap_b32", "v_permlane32_swap_b32"):
        a(f"""
        v_mov_b32 v6, v4
        v_mov_b32 v7, v5
        s_nop 1
        {sw} v4, v6
        {sw} v5, v7
        s_nop 1
        v_add_f32 v4, v4, v6
        v_add_f32 v5, v5, v7
        """)
    a(f"""
    s_mov_b64 exec, 0xffff
    buffer_store_dwordx2 v[4:5], v{VS}, s[56:59], s61 offen{SC}
    s_mov_b64 exec, -1
    """)

RING = 8; NCH13 = 20
def x13(a, xoff, stage):
    srd_l(a, 52, xoff, 2048*1280)
    a(f"""
    s_lshl_b32 s10, s36, 2
    s_lshl_b32 s11, s9, 1
    s_add_u32 s10, s10, s11
    s_mul_i32 s10, s10, 40960
    v_lshl_add_u32 v8, v2, 4, s10
    v_add_u32 v9, 40960, v8
    s_lshl_b32 s57, s9, 12
    """)
    def issue(c):
        a(f"s_mov_b32 s58, {c*2048}")
        for t in range(2):
            a(f"s_add_u32 m0, s57, {(c % RING) * stage + t * 2048}")
            a("s_nop 0")
            for i in range(2):
                a(f"buffer_load_dwordx4 v{8+t}, s[52:55], s58 offen offset:{i*1024}{SC} lds")
    return issue, 4
def w13(a, stage, nnt, wt_off, wt_bytes):
    n = 2 * nnt
    srd(a, 52, P_WS, wt_off, wt_bytes)
    a(f"""
    s_mul_i32 s10, s37, {41*n*1024}
    s_mul_i32 s11, s9, {n*1024}
    s_add_u32 s10, s10, s11
    v_lshl_add_u32 v8, v2, 4, s10
    v_add_u32 v9, 4096, v8
    s_add_u32 s57, s11, 8192
    """)
    def issue(c):
        a(f"s_mov_b32 s58, {c*2*n*1024}")
        for g in range((n + 3) // 4):
            a(f"s_add_u32 m0, s57, {(c % RING) * stage + g * 4096}")
            a("s_nop 0")
            for i in range(min(4, n - 4*g)):
                a(f"buffer_load_dwordx4 v{8+g}, s[52:55], s58 offen offset:{i*1024} lds")
    return issue, n

def c13_main(a, nnt, VX, VW, RS, FX, FW, ACC, XW, ST, XM, T, stage, per_set, wt_off, wt_bytes, st_off, mid_setup):
    nset = (RING + per_set - 1) // per_set
    stamp(a, 0); stamp_rt(a, 1)
    a(f"""
    s_mov_b32 s5, s36
    s_mov_b32 s6, s37
    s_lshr_b32 s8, s7, 1
    s_and_b32 s9, s7, 1
    v_and_b32 v3, 31, v2
    v_lshrrev_b32 v4, 5, v2
    """)
    srd(a, 52, P_WS, wt_off, wt_bytes)
    srd_l(a, 56, st_off, 2048*64)
    a(f"""
    s_mul_i32 s10, s6, {41*2*nnt*1024}
    s_mul_i32 s11, s9, {nnt*1024}
    s_add_u32 s10, s10, s11
    s_add_u32 s10, s10, {40*2*nnt*1024}
    v_lshlrev_b32 v5, 4, v2
    s_lshl_b32 s13, s5, 7
    s_lshl_b32 s14, s8, 6
    s_add_u32 s12, s13, s14
    s_lshl_b32 s13, s12, 6
    v_lshl_add_u32 v6, v3, 3, s13
    v_lshl_add_u32 v6, v4, 11, v6
    """)
    for nt in range(nnt):
        a(f"buffer_load_dwordx4 {vr(XW+4*nt,4)}, v5, s[52:55], s10 offen offset:{nt*1024}")
    a(f"""
    s_add_u32 s11, s11, 8192
    v_add_u32 v{VW}, s11, v5
    s_lshl_b32 s14, s8, 12
    v_add_u32 v{VX}, s14, v5
    """)
    for s in range(1, nset):
        a(f"v_add_u32 v{VW+s}, {s*per_set*stage}, v{VW}")
        a(f"v_add_u32 v{VX+s}, {s*per_set*stage}, v{VX}")
    mid_setup()
    NB = 3
    def reads(s):
        c, ks = s // 2, s % 2
        buf = s % NB
        st = c % RING
        sset, sin = st // per_set, st % per_set
        for mt in range(2):
            a(f"ds_read_b128 {vr(FX + (buf*2+mt)*4, 4)}, v{VX + sset} offset:{sin*stage + mt*2048 + ks*1024}")
        for nt in range(nnt):
            a(f"ds_read_b128 {vr(FW + (buf*nnt+nt)*4, 4)}, v{VW + sset} offset:{sin*stage + (ks*2*nnt + nt)*1024}")
    nreads = 2 + nnt
    a("s_barrier")
    stamp(a, 2)
    reads(0); reads(1)
    for mt in range(2):
        for i in range(4):
            a(f"buffer_load_dwordx2 {vr(ST+8*mt+2*i,2)}, v6, s[56:59], 0 offen offset:{mt*256 + i*512}{SC}")
    NS = 2*NCH13
    for s in range(NS):
        buf = s % NB
        a(f"s_waitcnt lgkmcnt({nreads if s + 1 < NS else 0})")
        if s % 2 == 0 and s // 2 + 1 < NCH13:
            a("s_barrier")
            if s // 2 + 1 == NCH13 // 2: stamp(a, 4)
        if s == NS - 1:
            a("s_barrier")
        first = True
        for nt in range(nnt):
            for mt in range(2):
                acc = ACC + (nt*2+mt)*16
                cin = "0" if s == 0 else vr(acc, 16)
                a(f"v_mfma_f32_32x32x16_bf16 {vr(acc,16)}, {vr(FW + (buf*nnt+nt)*4, 4)}, {vr(FX + (buf*2+mt)*4, 4)}, {cin}")
                if first and s + 2 < NS:
                    reads(s + 2)
                first = False
        if s == 20:
            a("s_waitcnt vmcnt(0)")
            g13.stats_finish(a, ST, RS, XM, T)
            a("s_nop 1")
            for nt in range(nnt):
                for mt in range(2):
                    acc = ACC + (nt*2+mt)*16
                    a(f"v_mfma_f32_32x32x16_bf16 {vr(acc,16)}, {vr(XW+4*nt,4)}, {vr(XM+4*mt,4)}, {vr(acc,16)}")
        if nnt == 3 and P34 and s == P34:
            a("""
            s_lshr_b32 s12, s2, 3
            s_lshl_b32 s12, s12, 2
            s_add_u32 s12, s12, s7
            s_bfe_u32 s13, s2, 0x10002
            """)
            l2_prefetch(a, 44, WS_WT4, WT4_BYTES//2, 7, 12, 5, 6, 14, 13)
    stamp(a, 3)

def c3(a):
    VX, VW, RS, FX, FW, ACC = 8, 12, 18, 24, 48, 84
    XW, ST, XM, T = 180, 192, 208, 20
    def mid():
        srd_l(a, 48, WS_H, 2048*3072)
        a(f"""
        v_add_u32 v21, s12, v3
        v_lshrrev_b32 v22, 4, v21
        v_mul_u32_u24 v22, 49152, v22
        v_and_b32 v21, 15, v21
        v_lshl_add_u32 v22, v21, 4, v22
        v_lshl_add_u32 v22, v4, 8, v22
        v_add_u32 v23, {2*49152}, v22
        s_mul_i32 s10, s6, 6
        s_mul_i32 s11, s9, 3
        s_add_u32 s10, s10, s11
        s_lshl_b32 s61, s10, 9
        """)
    c13_main(a, 3, VX, VW, RS, FX, FW, ACC, XW, ST, XM, T, 20480, 3, WS_WT3, WT3_BYTES, WS_ST3, mid)
    for mt in range(2):
        a(f"v_mul_f32 v{8+2*mt}, v{RS+mt}, v{RS+mt}")
        a(f"v_mul_f32 v{9+2*mt}, v{RS+mt}, v{RS+mt}")
    a("s_nop 7")
    PK = 24
    for nt in range(3):
        for mt in range(2):
            acc = ACC + (nt*2+mt)*16
            dst = PK + (mt*3+nt)*4
            for r in range(8):
                a(f"v_max_f32 v{acc+r}, 0, v{acc+r}")
            for r in range(0, 8, 2):
                a(f"v_pk_mul_f32 {vr(acc+8+r,2)}, {vr(acc+8+r,2)}, {vr(8+2*mt,2)}")
            for r in range(0, 8, 2):
                a(f"v_pk_mul_f32 {vr(acc+r,2)}, {vr(acc+r,2)}, {vr(acc+8+r,2)}")
            for r in range(4):
                a(f"v_cvt_pk_bf16_f32 v{dst+r}, v{acc+2*r}, v{acc+2*r+1}")
            a(f"buffer_store_dwordx4 {vr(dst,4)}, v{22+mt}, s[48:51], s61 offen offset:{nt*512}{SC}")

def c1(a):
    VX, VW, RS, FX, FW, ACC = 8, 12, 18, 32, 56, 80
    XW, ST, XM, T = 144, 152, 168, 20
    c13_main(a, 2, VX, VW, RS, FX, FW, ACC, XW, ST, XM, T, 16384, 4, WS_WT1, WT1_BYTES, WS_ST1, lambda: g13.g1_epilogue_setup(a, LOFF if MEGA else 0))
    if not MEGA:
        g13.g1_epilogue(a)
        stamp_flush(a, 0, 8)
        a("s_endpgm")
        return
    g13.g1_epilogue(a, SC)
    a(f"""
    s_lshl_b32 s12, s37, 1
    s_add_u32 s12, s12, s9
    s_lshl_b32 s12, s12, 7
    s_lshl_b32 s13, s36, 1
    s_add_u32 s13, s13, s8
    s_lshl_b32 s13, s13, 2
    s_add_u32 s12, s12, s13
    s_add_u32 s12, s12, {FL_G1}
    """)
    raise_flag(a)
    stamp_flush(a, 0, 8)

def gen_chain(a):
    entries = (("cha_kernel", 0),) if MEGA else (("cha_kernel", 0), ("chb_kernel", 1))
    def layer_regs(layer):
        a(f"s_mov_b32 s98, {layer}")
        if layer == 0:
            a(f"s_mov_b32 s94, s{P_AX}\ns_mov_b32 s95, s{P_AX+1}\ns_add_u32 s96, s{P_WS}, {WS_XB}\ns_addc_u32 s97, s{P_WS+1}, 0")
        else:
            a(f"s_add_u32 s94, s{P_WS}, {WS_XB}\ns_addc_u32 s95, s{P_WS+1}, 0\ns_mov_b32 s96, s{P_OUT}\ns_mov_b32 s97, s{P_OUT+1}")
    for name, layer in entries:
        kernel_header(a, name)
        a("s_cmp_ge_u32 s2, 256")
        a("s_cbranch_scc1 L_ch_exit")
        load_ptrs(a)
        maps(a)
        a("s_waitcnt lgkmcnt(0)")
        layer_regs(layer)
        if MEGA == 2:
            a("s_mov_b32 s62, 1")
            a("s_branch L_ch_att0")
        else:
            a("s_branch L_ch_body")
    a.label("L_ch_exit")
    a("s_endpgm")
    a.label("L_ch_body")
    a("s_cmp_lt_u32 s7, 4")
    a("s_cbranch_scc1 L_ch_compute")
    a("s_and_b32 s9, s7, 1")
    a("s_cmp_ge_u32 s7, 6")
    a("s_cbranch_scc1 L_ch_xload")
    fin = "s_branch L_ch_att" if MEGA else "s_endpgm"
    i, n = w24(a, WS_WT2, WT2_BYTES, 20); loader(a, i, n, 10, D24, True, None, 2)
    i, n = w13(a, 20480, 3, WS_WT3, WT3_BYTES); loader(a, i, n, NCH13, D13, False, None, 3)
    i, n = w24(a, WS_WT4, WT4_BYTES, 48); loader(a, i, n, 24, D24, False, None, 4)
    a("s_cmp_eq_u32 s98, 1")
    a("s_cbranch_scc1 L_ch_exit")
    i, n = w13(a, 16384, 2, WS_WT1, WT1_BYTES); loader(a, i, n, NCH13, D13, False, None, 0)
    a(fin)
    a.label("L_ch_xload")
    i, n = x24(a, WS_O, 20, SC); loader(a, i, n, 10, D24, True, 0, 2)
    i, n = x13(a, WS_XA, 20480); loader(a, i, n, NCH13, D13, False, 0, 3)
    i, n = x24(a, WS_H, 48, SC); loader(a, i, n, 24, D24, False, 1, 4)
    a("s_cmp_eq_u32 s98, 1")
    a("s_cbranch_scc1 L_ch_exit")
    i, n = x13(a, WS_XB, 16384); loader(a, i, n, NCH13, D13, False, 2, 0)
    a(fin)
    a.label("L_ch_compute")
    c24(a, "g2", 10, WS_ST3, 2); publish(a, 0); stamp_flush(a, 2, 8)
    c3(a); publish(a, 1); stamp_flush(a, 3, 8)
    c24(a, "g4", 24, WS_ST1, 4); publish(a, 2); stamp_flush(a, 4, 8)
    c1(a)
    if MEGA:
        a.label("L_ch_att")
        layer_regs(1)
        a("s_mov_b32 s62, 0")
        a.label("L_ch_att0")
        a.gemm = False
        def wait():
            l = a.newlabel("nopoll")
            l0 = a.newlabel("nowait")
            a("s_cmp_eq_u32 s98, 0")
            a(f"s_cbranch_scc1 {l0}")
            a("s_barrier")
            a("s_cmp_lg_u32 s7, 7")
            a(f"s_cbranch_scc1 {l}")
            srd(a, 44, P_WS, WS_FLAGS, FLAGS_BYTES)
            a(f"""
            s_mul_i32 s12, s5, 21846
            s_lshr_b32 s12, s12, 16
            s_add_u32 s10, s5, 32
            s_mul_i32 s10, s10, 21846
            s_lshr_b32 s10, s10, 16
            s_add_u32 s11, s5, 64
            s_mul_i32 s11, s11, 21846
            s_lshr_b32 s11, s11, 16
            s_lshl_b32 s12, s12, 7
            s_lshl_b32 s10, s10, 7
            s_lshl_b32 s11, s11, 7
            v_lshlrev_b32 v150, 2, v3
            v_add_u32 v150, {FL_G1}, v150
            v_add_u32 v151, s12, v150
            v_add_u32 v152, s10, v150
            s_mov_b64 exec, s[66:67]
            v_add_u32 v152, s11, v150
            s_mov_b64 exec, -1
            """)
            poll_v(a, [151, 152])
            a.label(l)
            a("s_barrier")
            a.label(l0)
        def done():
            a(f"""
            s_lshl_b32 s12, s6, 2
            s_add_u32 s12, s12, s8
            s_lshl_b32 s12, s12, 8
            s_lshl_b32 s13, s5, 3
            s_add_u32 s12, s12, s13
            s_lshl_b32 s13, s9, 2
            s_add_u32 s12, s12, s13
            s_add_u32 s12, s12, {FL_ATT}
            s_lshl_b32 s13, s98, 13
            s_add_u32 s12, s12, s13
            """)
            raise_flag(a)
            a("s_barrier")
        def wready():
            l = a.newlabel("nowf")
            a(f"""
            s_or_b32 s12, s98, s7
            s_or_b32 s12, s12, s56
            s_cmp_lg_u32 s12, 0
            s_cbranch_scc1 {l}
            s_cmp_lg_u32 s52, 2
            s_cbranch_scc1 {l}
            s_lshl_b32 s12, s2, 2
            s_add_u32 s12, s12, {FL_W}
            """)
            raise_flag(a)
            a.label(l)
        def late(T):
            l = a.newlabel("nolate")
            a(f"""
            s_cmp_lg_u32 s98, 0
            s_cbranch_scc1 {l}
            s_cmp_lg_u32 s52, 3
            s_cbranch_scc1 {l}
            """)
            srd(a, 44, P_WS, WS_FLAGS, FLAGS_BYTES)
            a(f"""
            v_lshlrev_b32 v148, 4, v2
            s_movk_i32 s12, {FL_W - 32768}
            s_add_u32 s12, s12, 32768
            buffer_load_dwordx4 v[152:155], v148, s[44:47], s12 offen sc1
            s_waitcnt vmcnt(0)
            v_and_b32 v152, v152, v153
            v_and_b32 v154, v154, v155
            v_and_b32 v152, v152, v154
            v_cmp_eq_u32 vcc, 1, v152
            s_nop 3
            s_cmp_eq_u64 vcc, -1
            s_cbranch_scc0 {l}
            s_lshr_b32 s12, s2, 3
            s_lshl_b32 s12, s12, 3
            s_add_u32 s12, s12, s7
            s_lshr_b32 s13, s3, 2
            """)
            l2_prefetch(a, 44, WS_WT2, WT2_BYTES//2, 8, 12, T+4, T+5, 14, 13)
            l2_prefetch(a, 44, WS_WT3, WT3_BYTES//2, 8, 12, T+4, T+5, 14, 13)
            a.label(l)
        if MEGA == 2: prep.configure8()
        att8.body(a, "L_m8", SC, SC, wait, done, None, MEGA == 2, wready if MEGA == 2 else None, late if LATE else None)
        a("s_branch L_ch_body")
    return [(e[0], 216) for e in entries]
```

```python
from asmlib import *
from layout import *

SRC, DST = 36, 68
SP, SP4 = 88, 89
SFLAG, SFLAG2, SQ_, SXK = 62, 63, 90, 91
LD, OUT = 108, 124
TMPS = (92, 93, 94, 95)
BOUNCE = 0
def configure8():
    global SRC, DST, SP, SP4, SQ_, SXK, LD, OUT, TMPS, PSTF, BOUNCE
    BOUNCE = 190
    SRC, DST, SP, SP4, SQ_, SXK = 88, 68, 92, 93, 99, 100
    LD, OUT = 160, 176
    TMPS = (10, 11, 15, 101)
    PSTF = " sc1"
import os
PSTF = os.environ.get('PSTF', '')
PVAR = int(os.environ.get('PVAR', 0))

def setup(a, L, VSRC, VDST, VXK, t0):
    R, A, B, C, D, G, L16 = t0, t0+1, t0+2, t0+3, t0+4, t0+5, t0+6
    ST, SB, S1, S2, SSEG = TMPS + (12,)
    def divmod_s(src, d, q, r, tmp):
        m = (1 << 20) // d + 1
        a(f"s_mul_i32 s{q}, s{src}, {m}")
        a(f"s_lshr_b32 s{q}, s{q}, 20")
        a(f"s_mul_i32 s{tmp}, s{q}, {d}")
        a(f"s_sub_u32 s{r}, s{src}, s{tmp}")
    a(f"""
    s_mov_b32 s{SFLAG2}, 0
    s_cmp_eq_u32 s{SFLAG}, 0
    s_cbranch_scc1 {L}_done
    s_mov_b32 s{SFLAG}, 0
    s_cmp_ge_u32 s7, 8
    s_cbranch_scc1 {L}_done
    s_cmp_eq_u32 s7, 5
    s_cbranch_scc1 {L}_done
    s_cmp_ge_u32 s2, 192
    s_cbranch_scc1 {L}_hi
    s_add_u32 s{ST}, s2, 120
    s_mov_b32 s{SB}, s7
    s_cmp_lt_u32 s7, 5
    s_cbranch_scc1 {L}_go
    s_lshl_b32 s{S2}, s2, 1
    s_add_u32 s{S2}, s{S2}, s7
    s_sub_u32 s{S2}, s{S2}, 6
    s_branch {L}_beta
    """)
    a.label(f"{L}_hi")
    a(f"""
    s_cmp_ge_u32 s7, 5
    s_cbranch_scc1 {L}_done
    s_sub_u32 s{S2}, s2, 192
    s_mul_i32 s{S2}, s{S2}, 5
    s_add_u32 s{S2}, s{S2}, s7
    s_add_u32 s{S2}, s{S2}, 384
    """)
    a.label(f"{L}_beta")
    a(f"""
    s_cmp_ge_u32 s{S2}, 680
    s_cbranch_scc1 {L}_done
    s_cmp_ge_u32 s{S2}, 200
    s_cbranch_scc1 {L}_bwd
    """)
    divmod_s(S2, 5, ST, SB, S1)
    a(f"""
    s_add_u32 s{ST}, s{ST}, 312
    s_branch {L}_go
    """)
    a.label(f"{L}_bwd")
    a(f"s_sub_u32 s{S2}, s{S2}, 200")
    divmod_s(S2, 6, ST, SB, S1)
    a(f"s_add_u32 s{ST}, s{ST}, 352")
    a.label(f"{L}_go")
    a(f"""
    s_mov_b32 s{SFLAG}, 1
    v_and_b32 v{L16}, 15, v2
    v_lshrrev_b32 v{G}, 4, v2
    s_cmp_ge_u32 s{ST}, 352
    s_cbranch_scc1 {L}_wd
    s_cmp_ge_u32 s{ST}, 312
    s_cbranch_scc1 {L}_wo
    s_mov_b32 s{SFLAG}, 2
    s_cmp_eq_u32 s{SB}, 0
    s_cselect_b32 s{SFLAG2}, 1, 0
    """)
    a.label(f"{L}_wgu")
    a(f"""
    s_cmp_ge_u32 s{ST}, 216
    s_cselect_b32 s{SRC}, s{P_WU}, s{P_WG}
    s_cselect_b32 s{SRC+1}, s{P_WU+1}, s{P_WG+1}
    s_cselect_b32 s14, 256, 0
    s_movk_i32 s{S1}, 120
    s_cselect_b32 s{S1}, 216, s{S1}
    s_sub_u32 s13, s{ST}, s{S1}
    s_mov_b32 s{SRC+2}, {640*3072}
    s_mov_b32 s{SRC+3}, 0x00020000
    """)
    srd(a, DST, P_WS, WS_WT3, WT3_BYTES)
    divmod_s(13, 24, SQ_, SSEG, S1)
    a(f"""
    s_lshl_b32 s{S1}, s{SSEG}, 4
    v_add_u32 v{R}, s{S1}, v{L16}
    v_lshrrev_b32 v{A}, 2, v{R}
    v_mul_u32_u24 v{B}, 43691, v{A}
    v_lshrrev_b32 v{B}, 18, v{B}
    v_mul_u32_u24 v{C}, 6, v{B}
    v_sub_u32 v{C}, v{A}, v{C}
    v_mul_u32_u24 v{B}, {41*6144}, v{B}
    v_lshl_add_u32 v{B}, v{C}, 10, v{B}
    v_and_b32 v{C}, 1, v{R}
    v_lshl_add_u32 v{B}, v{C}, 7, v{B}
    v_bfe_u32 v{C}, v{R}, 1, 1
    v_lshl_add_u32 v{B}, v{C}, 6, v{B}
    v_add_u32 v{VXK}, s14, v{B}
    s_movk_i32 s{SP}, 3072
    s_movk_i32 s{S2}, 6144
    """)
    a.label(f"{L}_c13")
    a(f"""
    s_lshl_b32 s{SP4}, s{SP}, 2
    s_mul_i32 s{SXK}, s{S2}, 40
    v_lshrrev_b32 v{A}, 1, v{G}
    v_mul_lo_u32 v{A}, v{A}, s{S2}
    v_add_u32 v{VDST}, v{A}, v{VXK}
    v_and_b32 v{A}, 1, v{G}
    v_lshl_add_u32 v{VDST}, v{A}, 9, v{VDST}
    s_mul_i32 s{S1}, s{SQ_}, 5
    s_add_u32 s{S1}, s{S1}, s{SB}
    s_mul_i32 s13, s{S1}, s{S2}
    s_lshl_b32 s13, s13, 1
    v_add_u32 v{VDST}, s13, v{VDST}
    s_lshl_b32 s13, s{SP}, 3
    v_mul_lo_u32 v{A}, v{G}, s13
    v_lshl_add_u32 v{A}, v{R}, 3, v{A}
    s_mul_i32 s13, s{S1}, s{SP}
    s_lshl_b32 s13, s13, 5
    v_add_u32 v{VSRC}, s13, v{A}
    s_branch {L}_done
    """)
    def dst24(nks):
        a(f"""
        s_lshl_b32 s{S1}, s{SSEG}, 4
        v_add_u32 v{R}, s{S1}, v{L16}
        v_lshrrev_b32 v{A}, 2, v{R}
        v_mul_u32_u24 v{B}, 52429, v{A}
        v_lshrrev_b32 v{B}, 18, v{B}
        v_mul_u32_u24 v{C}, 5, v{B}
        v_sub_u32 v{C}, v{A}, v{C}
        v_mul_u32_u24 v{B}, {nks*5120}, v{B}
        v_lshl_add_u32 v{B}, v{C}, 10, v{B}
        v_and_b32 v{C}, 3, v{R}
        v_lshl_add_u32 v{B}, v{C}, 6, v{B}
        v_lshl_add_u32 v{VDST}, v{G}, 8, v{B}
        s_movk_i32 s{SP}, 1280
        """)
    a.label(f"{L}_wo")
    srd(a, SRC, P_WO, 0, 640*1280)
    srd(a, DST, P_WS, WS_WT2, WT2_BYTES)
    a(f"s_sub_u32 s13, s{ST}, 312")
    divmod_s(13, 10, SQ_, SSEG, S1)
    dst24(20)
    a(f"""
    s_cmp_eq_u32 s{SB}, 4
    s_cbranch_scc1 {L}_wot
    s_movk_i32 s{SP4}, {8*1280}
    v_lshrrev_b32 v{A}, 1, v{G}
    v_mul_u32_u24 v{A}, {20*1280}, v{A}
    v_and_b32 v{B}, 1, v{G}
    v_mul_u32_u24 v{B}, {4*1280}, v{B}
    v_add_u32 v{A}, v{A}, v{B}
    v_lshl_add_u32 v{A}, v{R}, 3, v{A}
    s_lshl_b32 s{S1}, s{SQ_}, 2
    s_add_u32 s{S1}, s{S1}, s{SB}
    s_mul_i32 s13, s{S1}, {40*1280}
    v_add_u32 v{VSRC}, s13, v{A}
    s_mul_i32 s13, s{S1}, 5120
    v_add_u32 v{VDST}, s13, v{VDST}
    s_branch {L}_done
    """)
    a.label(f"{L}_wot")
    a(f"""
    s_movk_i32 s{SP4}, {20*1280}
    v_mul_u32_u24 v{A}, {40*1280}, v{G}
    v_lshl_add_u32 v{A}, v{R}, 3, v{A}
    s_mul_i32 s13, s{SQ_}, {160*1280}
    s_add_u32 s13, s13, {16*1280}
    v_add_u32 v{VSRC}, s13, v{A}
    s_add_u32 s13, s{SQ_}, 16
    s_mul_i32 s13, s13, 5120
    v_add_u32 v{VDST}, s13, v{VDST}
    s_branch {L}_done
    """)
    a.label(f"{L}_wd")
    srd(a, SRC, P_WD, 0, 1536*1280)
    srd(a, DST, P_WS, WS_WT4, WT4_BYTES)
    a(f"s_sub_u32 s13, s{ST}, 352")
    divmod_s(13, 10, SQ_, SSEG, S1)
    dst24(48)
    a(f"""
    s_movk_i32 s{SP4}, {4*1280}
    v_mul_u32_u24 v{A}, {8*1280}, v{G}
    v_lshl_add_u32 v{A}, v{R}, 3, v{A}
    s_mul_i32 s{S1}, s{SQ_}, 6
    s_add_u32 s{S1}, s{S1}, s{SB}
    s_mul_i32 s13, s{S1}, {32*1280}
    v_add_u32 v{VSRC}, s13, v{A}
    s_mul_i32 s13, s{S1}, 5120
    v_add_u32 v{VDST}, s13, v{VDST}
    """)
    a.label(f"{L}_done")

def issue_loads(a, L, VSRC):
    a(f"""
    s_cmp_eq_u32 s{SFLAG}, 0
    s_cbranch_scc1 {L}_nold
    s_mov_b32 s12, 0
    """)
    for e in range(8):
        if e == 4:
            a(f"s_mov_b32 s12, s{SP4}")
        elif e:
            a(f"s_add_u32 s12, s12, s{SP}")
        if PVAR != 2: a(f"buffer_load_dwordx2 {vr(LD+2*e,2)}, v{VSRC}, s[{SRC}:{SRC+3}], s12 offen")
    a.label(f"{L}_nold")

def stage1(a, L, VDST, CS, PART, tmp):
    a(f"""
    s_cmp_eq_u32 s{SFLAG}, 0
    s_cbranch_scc1 {L}_s1done
    s_mov_b32 s12, 0x05040100
    s_mov_b32 s13, 0x07060302
    s_mov_b32 s14, 0x3f803f80
    s_cmp_eq_u32 s{SFLAG}, 1
    """)
    if BOUNCE:
        vB, vW, vI = BOUNCE, BOUNCE+1, BOUNCE+2
        a(f"""
        s_nop 1
        v_mov_b32_dpp v{vB}, v{VDST} quad_perm:[0,0,0,0] row_mask:0xf bank_mask:0xf
        v_lshrrev_b32 v{vW}, 2, v2
        v_lshl_add_u32 v{vW}, v{vW}, 8, s53
        v_add_u32 v{vW}, v{vW}, v{VDST}
        v_sub_u32 v{vW}, v{vW}, v{vB}
        v_lshrrev_b32 v{vI}, 4, v2
        v_lshlrev_b32 v{vI}, 4, v{vI}
        """)
        for k in range(4):
            a(f"ds_bpermute_b32 v{vI+1+k}, v{vI}, v{vB} offset:{64*k}")
    for c in range(4):
        sel = "s12" if c % 2 == 0 else "s13"
        a(f"v_mov_b32 v{CS+c}, 0")
        for r in range(4):
            lo = LD + 4*r + c//2
            a(f"v_perm_b32 v{OUT+r}, v{lo+2}, v{lo}, {sel}")
        if BOUNCE:
            a(f"ds_write_b128 v{vW}, {vr(OUT,4)} offset:{c*16}")
        elif PVAR != 1:
            a(f"buffer_store_dwordx4 {vr(OUT,4)}, v{VDST}, s[{DST}:{DST+3}], 0 offen offset:{c*16}{PSTF}")
        lb = a.newlabel("nodot")
        a(f"s_cbranch_scc1 {lb}")
        for r in range(4):
            a(f"v_dot2_f32_bf16 v{CS+c}, v{OUT+r}, s14, v{CS+c}")
        a.label(lb)
        a("s_nop 1")
    if BOUNCE:
        a(f"""
        v_lshl_add_u32 v{vW}, v2, 4, s53
        v_and_b32 v{vI}, 15, v2
        s_waitcnt lgkmcnt(0)
        """)
        for k in range(4):
            a(f"ds_read_b128 {vr(LD+4*k,4)}, v{vW} offset:{1024*k}")
            a(f"v_lshl_add_u32 v{vI+1+k}, v{vI}, 4, v{vI+1+k}")
        for k in range(4):
            a(f"s_waitcnt lgkmcnt({3-k})")
            a(f"buffer_store_dwordx4 {vr(LD+4*k,4)}, v{vI+1+k}, s[{DST}:{DST+3}], 0 offen{PSTF}")
    a(f"""
    s_cmp_eq_u32 s{SFLAG}, 1
    s_mov_b32 s{SFLAG}, 0
    s_cbranch_scc1 {L}_s1done
    s_nop 0
    """)
    for sw in ("v_permlane16_swap_b32", "v_permlane32_swap_b32"):
        for c in range(4):
            a(f"v_mov_b32 v{OUT+c}, v{CS+c}")
        a("s_nop 1")
        for c in range(4):
            a(f"{sw} v{CS+c}, v{OUT+c}")
        a("s_nop 1")
        for c in range(4):
            a(f"v_add_f32 v{CS+c}, v{CS+c}, v{OUT+c}")
    a(f"""
    s_lshl_b32 s12, s7, 8
    s_add_u32 s12, s12, {PART}
    v_and_b32 v{tmp}, 15, v2
    v_lshl_add_u32 v{tmp}, v{tmp}, 4, s12
    ds_write_b128 v{tmp}, {vr(CS,4)}
    s_waitcnt lgkmcnt(0)
    """)
    a.label(f"{L}_s1done")

def stage2(a, L, VXK, CS, PART, tmp):
    a(f"""
    s_cmp_eq_u32 s{SFLAG2}, 0
    s_cbranch_scc1 {L}_s2done
    s_mov_b32 s{SFLAG2}, 0
    s_lshl_b32 s12, s7, 8
    s_add_u32 s12, s12, {PART}
    v_and_b32 v{tmp}, 15, v2
    v_lshl_add_u32 v{tmp}, v{tmp}, 4, s12
    """)
    for b in range(1, 5):
        a(f"ds_read_b128 {vr(LD+4*(b-1),4)}, v{tmp} offset:{b*256}")
    a("s_waitcnt lgkmcnt(0)")
    for b in range(4):
        for c in range(4):
            a(f"v_add_f32 v{CS+c}, v{CS+c}, v{LD+4*b+c}")
    for c in range(4):
        a(f"""
        v_and_b32 v{OUT}, 0xffff0000, v{CS+c}
        v_sub_f32 v{CS+c}, v{CS+c}, v{OUT}
        v_cvt_pk_bf16_f32 v{LD+2*c+1}, v{CS+c}, 0
        v_lshrrev_b32 v{OUT+1}, 16, v{OUT}
        v_or_b32 v{LD+2*c}, v{OUT}, v{OUT+1}
        """)
    a(f"""
    s_lshr_b32 s12, s{SQ_}, 1
    s_lshl_b32 s12, s12, 9
    s_and_b32 s13, s{SQ_}, 1
    s_lshl_b32 s13, s13, 3
    s_add_u32 s12, s12, s13
    s_add_u32 s12, s12, s{SXK}
    s_mov_b64 exec, 0xffff
    """)
    for c in range(4):
        a(f"buffer_store_dwordx2 {vr(LD+2*c,2)}, v{VXK}, s[{DST}:{DST+3}], s12 offen offset:{16*c}{PSTF}")
    a("s_mov_b64 exec, -1")
    a.label(f"{L}_s2done")
```
